```python
import torch

def _softmax(x, axis=-1):
    return torch.softmax(x, dim=axis)
def _gelu(x):
    return torch.nn.functional.gelu(x, approximate="tanh")
def _silu(x):
    return torch.nn.functional.silu(x)
def _sigmoid(x):
    return torch.sigmoid(x)
def _layernorm(x, axis=-1, eps=1e-5):
    m = x.mean(dim=axis, keepdim=True)
    v = x.var(dim=axis, keepdim=True, unbiased=False)
    return (x - m) / torch.sqrt(v + eps)
def _scatter_add(tgt, idx, src, axis=0):
    return tgt.clone().index_add_(axis, idx, src)
def _segment_sum(src, seg, n):
    out = torch.zeros((n,) + src.shape[1:], dtype=src.dtype)
    return out.index_add_(0, seg, src)
def _pad(x, pw):
    flat = tuple(v for pair in reversed(pw) for v in pair)
    return torch.nn.functional.pad(x, flat)

kernel_name = 'recurrent_scan__softmax_full_mha__glu_gated_glu__prompt'

def setup_inputs():

    _w = (lambda a: (lambda t: t.to(torch.bfloat16) if t.is_floating_point() else t)(torch.as_tensor(a)))
    def _A_setup():
        B, S, D = 1, 2048, 576
        return {
            "x": _w((lambda *s: torch.randn(*s, dtype=torch.bfloat16) * 0.05)(B, S, D)),
            "wqkv": _w((lambda *s: torch.randn(*s, dtype=torch.bfloat16) * 0.05)(D, 3 * D)),
            "wo": _w((lambda *s: torch.randn(*s, dtype=torch.bfloat16) * 0.05)(D, D)),
        }
    _A_in = _A_setup()

    def _B_setup():
        B, S, D, F = 1, 2048, 576, 4608
        return {
            "x": _w((lambda *s: torch.randn(*s, dtype=torch.bfloat16) * 0.05)(B, S, D)),
            "w_gate": _w((lambda *s: torch.randn(*s, dtype=torch.bfloat16) * 0.05)(D, F)),
            "w_up": _w((lambda *s: torch.randn(*s, dtype=torch.bfloat16) * 0.05)(D, F)),
            "w_down": _w((lambda *s: torch.randn(*s, dtype=torch.bfloat16) * 0.05)(F, D)),
        }
    _B_in = _B_setup()

    return {
        "A_x": _A_in["x"],
        "A_wqkv": _A_in["wqkv"],
        "A_wo": _A_in["wo"],
        "B_x": _B_in["x"],
        "B_w_gate": _B_in["w_gate"],
        "B_w_up": _B_in["w_up"],
        "B_w_down": _B_in["w_down"],
    }

def reference(A_x, A_wqkv, A_wo, B_x, B_w_gate, B_w_up, B_w_down):
    def _A_ref(x, wqkv, wo):
        B, S, D = x.shape
        H = 32; Dh = D // H
        qkv = (lambda x, *d: x.permute(*d))((x @ wqkv).reshape(B, S, 3, H, Dh), 2, 0, 3, 1, 4)
        q, k, v = qkv[0], qkv[1], qkv[2]
        scale = Dh ** -0.5
        scores = torch.einsum("bhqd,bhkd->bhqk", q, k) * scale
        p = _softmax(scores, axis=-1)
        o = torch.einsum("bhqk,bhkd->bhqd", p, v)
        return (lambda x, *d: x.permute(*d))(o, 0, 2, 1, 3).reshape(B, S, D) @ wo

    def _B_ref(x, w_gate, w_up, w_down):
        g = torch.einsum("bsd,df->bsf", x, w_gate)
        u = torch.einsum("bsd,df->bsf", x, w_up)
        h = _sigmoid(g) * u
        return torch.einsum("bsf,fd->bsd", h, w_down)

    x = A_x
    xn = _layernorm(x, axis=-1)
    s = _A_ref(xn, A_wqkv, A_wo)
    g = _silu(_B_ref(xn, B_w_gate, B_w_up, B_w_down))
    return x + s * g
```

```python
import re

class Prog:
    def __init__(self):
        self.lines = []
        self.lgkm_issued = 0
        self.lgkm_done = 0
        self.vm_issued = 0
        self.vm_done = 0
    def e(self, s):
        for ln in s.strip('\n').split('\n'):
            ln = ln.strip()
            if ln:
                self.lines.append(ln)
    def label(self, name):
        self.lines.append(name + ':')
    def comment(self, s):
        self.lines.append('; ' + s)
    def ds(self, s):
        self.e(s); self.lgkm_issued += 1
        return self.lgkm_issued
    def vm(self, s):
        self.e(s); self.vm_issued += 1
        return self.vm_issued
    def wait(self, lgkm=None, vm=None):
        parts = []
        if vm is not None and vm > self.vm_done:
            n = self.vm_issued - vm
            if n <= 63:
                parts.append(f'vmcnt({n})'); self.vm_done = vm
            else:
                parts.append('vmcnt(63)'); self.vm_done = self.vm_issued - 63
                assert self.vm_done >= vm
        if lgkm is not None and lgkm > self.lgkm_done:
            n = self.lgkm_issued - lgkm
            if n > 15: n = 15
            parts.append(f'lgkmcnt({n})'); self.lgkm_done = self.lgkm_issued - n
        if parts:
            self.e('s_waitcnt ' + ' '.join(parts))
            return True
        return False
    def reset_counts(self):
        self.lgkm_issued = self.lgkm_done = self.vm_issued = self.vm_done = 0
    def text(self):
        out = []
        for ln in self.lines:
            if ln.endswith(':') or ln.startswith('.'):
                out.append(ln)
            else:
                out.append('    ' + ln)
        return '\n'.join(out) + '\n'

def vr(base, n=1, k='v'):
    return f'{k}{base}' if n == 1 else f'{k}[{base}:{base+n-1}]'

_reg = re.compile(r'\b([vas])(\d+)\b|\b([vas])\[(\d+):(\d+)\]')
def regs_of(op):
    out = set()
    for m in _reg.finditer(op):
        if m.group(1):
            out.add((m.group(1), int(m.group(2))))
        else:
            for i in range(int(m.group(4)), int(m.group(5)) + 1):
                out.add((m.group(3), i))
    if re.search(r'\bvcc\b', op): out.add(('x', 'vcc'))
    if re.search(r'\bexec\b', op): out.add(('x', 'exec'))
    if re.search(r'\bm0\b', op): out.add(('x', 'm0'))
    return out

TRANS = ('v_exp_', 'v_log_', 'v_rcp_', 'v_rsq_', 'v_sqrt_', 'v_sin_', 'v_cos_')
def parse(ln):
    ln = ln.split(';')[0].strip()
    if not ln or ln.endswith(':') or ln.startswith('.'):
        return None
    sp = ln.split(None, 1)
    op = sp[0]; rest = sp[1] if len(sp) > 1 else ''
    ops = [o.strip() for o in re.split(r',(?![^\[]*\])', rest)] if rest else []
    d = dict(op=op, ops=ops, text=ln, dst=set(), src=set(), kind='other', states=1)
    if op == 's_nop':
        d['states'] = int(ops[0], 0) + 1; d['kind'] = 'nop'
    elif op.startswith('v_mfma'):
        d['kind'] = 'mfma'
        d['dst'] = regs_of(ops[0]); d['A'] = regs_of(ops[1]); d['B'] = regs_of(ops[2]); d['C'] = regs_of(ops[3])
        d['src'] = d['A'] | d['B'] | d['C']
        d['passes'] = 8 if '32x32' in op else 4
    elif op.startswith('v_'):
        d['kind'] = 'valu'
        d['trans'] = op.startswith(TRANS)
        d['dst'] = regs_of(ops[0])
        nd = 1
        if op.startswith(('v_add_co', 'v_addc_co', 'v_sub_co', 'v_subb_co', 'v_div_scale', 'v_mad_u64')):
            d['dst'] |= regs_of(ops[1]); nd = 2
        for o in ops[nd:]:
            d['src'] |= regs_of(o)
        if op.startswith(('v_fmac', 'v_dot2c', 'v_permlane', 'v_writelane')) or 'dpp' in op or 'row_' in ln or 'quad_perm' in ln:
            d['src'] |= regs_of(ops[0])
        if op.startswith('v_permlane') and 'swap' in op:
            d['dst'] |= regs_of(ops[1])
        if op.startswith('v_cmpx'):
            d['dst'].add(('x', 'exec'))
        d['dpp'] = ('row_' in ln or 'quad_perm' in ln or 'wave_' in ln)
    elif op.startswith('ds_'):
        d['kind'] = 'ds'
        if 'read' in op or 'permute' in op or 'swizzle' in op or '_rtn' in op:
            d['dst'] = regs_of(ops[0])
            for o in ops[1:]: d['src'] |= regs_of(o)
        else:
            for o in ops: d['src'] |= regs_of(o)
    elif op.startswith(('buffer_', 'global_', 'flat_')):
        d['kind'] = 'vmem'
        islds = bool(re.search(r'\blds\b', ln)) or '_lds_' in op
        d['lds'] = islds
        if 'load' in op and not islds:
            d['dst'] = regs_of(ops[0])
            for o in ops[1:]: d['src'] |= regs_of(o)
        else:
            for o in ops: d['src'] |= regs_of(o)
            if 'atomic' in op and 'sc0' in ln: d['dst'] = regs_of(ops[0])
        if islds: d['src'].add(('x', 'm0'))
        d['widestore'] = ('store' in op and ('x4' in op or 'x3' in op))
        if d['widestore']:
            d['data'] = regs_of(ops[0] if op.startswith('buffer') else ops[1])
    elif op.startswith('s_'):
        d['kind'] = 'salu'
        if op.startswith(('s_waitcnt', 's_barrier', 's_branch', 's_cbranch', 's_endpgm', 's_setprio', 's_sleep', 's_cmp', 's_setpc')):
            for o in ops: d['src'] |= regs_of(o)
        else:
            if ops: d['dst'] = regs_of(ops[0])
            for o in ops[1:]: d['src'] |= regs_of(o)
            if 'saveexec' in op: d['dst'].add(('x', 'exec'))
    return d

def check_hazards(lines, name=''):
    ins = [p for p in (parse(l) for l in lines) if p]
    probs = []
    W = 24
    for i, c in enumerate(ins):
        dist = 0
        for j in range(i - 1, max(-1, i - W - 1), -1):
            p = ins[j]
            def need(n, why):
                if dist < n:
                    probs.append(f'{name}: need {n} have {dist} [{why}]: "{p["text"]}" -> "{c["text"]}"')
            vec = lambda s: {r for r in s if r[0] in 'va'}
            if p['kind'] == 'mfma':
                n_rw = {8: 12, 4: 8}[p['passes']]
                if c['kind'] == 'mfma':
                    if p['dst'] & (c['A'] | c['B']): need(n_rw, 'mfma D->A/B')
                    if p['dst'] & c['C']:
                        if not (p['dst'] == c['C'] and p['passes'] == c['passes']): need({8: 10, 4: 6}[p['passes']], 'mfma D->C overlap')
                    elif p['dst'] & c['dst']:
                        need({8: 10, 4: 6}[p['passes']], 'mfma WAW D')
                elif c['kind'] in ('valu', 'ds', 'vmem'):
                    if p['dst'] & (c['src'] | c['dst']): need(n_rw, 'mfma D->valu/mem')
                    if c['kind'] == 'valu' and (p['C'] & c['dst']): need({8: 7, 4: 3}[p['passes']], 'mfma C WAR')
            if p['kind'] == 'valu':
                if c['kind'] == 'mfma' and (vec(p['dst']) & c['src']): need(2, 'valu->mfma')
                if c['kind'] == 'mfma' and ('x', 'exec') in p['dst']: need(4, 'exec->mfma')
                if c['kind'] == 'valu':
                    if p.get('trans') and not c.get('trans') and (p['dst'] & c['src']): need(1, 'trans->valu')
                    if c.get('dpp') and (vec(p['dst']) & c['src']): need(2, 'valu->dpp')
                    if c.get('dpp') and ('x', 'exec') in p['dst']: need(5, 'exec->dpp')
                    if c['op'].startswith(('v_readlane', 'v_readfirstlane')) and (vec(p['dst']) & c['src']): need(1, 'valu->readlane')
                    if c['op'].startswith('v_permlane') and (vec(p['dst']) & c['src']): need(2, 'valu->permlane')
                    sd = {r for r in p['dst'] if r[0] == 's' or r == ('x', 'vcc')}
                    if sd & c['src']:
                        need(4 if c['op'].startswith(('v_readlane', 'v_writelane', 'v_div_fmas')) else 2, 'valu sgpr->valu')
                if c['kind'] == 'vmem':
                    sd = {r for r in p['dst'] if r[0] == 's'}
                    if sd & c['src']: need(5, 'valu sgpr->vmem')
            if p['kind'] == 'salu' and ('x', 'm0') in p['dst'] and c['kind'] == 'vmem' and c.get('lds'): need(1, 'm0->lds dma')
            if p['kind'] == 'vmem' and p.get('widestore') and (p['data'] & c['dst']):
                need(2 if c['kind'] == 'valu' else 1, 'store data WAR')
            dist += p['states']
            if dist >= 20: break
    return probs
```

```python
from asmlib import *
import math, struct

def f2u(x): return struct.unpack('<I', struct.pack('<f', x))[0]
LOG2E = 1.4426950408889634
CQ = (18 ** -0.5) * LOG2E

WS_XN = 0
WS_QF = WS_XN + 64*36*1024
WS_KV = WS_QF + 32*64*1024
WS_H  = WS_KV + 32*64*3072
WS_OF = WS_H + 64*288*1024
WS_DP = WS_OF + 64*36*1024
WS_END = WS_DP + 4*64*20*2048
WS_SIZE = 268435456

def srd(p, d, ptr, nbytes):
    p.e(f's_mov_b32 s{d}, s{ptr}\ns_mov_b32 s{d+1}, s{ptr+1}\ns_mov_b32 s{d+2}, {nbytes}\ns_mov_b32 s{d+3}, 0x20000')

def kd(name, vgpr, acc, sgpr=96):
    return f""".amdhsa_kernel {name}
  .amdhsa_next_free_vgpr {vgpr}
  .amdhsa_next_free_sgpr {sgpr}
  .amdhsa_accum_offset {acc}
  .amdhsa_group_segment_fixed_size 0
  .amdhsa_kernarg_size 80
  .amdhsa_user_sgpr_count 2
  .amdhsa_user_sgpr_kernarg_segment_ptr 1
  .amdhsa_system_sgpr_workgroup_id_x 1
.end_amdhsa_kernel
"""

def gen_k0(prefetch=True):
    p = Prog()
    p.e("""
s_cmp_ge_u32 s2, 256
s_cbranch_scc1 K0_done
s_load_dwordx2 s[4:5], s[0:1], 0
s_load_dwordx2 s[6:7], s[0:1], 72
s_load_dwordx2 s[24:25], s[0:1], 8
s_load_dwordx4 s[28:31], s[0:1], 32
v_and_b32 v1, 63, v0
v_lshrrev_b32 v2, 6, v0
s_lshl_b32 s3, s2, 3
v_add_u32 v2, s3, v2
v_mul_u32_u24 v3, 1152, v2
v_lshl_add_u32 v3, v1, 5, v3
v_cmp_gt_u32 vcc, 36, v1
v_mov_b32 v30, 0x7ff00000
v_lshrrev_b32 v31, 5, v2
v_cndmask_b32 v3, v30, v3, vcc
v_mul_u32_u24 v31, 36, v31
v_add_u32 v31, v31, v1
v_lshlrev_b32 v31, 10, v31
v_and_b32 v29, 31, v2
v_lshl_add_u32 v31, v29, 4, v31
v_cndmask_b32 v31, v30, v31, vcc
s_waitcnt lgkmcnt(0)
""")
    srd(p, 8, 4, 2048*576*2)
    srd(p, 12, 6, WS_QF)
    p.e("""
buffer_load_dwordx4 v[4:7], v3, s[8:11], 0 offen
buffer_load_dwordx4 v[8:11], v3, s[8:11], 0 offen offset:16
""")
    if prefetch:
        srd(p, 32, 28, 576*4608*2)
        srd(p, 36, 30, 576*4608*2)
        srd(p, 40, 24, 576*1728*2)
        p.e("""
s_and_b32 s20, s2, 7
s_lshr_b32 s21, s2, 3
s_lshl_b32 s21, s21, 9
v_add_u32 v32, s21, v0
v_lshrrev_b32 v33, 4, v32
v_and_b32 v34, 15, v32
s_mul_i32 s22, s20, 1152
s_mul_i32 s23, s20, 144
v_mul_u32_u24 v35, 9216, v33
v_lshl_add_u32 v35, v34, 7, v35
v_add_u32 v35, s22, v35
v_cmp_gt_u32 vcc, 9, v34
v_mul_u32_u24 v36, 3456, v33
v_mul_u32_u24 v37, 11, v34
v_cndmask_b32 v35, v30, v35, vcc
v_lshrrev_b32 v37, 5, v37
v_mul_u32_u24 v38, 3, v37
v_sub_u32 v38, v34, v38
v_mul_u32_u24 v37, 1152, v37
v_mul_u32_u24 v38, 76, v38
v_add3_u32 v36, v36, v37, v38
v_add_u32 v36, s23, v36
v_cndmask_b32 v36, v30, v36, vcc
v_cmp_gt_u32 vcc, 36, v1
""")
    p.e("s_waitcnt vmcnt(0)")
    if prefetch:
        p.e("""
buffer_load_dword v40, v35, s[32:35], 0 offen
buffer_load_dword v41, v35, s[36:39], 0 offen
buffer_load_dword v42, v36, s[40:43], 0 offen
""")
    for i in range(8):
        p.e(f'v_lshlrev_b32 v{12+2*i}, 16, v{4+i}\nv_and_b32 v{13+2*i}, 0xffff0000, v{4+i}')
    def reduce(r):
        p.e(f"""
s_nop 1
v_add_f32_dpp v{r}, v{r}, v{r} quad_perm:[1,0,3,2] row_mask:0xf bank_mask:0xf
s_nop 1
v_add_f32_dpp v{r}, v{r}, v{r} quad_perm:[2,3,0,1] row_mask:0xf bank_mask:0xf
s_nop 1
v_add_f32_dpp v{r}, v{r}, v{r} row_half_mirror row_mask:0xf bank_mask:0xf
s_nop 1
v_add_f32_dpp v{r}, v{r}, v{r} row_mirror row_mask:0xf bank_mask:0xf
s_nop 1
v_readlane_b32 s16, v{r}, 0
v_readlane_b32 s17, v{r}, 16
v_readlane_b32 s18, v{r}, 32
s_nop 1
v_mov_b32 v{r}, s16
v_add_f32 v{r}, s17, v{r}
v_add_f32 v{r}, s18, v{r}
v_mul_f32 v{r}, {hex(f2u(1.0/576))}, v{r}
""")
    p.e('v_add_f32 v4, v12, v13\nv_add_f32 v5, v14, v15\nv_add_f32 v6, v16, v17\nv_add_f32 v7, v18, v19')
    p.e('v_add_f32 v8, v20, v21\nv_add_f32 v9, v22, v23\nv_add_f32 v10, v24, v25\nv_add_f32 v11, v26, v27')
    p.e('v_add_f32 v4, v4, v5\nv_add_f32 v6, v6, v7\nv_add_f32 v8, v8, v9\nv_add_f32 v10, v10, v11')
    p.e('v_add_f32 v4, v4, v6\nv_add_f32 v8, v8, v10\nv_add_f32 v4, v4, v8')
    reduce(4)
    p.e('v_mov_b32 v5, 0\nv_mov_b32 v6, 0')
    for i in range(16):
        t = 8 + (i & 3)
        p.e(f'v_sub_f32 v{t}, v{12+i}, v4')
        p.e(f'v_fmac_f32 v{5 + (i & 1)}, v{t}, v{t}')
    p.e('v_add_f32 v5, v5, v6\nv_cndmask_b32 v5, 0, v5, vcc')
    reduce(5)
    p.e(f"""
v_cvt_pk_bf16_f32 v4, v4, v5
v_and_b32 v5, 0xffff0000, v4
v_lshlrev_b32 v4, 16, v4
v_add_f32 v5, {hex(f2u(1e-5))}, v5
v_cvt_pk_bf16_f32 v5, v5, v5
v_lshlrev_b32 v5, 16, v5
v_sqrt_f32 v5, v5
s_nop 0
v_cvt_pk_bf16_f32 v5, v5, v5
v_lshlrev_b32 v5, 16, v5
v_rcp_f32 v5, v5
""")
    for i in range(16):
        p.e(f'v_sub_f32 v{12+i}, v{12+i}, v4')
    for i in range(8):
        p.e(f'v_cvt_pk_bf16_f32 v{44+i}, v{12+2*i}, v{13+2*i}')
    for i in range(8):
        p.e(f'v_lshlrev_b32 v{12+2*i}, 16, v{44+i}\nv_and_b32 v{13+2*i}, 0xffff0000, v{44+i}')
    for i in range(16):
        p.e(f'v_mul_f32 v{12+i}, v{12+i}, v5')
    for i in range(8):
        p.e(f'v_cvt_pk_bf16_f32 v{44+i}, v{12+2*i}, v{13+2*i}')
    p.e("""
buffer_store_dwordx4 v[44:47], v31, s[12:15], 0 offen
buffer_store_dwordx4 v[48:51], v31, s[12:15], 0 offen offset:512
""")
    p.label('K0_done')
    p.e('s_endpgm')
    return p

B0 = 0
B1 = 82944
K1_LDS = B1 + 73728

def gen_k1(store_flags=''):
    p = Prog()
    ACC = [0, 64]
    P_, Q_ = 8, 72
    S_ = 136
    FB = 168
    XV = 192
    T_ = 224
    vL16 = 232
    vDF, vDM, vDQ = 233, 236, 239
    vTR = 242
    vTM, vTA, vTB = 248, 249, 250
    vSC, vAD = 251, 252
    vKV0, vKV1 = 253, 254
    def X(tt, s):
        n = tt*36 + s
        return f'a[{4*n}:{4*n+3}]' if n < 64 else vr(XV + 4*(n-64), 4)
    sW, sC, sR, sQ = 20, 21, 22, 23
    sCol, sColM, sW3, sSo = 25, 26, 27, 30
    sXN, sH0, sHM, sQF, sKV, sT = 31, 32, 33, 34, 35, 28
    sQS = 40
    sMM = 48
    sNL, sCQ = 50, 51
    p.e(f"""
s_cmp_ge_u32 s2, 256
s_cbranch_scc1 K1_done
s_load_dwordx2 s[52:53], s[0:1], 72
s_load_dwordx4 s[56:59], s[0:1], 32
s_load_dwordx2 s[54:55], s[0:1], 8
v_lshrrev_b32 v1, 6, v0
v_and_b32 v0, 63, v0
v_readfirstlane_b32 s{sW}, v1
s_and_b32 s{sQ}, s2, 7
s_lshr_b32 s3, s2, 3
s_and_b32 s24, s3, 3
s_lshr_b32 s{sR}, s3, 2
s_lshl_b32 s{sC}, s{sQ}, 2
s_add_u32 s{sC}, s{sC}, s24
s_mul_i32 s{sCol}, s{sQ}, 1152
s_lshl_b32 s3, s24, 5
s_add_u32 s{sColM}, s{sCol}, s3
s_add_u32 s{sColM}, s{sColM}, 1024
s_lshl_b32 s3, s24, 8
s_add_u32 s{sCol}, s{sCol}, s3
s_mul_i32 s{sW3}, s{sW}, 3072
s_lshl_b32 s{sT}, s{sR}, 3
s_lshl_b32 s3, s{sW}, 1
s_add_u32 s{sT}, s{sT}, s3
s_mul_i32 s{sXN}, s{sT}, {36*1024}
v_lshlrev_b32 v{vL16}, 4, v0
""")
    p.e(f"""
v_lshrrev_b32 v2, 3, v0
v_and_b32 v3, 7, v0
v_and_b32 v4, 2, v2
v_lshlrev_b32 v4, 1, v4
v_xor_b32 v3, v3, v4
s_mul_i32 s3, s{sW}, 24
v_add_u32 v2, s3, v2
v_mul_u32_u24 v2, 9216, v2
v_lshl_add_u32 v{vDF}, v3, 4, v2
v_add_u32 v{vDF+1}, {8*9216-1024}, v{vDF}
v_add_u32 v{vDF+2}, {2*(8*9216-1024)}, v{vDF}
s_waitcnt lgkmcnt(0)
""")
    srd(p, 4, 52, WS_SIZE)
    srd(p, 8, 56, 576*4608*2)
    srd(p, 12, 58, 576*4608*2)
    srd(p, 16, 54, 576*1728*2)

    def dma_full(g_srd, colreg, coladd, buf, i):
        ops = [('s', f's_add_u32 m0, s{sW3}, {buf + i*12288}\ns_add_u32 s{sSo}, s{colreg}, {coladd + i*96*9216}')]
        for j in range(3):
            ops.append(('dma', f'buffer_load_dwordx4 v{vDF+j}, s[{g_srd}:{g_srd+3}], s{sSo} offen offset:{1024*j} lds'))
        return ops
    def xload(tt, s):
        n = tt*36 + s
        return n
    xtok = {}
    dtok = {}
    def emit_xchunk(j):
        ops = []
        for half in range(2):
            s0 = 6*j + 3*half
            ops.append(('s', f's_add_u32 s60, s{sXN}, {WS_XN + s0*1024}\ns_add_u32 s61, s{sXN}, {WS_XN + (36+s0)*1024}'))
            for s in range(s0, s0+3):
                for tt in range(2):
                    ops.append(('x', (tt, s), f'buffer_load_dwordx4 {X(tt,s)}, v{vL16}, s[4:7], s{60+tt} offen offset:{(s-s0)*1024}'))
        return ops
    def do_op(op):
        if op[0] == 's': p.e(op[1])
        elif op[0] == 'dma': dtok['last'] = p.vm(op[1])
        elif op[0] == 'x': xtok[op[1]] = p.vm(op[2])
        elif op[0] == 'st': p.vm(op[1])
        elif op[0] == 'v': p.e(op[1])
        elif op[0] == 'mark': dtok[op[1]] = dtok['last']
    pro = []
    for j in range(6):
        pro.append(dma_full(8, sCol, 0, B0, j) + [('mark', ('G0', j))] + emit_xchunk(j))
    for j in range(4):
        for op in pro[j]: do_op(op)
    p.e(f"""
v_lshrrev_b32 v1, 4, v0
v_and_b32 v2, 15, v0
v_lshrrev_b32 v3, 1, v1
v_and_b32 v4, 1, v1
v_lshrrev_b32 v5, 2, v2
v_and_b32 v6, 3, v2
v_lshl_add_u32 v7, v3, 3, v5
""")
    p.e(f"""
v_lshrrev_b32 v{T_}, 1, v5
v_lshlrev_b32 v{T_}, 6, v{T_}
v_lshl_add_u32 v{T_}, v7, 7, v{T_}
v_lshl_add_u32 v{T_}, v4, 5, v{T_}
v_lshl_add_u32 v{vTR}, v6, 3, v{T_}
v_xor_b32 v{vTR+1}, 64, v{vTR}
v_add_u32 v{vTR+2}, 0x10000, v{vTR}
v_add_u32 v{vTR+3}, 0x10000, v{vTR+1}
v_add_u32 v{vTR+4}, 0x20000, v{vTR}
v_add_u32 v{vTR+5}, 0x20000, v{vTR+1}
v_mul_u32_u24 v{T_}, 18560, v4
v_lshl_add_u32 v{T_}, v7, 5, v{T_}
v_lshl_add_u32 v{T_}, v6, 3, v{T_}
v_add_u32 v{vTM}, {B1}, v{T_}
v_mul_u32_u24 v{T_}, 48, v7
v_mul_u32_u24 v{T_+1}, 27648, v4
v_lshl_add_u32 v{T_+2}, v6, 3, v{T_}
v_add_u32 v{vTA}, v{T_+1}, v{T_+2}
v_add_u32 v{T_+2}, {2*27648}, v{T_+2}
v_add_u32 v{T_+3}, 2, v6
v_mul_u32_u24 v{T_+4}, 11, v{T_+3}
v_lshrrev_b32 v{T_+4}, 5, v{T_+4}
v_mul_u32_u24 v{T_+4}, 3, v{T_+4}
v_sub_u32 v{T_+3}, v{T_+3}, v{T_+4}
v_mul_u32_u24 v{T_+3}, 27648, v{T_+3}
v_add3_u32 v{T_+3}, v{T_+3}, v{T_}, 32
v_cmp_eq_u32 vcc, 1, v4
s_nop 1
v_cndmask_b32 v{vTB}, v{T_+2}, v{T_+3}, vcc
""")
    assert B0 == 0
    p.e(f"""
v_lshrrev_b32 v{T_}, 1, v0
s_and_b32 s3, s{sW}, 1
s_mul_i32 s62, s3, 96
v_add_u32 v{T_}, s62, v{T_}
v_mul_u32_u24 v{T_}, 9216, v{T_}
v_and_b32 v{T_+1}, 1, v0
v_lshl_add_u32 v{vDM}, v{T_+1}, 4, v{T_}
v_add_u32 v{vDM+1}, {32*9216-1024}, v{vDM}
v_add_u32 v{vDM+2}, {2*(32*9216-1024)}, v{vDM}
s_mul_i32 s{sMM}, s3, 3072
s_lshr_b32 s3, s{sW}, 1
s_mul_i32 s62, s3, 18560
s_add_u32 s{sMM}, s{sMM}, s62
s_cmp_eq_u32 s3, 0
s_cselect_b32 s36, s56, s58
s_cselect_b32 s37, s57, s59
s_mov_b32 s38, {576*4608*2}
s_mov_b32 s39, 0x20000
""")
    for j in range(3):
        p.e(f"""
v_add_u32 v{T_}, {64*j}, v0
v_mul_u32_u24 v{T_+1}, 171, v{T_}
v_lshrrev_b32 v{T_+1}, 9, v{T_+1}
v_mul_u32_u24 v{T_+2}, 3, v{T_+1}
v_sub_u32 v{T_+2}, v{T_}, v{T_+2}
v_mul_u32_u24 v{T_+1}, 3456, v{T_+1}
v_lshl_add_u32 v{vDQ+j}, v{T_+2}, 4, v{T_+1}
""")
        if j: p.e(f'v_subrev_u32 v{vDQ+j}, {1024*j}, v{vDQ+j}')
    p.e(f's_mul_i32 s63, s{sC}, 36')
    for i in range(7):
        p.e(f"""
s_add_u32 s3, s{sW}, {4*i}
s_min_u32 s3, s3, 26
s_mul_i32 s62, s3, 57
s_lshr_b32 s62, s62, 9
s_mul_i32 s{sQS+i}, s3, {64*3456}
s_mul_i32 s62, s62, {9*64*3456 - 1152}
s_sub_u32 s{sQS+i}, s{sQS+i}, s62
s_add_u32 s{sQS+i}, s{sQS+i}, s63
""")
    p.e(f's_mul_i32 s{sQS+7}, s3, 3072')
    p.e(f"""
s_mul_i32 s{sH0}, s{sT}, {288*1024}
s_lshl_b32 s3, s{sColM}, 5
s_add_u32 s{sHM}, s{sH0}, s3
s_add_u32 s{sHM}, s{sHM}, {WS_H}
s_lshl_b32 s3, s{sCol}, 5
s_add_u32 s{sH0}, s{sH0}, s3
s_add_u32 s{sH0}, s{sH0}, {WS_H}
s_lshl_b32 s3, s{sC}, 6
s_add_u32 s3, s3, s{sT}
s_lshl_b32 s{sQF}, s3, 10
s_add_u32 s{sQF}, s{sQF}, {WS_QF}
s_mul_i32 s{sKV}, s3, 3072
s_add_u32 s{sKV}, s{sKV}, {WS_KV}
s_mov_b32 s{sNL}, {hex(f2u(-LOG2E))}
s_mov_b32 s{sCQ}, {hex(f2u(CQ))}
""")
    p.e(f"""
v_and_b32 v{T_}, 31, v0
v_mov_b32 v{vSC}, 1.0
v_mov_b32 v{vAD}, 0
v_mov_b32 v{T_+1}, s{sCQ}
v_and_b32 v{T_+2}, 30, v{T_}
v_cmp_eq_u32 vcc, 20, v{T_+2}
v_and_b32 v{T_+2}, 27, v{T_}
s_nop 0
v_cndmask_b32 v{vSC}, v{vSC}, v{T_+1}, vcc
v_cmp_eq_u32 vcc, 18, v{T_+2}
v_mov_b32 v{T_+1}, 1.0
s_nop 0
v_cndmask_b32 v{vAD}, v{vAD}, v{T_+1}, vcc
v_mov_b32 v{T_+1}, 0
s_nop 0
v_cndmask_b32 v{vSC}, v{vSC}, v{T_+1}, vcc
""")
    for u in range(2):
        p.e(f"""
v_lshl_add_u32 v{T_+1}, v3, 1, v{T_}
v_add_u32 v{T_+1}, {4*u}, v{T_+1}
v_and_b32 v{T_+1}, 7, v{T_+1}
v_or_b32 v{T_+1}, 24, v{T_+1}
v_cmp_le_u32 vcc, 24, v{T_}
s_nop 1
v_cndmask_b32 v{T_+1}, v{T_}, v{T_+1}, vcc
v_lshl_add_u32 v{T_+1}, v3, 5, v{T_+1}
v_lshlrev_b32 v{vKV0+u}, 4, v{T_+1}
""")

    def rd_full(buf):
        def f(s, fr, u):
            off = buf + s*2048 + u*512
            return f'v{vTR + 2*(off >> 16) + fr}', off & 0xffff
        return f
    steps = []
    def add_group(name, kind, buf, acc):
        if kind == 'full' or kind == 'qkv':
            for s in range(36):
                if kind == 'full':
                    rd = [rd_full(buf)(s, fr, u) for fr in range(2) for u in range(2)]
                else:
                    rd = [(f'v{vTA if fr == 0 else vTB}', s*768 + u*192) for fr in range(2) for u in range(2)]
                mf = [(acc + 32*fr + 16*tt, fr, (kind == 'qkv' and fr == 1), (tt, s), s == 0) for fr in range(2) for tt in range(2)]
                steps.append(dict(g=name, i=s, rd=rd, mf=mf))
        else:
            for s2 in range(18):
                rd = [(f'v{vTM}', (2*s2+fr)*512 + u*128) for fr in range(2) for u in range(2)]
                mf = [(acc + 16*tt, fr, False, (tt, 2*s2+fr), (2*s2+fr) == 0) for fr in range(2) for tt in range(2)]
                steps.append(dict(g=name, i=s2, rd=rd, mf=mf))
    add_group('G0', 'full', B0, P_)
    add_group('U0', 'full', B1, Q_)
    add_group('G1', 'full', B0, P_)
    add_group('U1', 'full', B1, Q_)
    add_group('QKV', 'qkv', B0, P_)
    add_group('M', 'mix', B1, Q_)
    order = ['G0', 'U0', 'G1', 'U1', 'QKV', 'M']

    def V(t, c=4): return ('v', t, c)
    def epi_G(acc):
        ops = []
        for tile in range(4):
            for b in range(4):
                r = acc + 16*tile + 4*b
                ops += [V(f'v_mul_f32 v{r+k}, s{sNL}, v{r+k}') for k in range(4)]
                ops += [V(f'v_exp_f32 v{r+k}, v{r+k}', 8) for k in range(4)]
                ops += [V(f'v_add_f32 v{r+k}, 1.0, v{r+k}') for k in range(4)]
                ops += [V(f'v_cvt_pk_bf16_f32 v{S_ + 8*tile + 2*b + k}, v{r+2*k}, v{r+2*k+1}') for k in range(2)]
        return ops
    def epi_U(acc, hadd):
        ops = [('s', f's_add_u32 s60, s{sH0}, {hadd}\ns_add_u32 s61, s{sH0}, {hadd + 288*1024}')]
        for tile in range(4):
            fr, tt = tile >> 1, tile & 1
            for b in range(4):
                r = acc + 16*tile + 4*b
                sreg = S_ + 8*tile + 2*b
                t = T_ + 4*(b & 1)
                ops += [V(f'v_lshlrev_b32 v{t}, 16, v{sreg}'), V(f'v_and_b32 v{t+1}, 0xffff0000, v{sreg}'),
                        V(f'v_lshlrev_b32 v{t+2}, 16, v{sreg+1}'), V(f'v_and_b32 v{t+3}, 0xffff0000, v{sreg+1}')]
                ops += [V(f'v_rcp_f32 v{t+k}, v{t+k}', 8) for k in range(4)]
                ops += [V(f'v_mul_f32 v{r+k}, v{r+k}, v{t+k}') for k in range(4)]
                ops += [V(f'v_cvt_pk_bf16_f32 v{sreg+k}, v{r+2*k}, v{r+2*k+1}') for k in range(2)]
                if b & 1:
                    q = S_ + 8*tile + 4*(b >> 1)
                    ops.append(('st', f'buffer_store_dwordx4 v[{q}:{q+3}], v{vL16}, s[4:7], s{60+tt} offen offset:{(2*fr + (b>>1))*1024}{store_flags}'))
        return ops
    def epi_QKV(acc):
        ops = [('s', f's_add_u32 s60, s{sQF}, 1024\ns_add_u32 s61, s{sKV}, 3072')]
        for tt in range(2):
            r = acc + 16*tt
            q = S_ + 8*tt
            ops += [V(f'v_mul_f32 v{r+k}, s{sCQ}, v{r+k}') for k in range(8)]
            ops += [V(f'v_cvt_pk_bf16_f32 v{q+k}, v{r+2*k}, v{r+2*k+1}') for k in range(8)]
            ops.append(('st', f'buffer_store_dwordx4 v[{q}:{q+3}], v{vL16}, s[4:7], s{sQF if tt == 0 else 60} offen{store_flags}'))
            ops.append(('st', f'buffer_store_dwordx4 v[{q+4}:{q+7}], v{vL16}, s[4:7], s{sKV if tt == 0 else 61} offen{store_flags}'))
        for tt in range(2):
            r = acc + 32 + 16*tt
            q = S_ + 16 + 8*tt
            ops += [V(f'v_fma_f32 v{r+k}, v{r+k}, v{vSC}, v{vAD}') for k in range(16)]
            ops += [V(f'v_cvt_pk_bf16_f32 v{q+k}, v{r+2*k}, v{r+2*k+1}') for k in range(8)]
            for u in range(2):
                ops.append(('st', f'buffer_store_dwordx4 v[{q+4*u}:{q+4*u+3}], v{vKV0+u}, s[4:7], s{sKV if tt == 0 else 61} offen offset:{1024*(1+u)}{store_flags}'))
        return ops
    def epi_M(acc):
        ops = [('s', f's_add_u32 s61, s{sHM}, {288*1024}')]
        for tt in range(2):
            r = acc + 16*tt
            q = T_ + 4*tt
            ops += [V(f'v_mul_f32 v{r+k}, s{sNL}, v{r+k}') for k in range(8)]
            ops += [V(f'v_exp_f32 v{r+k}, v{r+k}', 8) for k in range(8)]
            ops += [V(f'v_add_f32 v{r+k}, 1.0, v{r+k}') for k in range(8)]
            ops += [V(f'v_rcp_f32 v{r+k}, v{r+k}', 8) for k in range(8)]
            ops += [V(f'v_mul_f32 v{r+k}, v{r+k}, v{r+8+k}') for k in range(8)]
            ops += [V(f'v_cvt_pk_bf16_f32 v{q+k}, v{r+2*k}, v{r+2*k+1}') for k in range(4)]
            ops.append(('st', f'buffer_store_dwordx4 v[{q}:{q+3}], v{vL16}, s[4:7], s{sHM if tt == 0 else 61} offen{store_flags}'))
        return ops
    def dma_group(name):
        ops = []
        if name in ('U0', 'G1', 'U1'):
            g, add, buf = {'U0': (12, 0, B1), 'G1': (8, 128, B0), 'U1': (12, 128, B1)}[name]
            for i in range(6): ops += dma_full(g, sCol, add, buf, i)
        elif name == 'QKV':
            for i in range(7):
                m0 = f's_add_u32 m0, s{sW3}, {B0 + i*12288}' if i < 6 else f's_add_u32 m0, s{sQS+7}, {B0}'
                ops.append(('s', m0 + '\ns_nop 0'))
                for j in range(3):
                    ops.append(('dma', f'buffer_load_dwordx4 v{vDQ+j}, s[16:19], s{sQS+i} offen offset:{1024*j} lds'))
        elif name == 'M':
            for i in range(3):
                ops.append(('s', f's_add_u32 m0, s{sMM}, {B1 + i*6144}\ns_add_u32 s{sSo}, s{sColM}, {i*192*9216}'))
                for j in range(3):
                    ops.append(('dma', f'buffer_load_dwordx4 v{vDM+j}, s[36:39], s{sSo} offen offset:{1024*j} lds'))
        ops.append(('mark', (name, 0)))
        return ops
    mem_q = {
        'G0': pro[4] + pro[5] + dma_group('U0'),
        'U0': dma_group('G1'), 'G1': dma_group('U1'), 'U1': dma_group('QKV'), 'QKV': dma_group('M'), 'M': []}
    epi_q = {'G0': [], 'U0': epi_G(P_), 'G1': epi_U(Q_, 0), 'U1': epi_G(P_), 'QKV': epi_U(Q_, 4096), 'M': epi_QKV(P_)}

    rtok = {}
    def issue_read(n, k):
        st = steps[n]
        a, off = st['rd'][k]
        d = FB + 8*(n % 3) + 2*k
        rtok[n] = p.ds(f'ds_read_b64_tr_b16 v[{d}:{d+1}], {a} offset:{off}')
    def sync_for(n):
        st = steps[n]
        if st['g'] == 'G0':
            return ('G0', st['i'] // 6) if st['i'] % 6 == 0 else None
        return (st['g'], 0) if st['i'] == 0 else None
    p.wait(vm=dtok[('G0', 0)]); p.e('s_barrier')
    for n in range(2):
        for k in range(4): issue_read(n, k)
    N = len(steps)
    cur = None
    for n in range(N):
        st = steps[n]
        if st['g'] != cur:
            cur = st['g']
            ngaps = 4 * sum(1 for s in steps if s['g'] == cur)
            mq = list(mem_q[cur]); eq = list(epi_q[cur])
            tot = sum(o[2] for o in eq if o[0] == 'v')
            skip = 3
            rate = tot / max(1, (ngaps - skip - 10))
            credit = 0.0; gi = 0
            memgap = 2 if cur == 'G0' else 3
        sy = sync_for(n+2) if n + 2 < N else None
        rk = 0
        for m in range(4):
            acc, fr, swap, xid, first = st['mf'][m]
            need_vm = xtok[xid] if xid in xtok else None
            assert need_vm is not None, xid
            p.wait(lgkm=rtok[n] if m == 0 else None, vm=need_vm)
            fa = vr(FB + 8*(n % 3) + 4*fr, 4)
            a, b = (X(*xid), fa) if swap else (fa, X(*xid))
            p.e(f'v_mfma_f32_32x32x16_bf16 v[{acc}:{acc+15}], {a}, {b}, {"0" if first else vr(acc,16)}')
            used = 0
            if n + 2 < N:
                if sy is None:
                    issue_read(n+2, rk); rk += 1
                elif m == 1:
                    full = (sy[0] != 'G0')
                    p.wait(vm=dtok[sy], lgkm=(p.lgkm_issued if full else None))
                    p.e('s_barrier')
                    issue_read(n+2, 0); issue_read(n+2, 1); used += 12
                elif m >= 2:
                    issue_read(n+2, m)
            if mq and gi % memgap == 0 and gi >= 0:
                while mq and mq[0][0] in ('s', 'mark'):
                    o = mq.pop(0); do_op(o)
                    if o[0] == 's': used += 8
                if mq:
                    do_op(mq.pop(0)); used += 4
                while mq and mq[0][0] == 'mark': do_op(mq.pop(0))
            if gi >= skip:
                credit += rate
                while eq and eq[0][0] in ('s', 'st') and used < 12:
                    do_op(eq.pop(0)); used += 4
                while eq and eq[0][0] == 'v' and credit >= eq[0][2] - 0.01 and used + eq[0][2] <= 16:
                    o = eq.pop(0); do_op(o); credit -= o[2]; used += o[2]
            gi += 1
        if n + 1 == N or steps[n+1]['g'] != cur:
            assert not mq, (cur, len(mq))
            if eq:
                p.comment(f'leftover epilogue ops in {cur}: {len(eq)}')
                print('leftover', cur, len(eq))
                for o in eq: do_op(o)
    p.e('s_nop 7\ns_nop 3')
    for o in epi_M(Q_): do_op(o)
    p.label('K1_done')
    p.e('s_endpgm')
    return p

if __name__ == '__main__':
    for nm, g in (('k0', gen_k0), ('k1', gen_k1)):
        p = g()
        pr = check_hazards(p.lines, nm)
        print(nm, len(p.lines), 'lines;', len(pr), 'hazards')
        for x in pr[:20]: print(x)
```

```python
from k01 import *

K2A_LDS = 3*24576
def gen_k2a(force_fallback=False):
    p = Prog()
    S0, S1, O_, P_ = 8, 24, 40, 56
    K_, V0, V1, Q_ = 64, 68, 72, 76
    KX, QX = 80, 82
    vA, vA2, vX, vX2 = 84, 85, 86, 87
    C_ = 88
    sW, sH, sT = 20, 21, 22
    sKV, sW3, sSo, sG = 23, 24, 25, 26
    p.e(f"""
s_cmp_ge_u32 s2, 256
s_cbranch_scc1 K2A_done
s_load_dwordx2 s[8:9], s[0:1], 72
v_lshrrev_b32 v1, 6, v0
v_and_b32 v0, 63, v0
v_readfirstlane_b32 s{sW}, v1
s_and_b32 s3, s2, 7
s_lshr_b32 s12, s2, 3
s_and_b32 s13, s12, 3
s_lshl_b32 s{sH}, s3, 2
s_add_u32 s{sH}, s{sH}, s13
s_lshr_b32 s12, s12, 2
s_lshl_b32 s{sT}, s12, 3
s_add_u32 s{sT}, s{sT}, s{sW}
s_mul_i32 s{sG}, s{sH}, {64*3072}
s_add_u32 s{sG}, s{sG}, {WS_KV}
s_mul_i32 s{sW3}, s{sW}, 3072
s_add_u32 s{sKV}, s{sG}, s{sW3}
v_lshlrev_b32 v{vA}, 4, v0
s_waitcnt lgkmcnt(0)
""")
    srd(p, 4, 8, WS_SIZE)
    def dma(ch):
        p.e(f's_add_u32 m0, s{sW3}, {(ch % 3)*24576}\ns_add_u32 s{sSo}, s{sKV}, {ch*24576}')
        for j in range(3):
            t = p.vm(f'buffer_load_dwordx4 v{vA}, s[4:7], s{sSo} offen offset:{1024*j} lds')
        return t
    dt = {}
    dt[0] = dma(0)
    p.e(f"""
v_lshrrev_b32 v2, 5, v0
v_bfe_u32 v3, v0, 4, 1
v_bfe_u32 v4, v0, 2, 1
v_bfe_u32 v5, v0, 3, 1
v_and_b32 v6, 3, v0
v_lshl_add_u32 v6, v5, 2, v6
v_lshlrev_b32 v6, 1, v6
v_lshl_add_u32 v6, v3, 10, v6
v_lshl_add_u32 v6, v4, 9, v6
v_lshl_add_u32 v6, v2, 4, v6
v_add_u32 v7, {1024 + 20*16}, v6
v_lshl_add_u32 v6, v4, 5, v6
v_lshl_add_u32 v6, v3, 6, v6
v_add_u32 v{vX}, {1024 + 24*16}, v6
v_add_u32 v{vA2}, 49152, v{vA}
v_add_u32 v{vX2}, 49152, v{vX}
s_lshl_b32 s12, s{sH}, 6
s_add_u32 s12, s12, s{sT}
s_lshl_b32 s13, s12, 10
s_add_u32 s13, s13, {WS_QF}
s_mul_i32 s14, s12, 3072
s_add_u32 s14, s14, {WS_KV}
""")
    p.vm(f'buffer_load_dwordx4 v[{Q_}:{Q_+3}], v{vA}, s[4:7], s13 offen')
    qt = p.vm(f'buffer_load_ushort v{QX}, v7, s[4:7], s14 offen')
    dt[1] = dma(1)
    p.e(f'v_mov_b32 v{QX+1}, 0\nv_mov_b32 v{KX+1}, 0')
    def laddr(i, part):
        off = ((i >> 3) % 3)*24576 + (i & 7)*3072
        if part == 'x':
            return (f'v{vX}', off) if off < 49152 else (f'v{vX2}', off - 49152)
        off += {'k': 0, 'v0': 1024, 'v1': 2048}[part]
        return (f'v{vA}', off) if off < 49152 else (f'v{vA2}', off - 49152)
    tk = {}
    def rd(i, part):
        if i > 63: return
        if part == 'k' and i % 8 == 0:
            ch = i // 8
            p.wait(vm=dt[ch]); p.e('s_barrier')
            if ch >= 1 and ch + 1 < 8: dt[ch+1] = dma(ch+1)
        a, off = laddr(i, part)
        if part == 'x': tk[(i, part)] = p.ds(f'ds_read_u16 v{KX}, {a} offset:{off}')
        else:
            d = {'k': K_, 'v0': V0, 'v1': V1}[part]
            tk[(i, part)] = p.ds(f'ds_read_b128 v[{d}:{d+3}], {a} offset:{off}')
    Sb = [S0, S1]
    def qk1(i):
        p.wait(lgkm=tk[(i, 'k')])
        p.e(f'v_mfma_f32_32x32x16_bf16 {vr(Sb[i&1],16)}, {vr(K_,4)}, {vr(Q_,4)}, 0')
    def qk2(i):
        p.wait(lgkm=tk[(i, 'x')])
        p.e(f'v_mfma_f32_32x32x8bf16_1k {vr(Sb[i&1],16)}, {vr(KX,2)}, {vr(QX,2)}, {vr(Sb[i&1],16)}')
    def pv(i, u):
        p.wait(lgkm=tk[(i, 'v%d' % u)])
        c = '0' if (i == 0 and u == 0) else vr(O_, 16)
        p.e(f'v_mfma_f32_32x32x16_bf16 {vr(O_,16)}, {vr(V0 if u == 0 else V1,4)}, {vr(P_+4*u,4)}, {c}')
    def ex(i, a, b):
        for k in range(a, b): p.e(f'v_exp_f32 v{Sb[i&1]+k}, v{Sb[i&1]+k}')
    def cv(i, u):
        for k in range(4*u, 4*u+4): p.e(f'v_cvt_pk_bf16_f32 v{P_+k}, v{Sb[i&1]+2*k}, v{Sb[i&1]+2*k+1}')
    rd(0, 'k'); rd(0, 'x'); rd(0, 'v0')
    p.wait(vm=qt)
    qk1(0); rd(1, 'k'); qk2(0); rd(1, 'x')
    p.e('s_nop 7')
    for i in range(64):
        if i + 1 < 64: qk1(i+1); rd(i+2, 'k')
        ex(i, 0, 4)
        if i > 0: pv(i-1, 1)
        rd(i, 'v1')
        ex(i, 4, 8); cv(i, 0)
        if i + 1 < 64: qk2(i+1); rd(i+2, 'x')
        ex(i, 8, 12)
        pv(i, 0); rd(i+1, 'v0')
        ex(i, 12, 16); cv(i, 1)
    p.e('s_nop 1')
    pv(63, 1)
    p.e('s_nop 7\ns_nop 3')
    p.e(f"""
v_mov_b32 v1, {hex(f2u(2.0**-64))}
v_mov_b32 v2, {hex(f2u(2.0**64))}
v_cmp_nge_f32 vcc, v{O_+10}, v1
v_cmp_nle_f32 s[16:17], v{O_+10}, v2
s_or_b64 vcc, vcc, s[16:17]
""")
    if force_fallback: p.e('s_branch K2A_fallback')
    p.e('s_cbranch_vccnz K2A_fallback')
    p.label('K2A_finish')
    p.e(f"""
v_rcp_f32 v1, v{O_+10}
s_mul_i32 s12, s{sT}, {36*1024}
s_lshl_b32 s13, s{sH}, 10
s_add_u32 s13, s13, s12
s_add_u32 s13, s13, {WS_OF}
s_lshr_b32 s14, s{sH}, 3
s_lshl_b32 s14, s14, 10
s_add_u32 s14, s14, s12
s_bfe_u32 s15, s{sH}, 0x10002
s_lshl_b32 s15, s15, 9
s_add_u32 s14, s14, s15
s_and_b32 s15, s{sH}, 3
s_lshl_b32 s15, s15, 2
s_add_u32 s14, s14, s15
s_add_u32 s14, s14, {WS_OF + 32*1024}
""")
    for k in range(10): p.e(f'v_mul_f32 v{O_+k}, v{O_+k}, v1')
    for k in range(5): p.e(f'v_cvt_pk_bf16_f32 v{P_+k}, v{O_+2*k}, v{O_+2*k+1}')
    p.e(f"""
buffer_store_dwordx4 v[{P_}:{P_+3}], v{vA}, s[4:7], s13 offen
s_mov_b64 exec, 0xffffffff
buffer_store_dword v{P_+4}, v{vA}, s[4:7], s14 offen
""")
    p.label('K2A_done')
    p.e('s_endpgm')
    p.label('K2A_fallback')
    p.e(f"""
v_mov_b32 v1, 0xff800000
s_mov_b32 s12, s{sG}
s_mov_b32 s13, 64
""")
    p.label('K2A_fb1')
    p.e(f"""
buffer_load_dwordx4 v[{K_}:{K_+3}], v{vA}, s[4:7], s12 offen
buffer_load_ushort v{KX}, v{vX}, s[4:7], s12 offen
s_waitcnt vmcnt(0)
v_mfma_f32_32x32x16_bf16 {vr(S0,16)}, {vr(K_,4)}, {vr(Q_,4)}, 0
v_mfma_f32_32x32x8bf16_1k {vr(S0,16)}, {vr(KX,2)}, {vr(QX,2)}, {vr(S0,16)}
s_nop 7
s_nop 7
""")
    for k in range(8): p.e(f'v_max3_f32 v1, v1, v{S0+2*k}, v{S0+2*k+1}')
    p.e(f"""
s_add_u32 s12, s12, 3072
s_sub_u32 s13, s13, 1
s_cmp_lg_u32 s13, 0
s_cbranch_scc1 K2A_fb1
v_mov_b32 v2, v1
s_nop 1
v_permlane32_swap_b32 v1, v2
s_nop 1
v_max_f32 v1, v1, v2
""")
    for k in range(16): p.e(f'v_sub_f32 v{C_+k}, 0, v1\nv_mov_b32 v{O_+k}, 0')
    p.e(f's_mov_b32 s12, s{sG}\ns_mov_b32 s13, 64')
    p.label('K2A_fb2')
    p.e(f"""
buffer_load_dwordx4 v[{K_}:{K_+3}], v{vA}, s[4:7], s12 offen
buffer_load_ushort v{KX}, v{vX}, s[4:7], s12 offen
buffer_load_dwordx4 v[{V0}:{V0+3}], v{vA}, s[4:7], s12 offen offset:1024
buffer_load_dwordx4 v[{V1}:{V1+3}], v{vA}, s[4:7], s12 offen offset:2048
s_waitcnt vmcnt(0)
v_mfma_f32_32x32x16_bf16 {vr(S0,16)}, {vr(K_,4)}, {vr(Q_,4)}, {vr(C_,16)}
v_mfma_f32_32x32x8bf16_1k {vr(S0,16)}, {vr(KX,2)}, {vr(QX,2)}, {vr(S0,16)}
s_nop 7
s_nop 7
""")
    for k in range(16): p.e(f'v_exp_f32 v{S0+k}, v{S0+k}')
    p.e('s_nop 0')
    for k in range(8): p.e(f'v_cvt_pk_bf16_f32 v{P_+k}, v{S0+2*k}, v{S0+2*k+1}')
    p.e(f"""
s_nop 1
v_mfma_f32_32x32x16_bf16 {vr(O_,16)}, {vr(V0,4)}, {vr(P_,4)}, {vr(O_,16)}
v_mfma_f32_32x32x16_bf16 {vr(O_,16)}, {vr(V1,4)}, {vr(P_+4,4)}, {vr(O_,16)}
s_add_u32 s12, s12, 3072
s_sub_u32 s13, s13, 1
s_cmp_lg_u32 s13, 0
s_cbranch_scc1 K2A_fb2
s_nop 7
s_nop 7
s_branch K2A_finish
""")
    return p

NSLOT = 6
SLOT = 20480
K2B_LDS = NSLOT*SLOT
def gen_k2b():
    p = Prog()
    ACC = 8
    WF = 88
    HF = 108
    NH = 16
    vL16 = 172; vD = 173
    vDS = 177
    vT = 178
    vTS = 186
    sW, sT, sCB = 20, 21, 22
    sWA, sWB, sHA, sHB, sSh, sW4, sW1, sSo = 23, 24, 25, 26, 27, 28, 29, 30
    p.e(f"""
s_cmp_ge_u32 s2, 256
s_cbranch_scc1 K2B_done
s_load_dwordx2 s[12:13], s[0:1], 72
s_load_dwordx2 s[14:15], s[0:1], 48
v_lshrrev_b32 v1, 6, v0
v_and_b32 v0, 63, v0
v_readfirstlane_b32 s{sW}, v1
s_and_b32 s3, s2, 7
s_lshr_b32 s16, s2, 3
s_and_b32 s{sCB}, s16, 3
s_lshr_b32 s16, s16, 2
s_and_b32 s17, s3, 1
s_lshl_b32 s17, s17, 3
s_add_u32 s16, s16, s17
s_lshl_b32 s{sT}, s16, 2
s_add_u32 s{sT}, s{sT}, s{sW}
s_lshr_b32 s31, s3, 1
s_and_b32 s17, s{sCB}, 1
s_mul_i32 s18, s31, 72
s_mul_i32 s19, s17, 36
s_add_u32 s32, s18, s19
s_sub_u32 s33, s18, s19
s_lshr_b32 s34, s{sCB}, 1
s_mul_i32 s34, s34, 576
s_mul_i32 s35, s17, 320
s_add_u32 s35, s35, s34
s_mul_i32 s{sWA}, s32, {16*1152}
s_add_u32 s{sSh}, s{sWA}, s34
s_add_u32 s{sSh}, s{sSh}, 256
s_add_u32 s{sWA}, s{sWA}, s35
s_mul_i32 s{sWB}, s33, {16*1152}
s_add_u32 s{sWB}, s{sWB}, s35
s_mul_i32 s36, s{sT}, {288*1024}
s_add_u32 s36, s36, {WS_H}
s_lshl_b32 s{sHA}, s32, 10
s_add_u32 s{sHA}, s{sHA}, s36
s_lshl_b32 s{sHB}, s33, 10
s_add_u32 s{sHB}, s{sHB}, s36
s_lshl_b32 s{sW4}, s{sW}, 12
s_lshl_b32 s{sW1}, s{sW}, 10
v_lshlrev_b32 v{vL16}, 4, v0
v_lshrrev_b32 v2, 4, v0
v_and_b32 v3, 15, v0
v_lshlrev_b32 v4, 2, v2
v_xor_b32 v3, v3, v4
s_lshl_b32 s3, s{sW}, 4
v_add_u32 v2, s3, v2
v_mul_u32_u24 v2, 1152, v2
v_lshl_add_u32 v{vD}, v3, 4, v2
v_add_u32 v{vD+1}, {4*1152-1024}, v{vD}
v_add_u32 v{vD+2}, {2*(4*1152-1024)}, v{vD}
v_add_u32 v{vD+3}, {3*(4*1152-1024)}, v{vD}
v_lshrrev_b32 v2, 2, v0
v_add_u32 v2, s3, v2
v_mul_u32_u24 v2, 1152, v2
v_and_b32 v3, 3, v0
v_lshl_add_u32 v{vDS}, v3, 4, v2
s_waitcnt lgkmcnt(0)
""")
    srd(p, 4, 12, WS_SIZE)
    srd(p, 8, 14, 4608*576*2)
    dt = {}; ht = {}
    def mem_ops(ci):
        sl = (ci % NSLOT)*SLOT
        wb = sWA if ci < 9 else sWB
        ops = [('s', f's_add_u32 m0, s{sW4}, {sl}\ns_add_u32 s{sSo}, s{wb}, {ci*64*1152}')]
        for j in range(4):
            ops.append(('dma', ci, f'buffer_load_dwordx4 v{vD+j}, s[8:11], s{sSo} offen offset:{1024*j} lds'))
        if ci < 9:
            ops.append(('s', f's_add_u32 m0, s{sW1}, {sl + 16384}\ns_add_u32 s{sSo}, s{sSh}, {ci*64*1152}'))
            ops.append(('dma', ci, f'buffer_load_dwordx4 v{vDS}, s[8:11], s{sSo} offen lds'))
        return ops
    def h_ops(ci):
        hb = sHA if ci < 9 else sHB
        ops = [('s', f's_add_u32 s37, s{hb}, {ci*4096}')]
        for j in range(4):
            s = 4*ci + j
            d = HF + 4*(s % NH)
            ops.append(('h', s, f'buffer_load_dwordx4 v[{d}:{d+3}], v{vL16}, s[4:7], s37 offen offset:{1024*j}'))
        return ops
    def do(o):
        if o[0] == 's': p.e(o[1])
        elif o[0] == 'dma': dt[o[1]] = p.vm(o[2])
        elif o[0] == 'h': ht[o[1]] = p.vm(o[2])
    for ci in range(NSLOT-1):
        for o in mem_ops(ci): do(o)
        if ci < NH//4 - 1:
            for o in h_ops(ci): do(o)
    p.e(f"""
v_lshrrev_b32 v1, 5, v0
v_bfe_u32 v2, v0, 4, 1
v_bfe_u32 v3, v0, 2, 2
v_and_b32 v4, 1, v0
v_bfe_u32 v5, v0, 1, 1
v_lshlrev_b32 v4, 5, v4
v_lshl_add_u32 v4, v2, 4, v4
v_lshl_add_u32 v4, v5, 3, v4
v_lshl_add_u32 v6, v1, 2, v3
v_lshl_add_u32 v7, v6, 8, v4
v_lshl_add_u32 v{vT}, v3, 6, v7
v_xor_b32 v{vT+1}, 64, v{vT}
v_xor_b32 v{vT+2}, 128, v{vT}
v_xor_b32 v{vT+3}, 192, v{vT}
v_lshl_add_u32 v{vTS}, v6, 6, v4
v_add_u32 v{vTS+1}, {3*SLOT}, v{vTS}
""")
    for t in range(4): p.e(f'v_add_u32 v{vT+4+t}, {3*SLOT}, v{vT+t}')
    rt = {}
    mq = []
    def rd(s, t):
        if s > 71 or (t == 4 and s >= 36): return
        ci = s // 4
        if t == 0 and s % 4 == 0:
            p.wait(vm=dt[ci]); p.e('s_barrier')
            if ci >= 1 and ci + NSLOT - 2 < 18: mq.extend(mem_ops(ci + NSLOT - 2))
        sl = ci % NSLOT
        reg, sl = (1, sl - 3) if sl >= 3 else (0, sl)
        for u in range(2):
            if t < 4: a, off = vT + 4*reg + t, sl*SLOT + (s % 4)*4096 + u*2048
            else: a, off = vTS + reg, sl*SLOT + 16384 + (s % 4)*1024 + u*512
            d = WF + 4*t + 2*u
            rt[(s, t)] = p.ds(f'ds_read_b64_tr_b16 v[{d}:{d+1}], v{a} offset:{off}')
    for t in range(5): rd(0, t)
    for s in range(72):
        nt = 5 if s < 36 else 4
        if s % 4 == 0:
            hc = s//4 + NH//4 - 1
            if hc < 18: mq.extend(h_ops(hc))
        for t in range(nt):
            p.wait(lgkm=rt[(s, t)], vm=ht[s])
            a = ACC + 16*t
            p.e(f'v_mfma_f32_32x32x16_bf16 {vr(a,16)}, {vr(WF+4*t,4)}, {vr(HF+4*(s % NH),4)}, {"0" if s == 0 else vr(a,16)}')
            rd(s+1, t)
            if mq:
                if mq[0][0] == 's': do(mq.pop(0))
                do(mq.pop(0))
    assert not mq
    p.e(f"""
s_lshl_b32 s3, s31, 6
s_add_u32 s3, s3, s{sT}
s_mul_i32 s3, s3, 20
s_mul_i32 s16, s{sCB}, 5
s_add_u32 s3, s3, s16
s_lshl_b32 s3, s3, 11
s_add_u32 s16, s3, {WS_DP}
s_add_u32 s17, s16, 4096
s_add_u32 s18, s16, 8192
s_nop 7
""")
    for t in (4, 0, 1, 2, 3):
        a = ACC + 16*t; q = HF + 8*t
        for k in range(8): p.e(f'v_cvt_pk_bf16_f32 v{q+k}, v{a+2*k}, v{a+2*k+1}')
        for hf in range(2):
            p.e(f'buffer_store_dwordx4 v[{q+4*hf}:{q+4*hf+3}], v{vL16}, s[4:7], s{16 + t//2} offen offset:{(t&1)*2048 + hf*1024}')
    p.label('K2B_done')
    p.e('s_endpgm')
    return p

K3_LDS = 73728
def gen_k3():
    p = Prog()
    OFR = 8
    DPR = 152
    ACC = 216
    XR = 232
    WF = 240
    vL16, vXO = 248, 249
    vD = 250
    vT = 1
    sW, sT, sCT = 20, 21, 22
    p.e(f"""
s_cmp_ge_u32 s2, 288
s_cbranch_scc1 K3_done
s_load_dwordx2 s[24:25], s[0:1], 72
s_load_dwordx2 s[26:27], s[0:1], 16
s_load_dwordx2 s[28:29], s[0:1], 0
s_load_dwordx2 s[30:31], s[0:1], 56
v_lshrrev_b32 v1, 6, v0
v_and_b32 v0, 63, v0
v_readfirstlane_b32 s{sW}, v1
s_and_b32 s3, s2, 31
s_lshr_b32 s23, s2, 5
s_and_b32 s32, s{sW}, 1
s_lshr_b32 s33, s{sW}, 1
s_lshl_b32 s{sT}, s3, 1
s_add_u32 s{sT}, s{sT}, s32
s_lshl_b32 s{sCT}, s23, 1
s_add_u32 s{sCT}, s{sCT}, s33
v_lshlrev_b32 v{vL16}, 4, v0
v_lshrrev_b32 v2, 3, v0
v_and_b32 v3, 7, v0
v_and_b32 v4, 2, v2
v_lshlrev_b32 v4, 1, v4
v_xor_b32 v3, v3, v4
s_mul_i32 s34, s{sW}, 24
v_add_u32 v2, s34, v2
v_mul_u32_u24 v2, 1152, v2
v_lshl_add_u32 v{vD}, v3, 4, v2
v_add_u32 v{vD+1}, {8*1152-1024}, v{vD}
v_add_u32 v{vD+2}, {2*(8*1152-1024)}, v{vD}
s_mul_i32 s35, s{sW}, 3072
s_lshl_b32 s36, s23, 7
""")
    p.e(f"""
s_cmp_ge_u32 s{sCT}, 9
s_cselect_b32 s37, 1, 0
s_add_u32 s37, s37, s{sCT}
s_mul_i32 s38, s{sT}, 20
s_add_u32 s38, s38, s37
s_lshl_b32 s38, s38, 11
s_add_u32 s38, s38, {WS_DP}
s_add_u32 s39, s38, {5*2048}
s_cmp_eq_u32 s37, 4
s_cselect_b32 s40, 1, 0
s_cmp_eq_u32 s37, 14
s_cselect_b32 s40, 1, s40
s_cmp_eq_u32 s40, 1
s_cselect_b32 s40, 0, 0x7ff00000
v_add_u32 v253, s40, v{vL16}
s_mul_i32 s41, s{sT}, {36*1024}
s_add_u32 s41, s41, {WS_OF}
v_and_b32 v2, 31, v0
v_lshrrev_b32 v3, 5, v0
v_mul_u32_u24 v2, 1152, v2
v_lshl_add_u32 v{vXO}, v3, 5, v2
s_mul_i32 s42, s{sT}, {32*1152}
s_lshl_b32 s43, s{sCT}, 6
s_add_u32 s42, s42, s43
s_waitcnt lgkmcnt(0)
""")
    srd(p, 4, 24, WS_SIZE)
    srd(p, 8, 26, 576*576*2)
    srd(p, 12, 28, 2048*576*2)
    srd(p, 16, 30, 2048*576*2)
    dt = {}; ot = {}
    for i in range(6):
        p.e(f's_add_u32 m0, s35, {i*12288}\ns_add_u32 s44, s36, {i*96*1152}')
        for j in range(3):
            dl = p.vm(f'buffer_load_dwordx4 v{vD+j}, s[8:11], s44 offen offset:{1024*j} lds')
    for s in range(36):
        if s % 4 == 0: p.e(f's_add_u32 s44, s41, {s*1024}')
        ot[s] = p.vm(f'buffer_load_dwordx4 {vr(OFR+4*s,4)}, v{vL16}, s[4:7], s44 offen offset:{(s%4)*1024}')
    p.e(f"""
v_lshrrev_b32 v6, 5, v0
v_bfe_u32 v7, v0, 4, 1
v_bfe_u32 v{ACC}, v0, 2, 2
v_and_b32 v{ACC+1}, 1, v0
v_bfe_u32 v{ACC+2}, v0, 1, 1
v_lshlrev_b32 v{ACC+1}, 5, v{ACC+1}
v_lshl_add_u32 v{ACC+1}, v7, 4, v{ACC+1}
v_lshl_add_u32 v{ACC+1}, v{ACC+2}, 3, v{ACC+1}
v_lshrrev_b32 v{ACC+2}, 1, v{ACC}
v_xor_b32 v{ACC+3}, s33, v{ACC+2}
v_lshl_add_u32 v{ACC+1}, v{ACC+3}, 6, v{ACC+1}
v_lshl_add_u32 v{ACC+3}, v6, 2, v{ACC}
v_lshl_add_u32 v1, v{ACC+3}, 7, v{ACC+1}
v_xor_b32 v2, 64, v1
v_add_u32 v3, {16*18*128}, v1
v_add_u32 v4, {16*18*128}, v2
v_mul_u32_u24 v{ACC+3}, 72, v6
v_mul_u32_u24 v{ACC+2}, 18, v{ACC+2}
v_and_b32 v{ACC}, 1, v{ACC}
v_add3_u32 v{ACC+3}, v{ACC+3}, v{ACC+2}, v{ACC}
v_add_u32 v{ACC+3}, 16, v{ACC+3}
v_lshl_add_u32 v5, v{ACC+3}, 7, v{ACC+1}
""")
    p.wait(vm=dl); p.e('s_barrier')
    rt = {}
    def rd(s):
        if s > 35: return
        for u in range(2):
            if s < 32: a, off = 1 + (s & 1) + 2*(s >> 4), ((s & 15)*18 + 8*u)*128
            else: a, off = 5, ((s-32)*144 + 36*u)*128
            d = WF + 4*(s & 1) + 2*u
            rt[s] = p.ds(f'ds_read_b64_tr_b16 v[{d}:{d+1}], v{a} offset:{off}')
    rd(0); rd(1)
    late = []
    for k in range(4):
        late.append(('s', f's_add_u32 s45, s38, {k*64*20*2048}\ns_add_u32 s46, s39, {k*64*20*2048}'))
        for b in range(2):
            for hf in range(2):
                d = DPR + 8*(2*k+b) + 4*hf
                late.append(('m', f'buffer_load_dwordx4 {vr(d,4)}, v{vL16 if b == 0 else 253}, s[4:7], s{45+b} offen offset:{hf*1024}'))
    for hf in range(2):
        late.append(('m', f'buffer_load_dwordx4 {vr(XR+4*hf,4)}, v{vXO}, s[12:15], s42 offen offset:{16*hf}'))
    for o in late:
        if o[0] == 's': p.e(o[1])
        else: last = p.vm(o[1])
    for s in range(36):
        p.wait(lgkm=rt[s], vm=ot[s])
        p.e(f'v_mfma_f32_32x32x16_bf16 {vr(ACC,16)}, {vr(WF+4*(s&1),4)}, {vr(OFR+4*s,4)}, {"0" if s == 0 else vr(ACC,16)}')
        rd(s+2)
    p.wait(vm=last)
    Dv = 8; Tv = 24
    for k in range(8):
        p.e(f'v_lshlrev_b32 v{Dv+2*k}, 16, v{DPR+k}\nv_and_b32 v{Dv+2*k+1}, 0xffff0000, v{DPR+k}')
    for b in range(1, 8):
        for k in range(8):
            p.e(f'v_lshlrev_b32 v{Tv+2*k}, 16, v{DPR+8*b+k}\nv_and_b32 v{Tv+2*k+1}, 0xffff0000, v{DPR+8*b+k}')
        for k in range(16): p.e(f'v_add_f32 v{Dv+k}, v{Dv+k}, v{Tv+k}')
    p.e(f's_mov_b32 s47, {hex(f2u(-LOG2E))}')
    for k in range(16): p.e(f'v_mul_f32 v{Tv+k}, s47, v{Dv+k}')
    for k in range(16): p.e(f'v_exp_f32 v{Tv+k}, v{Tv+k}')
    for k in range(16): p.e(f'v_add_f32 v{Tv+k}, 1.0, v{Tv+k}')
    for k in range(16): p.e(f'v_rcp_f32 v{Tv+k}, v{Tv+k}')
    for k in range(16): p.e(f'v_mul_f32 v{Dv+k}, v{Dv+k}, v{Tv+k}')
    for k in range(8):
        p.e(f'v_lshlrev_b32 v{Tv+2*k}, 16, v{XR+k}\nv_and_b32 v{Tv+2*k+1}, 0xffff0000, v{XR+k}')
    for k in range(16): p.e(f'v_fma_f32 v{Dv+k}, v{Dv+k}, v{ACC+k}, v{Tv+k}')
    for k in range(8): p.e(f'v_cvt_pk_bf16_f32 v{XR+k}, v{Dv+2*k}, v{Dv+2*k+1}')
    for hf in range(2):
        p.e(f'buffer_store_dwordx4 {vr(XR+4*hf,4)}, v{vXO}, s[16:19], s42 offen offset:{16*hf}')
    p.label('K3_done')
    p.e('s_endpgm')
    return p

if __name__ == '__main__':
    for nm, g in (('k2a', gen_k2a), ('k2b', gen_k2b), ('k3', gen_k3)):
        p = g()
        pr = check_hazards(p.lines, nm)
        print(nm, len(p.lines), 'lines;', len(pr), 'hazards')
        for x in pr[:20]: print(x)
```

```python
import sys
from k23 import *
NAME = 'recurrent_scan__softmax_full_mha__glu_gated_glu__prompt'
def build(out, force_fallback=False, prefetch=True):
    ks = [
        ('k0_kernel', gen_k0(prefetch), (256, 512, 0), 56, 56),
        ('k1_kernel', gen_k1(), (256, 256, K1_LDS), 512, 256),
        ('k2a_kernel', gen_k2a(force_fallback), (256, 512, K2A_LDS), 104, 104),
        ('k2b_kernel', gen_k2b(), (256, 256, K2B_LDS), 192, 192),
        ('k3_kernel', gen_k3(), (288, 256, K3_LDS), 256, 256),
    ]
    ref = open('cdna_kernels/' + NAME + '.s.ref').read().split('\n')
    head = [l for l in ref[:11]]
    txt = '\n'.join(head) + '\n'
    for n, p, (g, b, lds), _, _ in ks:
        txt += f'; @launch kernel={n} grid=({g},1,1) block=({b},1,1) lds={lds}\n'
    txt += '.amdgcn_target "amdgcn-amd-amdhsa--gfx950"\n.text\n'
    for n, p, _, _, _ in ks:
        pr = check_hazards(p.lines, n)
        for x in pr: print('HAZARD', x)
        txt += f'.globl {n}\n.p2align 8\n.type {n},@function\n{n}:\n' + p.text()
    txt += '.section .rodata,"a"\n'
    for n, p, _, vg, ac in ks:
        txt += '.p2align 6\n' + kd(n, vg, ac)
    open(out, 'w').write(txt)
if __name__ == '__main__':
    build('cdna_kernels/' + NAME + '.s')
    build('fb.s', force_fallback=True)
```

```python
import re

class Prog:
    def __init__(self):
        self.lines = []
        self.lgkm_issued = 0
        self.lgkm_done = 0
        self.vm_issued = 0
        self.vm_done = 0
    def e(self, s):
        for ln in s.strip('\n').split('\n'):
            ln = ln.strip()
            if ln:
                self.lines.append(ln)
    def label(self, name):
        self.lines.append(name + ':')
    def comment(self, s):
        self.lines.append('; ' + s)
    def ds(self, s):
        self.e(s); self.lgkm_issued += 1
        return self.lgkm_issued
    def vm(self, s):
        self.e(s); self.vm_issued += 1
        return self.vm_issued
    def wait(self, lgkm=None, vm=None):
        parts = []
        if vm is not None and vm > self.vm_done:
            n = self.vm_issued - vm
            if n <= 63:
                parts.append(f'vmcnt({n})'); self.vm_done = vm
            else:
                parts.append('vmcnt(63)'); self.vm_done = self.vm_issued - 63
                assert self.vm_done >= vm
        if lgkm is not None and lgkm > self.lgkm_done:
            n = self.lgkm_issued - lgkm
            if n > 15: n = 15
            parts.append(f'lgkmcnt({n})'); self.lgkm_done = self.lgkm_issued - n
        if parts:
            self.e('s_waitcnt ' + ' '.join(parts))
            return True
        return False
    STAMPS = False
    def stamp(self, name, real=False):
        if not Prog.STAMPS: return
        if not hasattr(self, 'stamps'): self.stamps = []
        i = len(self.stamps); self.stamps.append(name)
        r = 64 + 2*i
        assert r + 1 < 100
        self.e(f'{"s_memrealtime" if real else "s_memtime"} s[{r}:{r+1}]')
    def dump_stamps(self, kidx, wavereg, base, srd='s[4:7]', v=0):
        if not Prog.STAMPS: return
        self.stamp('end'); self.stamp('rend', True)
        self.e('s_waitcnt lgkmcnt(0) vmcnt(0)\ns_mov_b64 exec, -1')
        self.stamp('end2'); self.e('s_waitcnt lgkmcnt(0)')
        for i in range(len(self.stamps)):
            self.e(f'v_writelane_b32 v{v}, s{64+2*i}, {i}')
        self.e(f'''s_lshl_b32 s100, s2, 3
s_add_u32 s100, s100, s{wavereg}
s_lshl_b32 s100, s100, 8
s_add_u32 s100, s100, {base + kidx*(1<<20)}
v_mbcnt_lo_u32_b32 v{v+1}, -1, 0
v_mbcnt_hi_u32_b32 v{v+1}, -1, v{v+1}
v_lshlrev_b32 v{v+1}, 2, v{v+1}
buffer_store_dword v{v}, v{v+1}, {srd}, s100 offen''')
    def reset_counts(self):
        self.lgkm_issued = self.lgkm_done = self.vm_issued = self.vm_done = 0
    def text(self):
        out = []
        for ln in self.lines:
            if ln.endswith(':') or ln.startswith('.'):
                out.append(ln)
            else:
                out.append('    ' + ln)
        return '\n'.join(out) + '\n'

def vr(base, n=1, k='v'):
    return f'{k}{base}' if n == 1 else f'{k}[{base}:{base+n-1}]'

_reg = re.compile(r'\b([vas])(\d+)\b|\b([vas])\[(\d+):(\d+)\]')
def regs_of(op):
    out = set()
    for m in _reg.finditer(op):
        if m.group(1):
            out.add((m.group(1), int(m.group(2))))
        else:
            for i in range(int(m.group(4)), int(m.group(5)) + 1):
                out.add((m.group(3), i))
    if re.search(r'\bvcc\b', op): out.add(('x', 'vcc'))
    if re.search(r'\bexec\b', op): out.add(('x', 'exec'))
    if re.search(r'\bm0\b', op): out.add(('x', 'm0'))
    return out

TRANS = ('v_exp_', 'v_log_', 'v_rcp_', 'v_rsq_', 'v_sqrt_', 'v_sin_', 'v_cos_')
def parse(ln):
    ln = ln.split(';')[0].strip()
    if not ln or ln.endswith(':') or ln.startswith('.'):
        return None
    sp = ln.split(None, 1)
    op = sp[0]; rest = sp[1] if len(sp) > 1 else ''
    ops = [o.strip() for o in re.split(r',(?![^\[]*\])', rest)] if rest else []
    d = dict(op=op, ops=ops, text=ln, dst=set(), src=set(), kind='other', states=1)
    if op == 's_nop':
        d['states'] = int(ops[0], 0) + 1; d['kind'] = 'nop'
    elif op.startswith('v_mfma'):
        d['kind'] = 'mfma'
        d['dst'] = regs_of(ops[0]); d['A'] = regs_of(ops[1]); d['B'] = regs_of(ops[2]); d['C'] = regs_of(ops[3])
        d['src'] = d['A'] | d['B'] | d['C']
        d['passes'] = 8 if '32x32' in op else 4
    elif op.startswith('v_'):
        d['kind'] = 'valu'
        d['trans'] = op.startswith(TRANS)
        d['dst'] = regs_of(ops[0])
        nd = 1
        if op.startswith(('v_add_co', 'v_addc_co', 'v_sub_co', 'v_subb_co', 'v_div_scale', 'v_mad_u64')):
            d['dst'] |= regs_of(ops[1]); nd = 2
        for o in ops[nd:]:
            d['src'] |= regs_of(o)
        if op.startswith(('v_fmac', 'v_dot2c', 'v_permlane', 'v_writelane')) or 'dpp' in op or 'row_' in ln or 'quad_perm' in ln:
            d['src'] |= regs_of(ops[0])
        if op.startswith('v_permlane') and 'swap' in op:
            d['dst'] |= regs_of(ops[1])
        if op.startswith('v_cmpx'):
            d['dst'].add(('x', 'exec'))
        d['dpp'] = ('row_' in ln or 'quad_perm' in ln or 'wave_' in ln)
    elif op.startswith('ds_'):
        d['kind'] = 'ds'
        if 'read' in op or 'permute' in op or 'swizzle' in op or '_rtn' in op:
            d['dst'] = regs_of(ops[0])
            for o in ops[1:]: d['src'] |= regs_of(o)
        else:
            for o in ops: d['src'] |= regs_of(o)
    elif op.startswith(('buffer_', 'global_', 'flat_')):
        d['kind'] = 'vmem'
        islds = bool(re.search(r'\blds\b', ln)) or '_lds_' in op
        d['lds'] = islds
        if 'load' in op and not islds:
            d['dst'] = regs_of(ops[0])
            for o in ops[1:]: d['src'] |= regs_of(o)
        else:
            for o in ops: d['src'] |= regs_of(o)
            if 'atomic' in op and 'sc0' in ln: d['dst'] = regs_of(ops[0])
        if islds: d['src'].add(('x', 'm0'))
        d['widestore'] = ('store' in op and ('x4' in op or 'x3' in op))
        if d['widestore']:
            d['data'] = regs_of(ops[0] if op.startswith('buffer') else ops[1])
    elif op.startswith('s_'):
        d['kind'] = 'salu'
        if op.startswith(('s_waitcnt', 's_barrier', 's_branch', 's_cbranch', 's_endpgm', 's_setprio', 's_sleep', 's_cmp', 's_setpc')):
            for o in ops: d['src'] |= regs_of(o)
        else:
            if ops: d['dst'] = regs_of(ops[0])
            for o in ops[1:]: d['src'] |= regs_of(o)
            if 'saveexec' in op: d['dst'].add(('x', 'exec'))
    return d

def check_hazards(lines, name=''):
    ins = [p for p in (parse(l) for l in lines) if p]
    probs = []
    W = 24
    for i, c in enumerate(ins):
        dist = 0
        for j in range(i - 1, max(-1, i - W - 1), -1):
            p = ins[j]
            def need(n, why):
                if dist < n:
                    probs.append(f'{name}: need {n} have {dist} [{why}]: "{p["text"]}" -> "{c["text"]}"')
            vec = lambda s: {r for r in s if r[0] in 'va'}
            if p['kind'] == 'mfma':
                n_rw = {8: 12, 4: 8}[p['passes']]
                if c['kind'] == 'mfma':
                    if p['dst'] & (c['A'] | c['B']): need(n_rw, 'mfma D->A/B')
                    if p['dst'] & c['C']:
                        if not (p['dst'] == c['C'] and p['passes'] == c['passes']): need({8: 10, 4: 6}[p['passes']], 'mfma D->C overlap')
                    elif p['dst'] & c['dst']:
                        need({8: 10, 4: 6}[p['passes']], 'mfma WAW D')
                elif c['kind'] in ('valu', 'ds', 'vmem'):
                    if p['dst'] & (c['src'] | c['dst']): need(n_rw, 'mfma D->valu/mem')
                    if c['kind'] == 'valu' and (p['C'] & c['dst']): need({8: 7, 4: 3}[p['passes']], 'mfma C WAR')
            if p['kind'] == 'valu':
                if c['kind'] == 'mfma' and (vec(p['dst']) & c['src']): need(2, 'valu->mfma')
                if c['kind'] == 'mfma' and ('x', 'exec') in p['dst']: need(4, 'exec->mfma')
                if c['kind'] == 'valu':
                    if p.get('trans') and not c.get('trans') and (p['dst'] & c['src']): need(1, 'trans->valu')
                    if c.get('dpp') and (vec(p['dst']) & c['src']): need(2, 'valu->dpp')
                    if c.get('dpp') and ('x', 'exec') in p['dst']: need(5, 'exec->dpp')
                    if c['op'].startswith(('v_readlane', 'v_readfirstlane')) and (vec(p['dst']) & c['src']): need(1, 'valu->readlane')
                    if c['op'].startswith('v_permlane') and (vec(p['dst']) & c['src']): need(2, 'valu->permlane')
                    sd = {r for r in p['dst'] if r[0] == 's' or r == ('x', 'vcc')}
                    if sd & c['src']:
                        need(4 if c['op'].startswith(('v_readlane', 'v_writelane', 'v_div_fmas')) else 2, 'valu sgpr->valu')
                if c['kind'] == 'vmem':
                    sd = {r for r in p['dst'] if r[0] == 's'}
                    if sd & c['src']: need(5, 'valu sgpr->vmem')
            if p['kind'] == 'salu' and ('x', 'm0') in p['dst'] and c['kind'] == 'vmem' and c.get('lds'): need(1, 'm0->lds dma')
            if p['kind'] == 'vmem' and p.get('widestore') and (p['data'] & c['dst']):
                need(2 if c['kind'] == 'valu' else 1, 'store data WAR')
            dist += p['states']
            if dist >= 20: break
    return probs
```

```python
from asmlib import *
import math, struct

def f2u(x): return struct.unpack('<I', struct.pack('<f', x))[0]
LOG2E = 1.4426950408889634
CQ = (18 ** -0.5) * LOG2E

WS_XN = 0
WS_QF = WS_XN + 64*36*1024
WS_KV = WS_QF + 32*64*1024
WS_H  = WS_KV + 32*64*3072
WS_OF = WS_H + 64*288*1024
WS_DP = WS_OF + 64*36*1024
WS_END = WS_DP + 4*64*20*2048
WS_SIZE = 268435456
WS_ST = 128*1024*1024

def srd(p, d, ptr, nbytes):
    p.e(f's_mov_b32 s{d}, s{ptr}\ns_mov_b32 s{d+1}, s{ptr+1}\ns_mov_b32 s{d+2}, {nbytes}\ns_mov_b32 s{d+3}, 0x20000')

def kd(name, vgpr, acc, sgpr=102):
    return f""".amdhsa_kernel {name}
  .amdhsa_next_free_vgpr {vgpr}
  .amdhsa_next_free_sgpr {sgpr}
  .amdhsa_accum_offset {acc}
  .amdhsa_group_segment_fixed_size 0
  .amdhsa_kernarg_size 80
  .amdhsa_user_sgpr_count 2
  .amdhsa_user_sgpr_kernarg_segment_ptr 1
  .amdhsa_system_sgpr_workgroup_id_x 1
.end_amdhsa_kernel
"""

def gen_k0(prefetch=True, codepf=True):
    p = Prog()
    p.e("""
s_cmp_ge_u32 s2, 256
s_cbranch_scc1 K0_done
s_load_dwordx2 s[4:5], s[0:1], 0
s_load_dwordx2 s[6:7], s[0:1], 72
s_load_dwordx2 s[24:25], s[0:1], 8
s_load_dwordx4 s[28:31], s[0:1], 32
v_and_b32 v1, 63, v0
v_lshrrev_b32 v2, 6, v0
s_lshl_b32 s3, s2, 3
v_add_u32 v2, s3, v2
v_mul_u32_u24 v3, 1152, v2
v_lshl_add_u32 v3, v1, 5, v3
v_cmp_gt_u32 vcc, 36, v1
v_mov_b32 v30, 0x7ff00000
v_lshrrev_b32 v31, 5, v2
v_cndmask_b32 v3, v30, v3, vcc
v_mul_u32_u24 v31, 36, v31
v_add_u32 v31, v31, v1
v_lshlrev_b32 v31, 10, v31
v_and_b32 v29, 31, v2
v_lshl_add_u32 v31, v29, 4, v31
v_cndmask_b32 v31, v30, v31, vcc
s_waitcnt lgkmcnt(0)
""")
    srd(p, 8, 4, 2048*576*2)
    srd(p, 12, 6, WS_QF)
    p.e("""
buffer_load_dwordx4 v[4:7], v3, s[8:11], 0 offen
buffer_load_dwordx4 v[8:11], v3, s[8:11], 0 offen offset:16
""")
    if prefetch:
        srd(p, 32, 28, 576*4608*2)
        srd(p, 36, 30, 576*4608*2)
        srd(p, 40, 24, 576*1728*2)
        p.e("""
s_and_b32 s20, s2, 7
s_lshr_b32 s21, s2, 3
s_lshl_b32 s21, s21, 9
v_add_u32 v32, s21, v0
v_lshrrev_b32 v33, 4, v32
v_and_b32 v34, 15, v32
s_mul_i32 s22, s20, 1152
s_mul_i32 s23, s20, 144
v_mul_u32_u24 v35, 9216, v33
v_lshl_add_u32 v35, v34, 7, v35
v_add_u32 v35, s22, v35
v_cmp_gt_u32 vcc, 9, v34
v_mul_u32_u24 v36, 3456, v33
v_mul_u32_u24 v37, 11, v34
v_cndmask_b32 v35, v30, v35, vcc
v_lshrrev_b32 v37, 5, v37
v_mul_u32_u24 v38, 3, v37
v_sub_u32 v38, v34, v38
v_mul_u32_u24 v37, 1152, v37
v_mul_u32_u24 v38, 76, v38
v_add3_u32 v36, v36, v37, v38
v_add_u32 v36, s23, v36
v_cndmask_b32 v36, v30, v36, vcc
v_cmp_gt_u32 vcc, 36, v1
""")
    if codepf:
        p.e('''
s_getpc_b64 s[44:45]
K0_pc:
s_add_u32 s44, s44, CODE_BEGIN-K0_pc
s_addc_u32 s45, s45, 0
s_mov_b32 s46, CODE_END-CODE_BEGIN
s_mov_b32 s47, 0x20000
s_cmp_lt_u32 s2, 8
s_cselect_b32 s46, s46, 0
v_lshlrev_b32 v52, 7, v0
buffer_load_dword v53, v52, s[44:47], 0 offen
''')
    p.e("s_waitcnt vmcnt(%d)" % (1 if codepf else 0))
    if prefetch:
        p.e("""
buffer_load_dword v40, v35, s[32:35], 0 offen
buffer_load_dword v41, v35, s[36:39], 0 offen
buffer_load_dword v42, v36, s[40:43], 0 offen
""")
    for i in range(8):
        p.e(f'v_lshlrev_b32 v{12+2*i}, 16, v{4+i}\nv_and_b32 v{13+2*i}, 0xffff0000, v{4+i}')
    def reduce(r):
        p.e(f"""
s_nop 1
v_add_f32_dpp v{r}, v{r}, v{r} quad_perm:[1,0,3,2] row_mask:0xf bank_mask:0xf
s_nop 1
v_add_f32_dpp v{r}, v{r}, v{r} quad_perm:[2,3,0,1] row_mask:0xf bank_mask:0xf
s_nop 1
v_add_f32_dpp v{r}, v{r}, v{r} row_half_mirror row_mask:0xf bank_mask:0xf
s_nop 1
v_add_f32_dpp v{r}, v{r}, v{r} row_mirror row_mask:0xf bank_mask:0xf
s_nop 1
v_readlane_b32 s16, v{r}, 0
v_readlane_b32 s17, v{r}, 16
v_readlane_b32 s18, v{r}, 32
s_nop 1
v_mov_b32 v{r}, s16
v_add_f32 v{r}, s17, v{r}
v_add_f32 v{r}, s18, v{r}
v_mul_f32 v{r}, {hex(f2u(1.0/576))}, v{r}
""")
    p.e('v_add_f32 v4, v12, v13\nv_add_f32 v5, v14, v15\nv_add_f32 v6, v16, v17\nv_add_f32 v7, v18, v19')
    p.e('v_add_f32 v8, v20, v21\nv_add_f32 v9, v22, v23\nv_add_f32 v10, v24, v25\nv_add_f32 v11, v26, v27')
    p.e('v_add_f32 v4, v4, v5\nv_add_f32 v6, v6, v7\nv_add_f32 v8, v8, v9\nv_add_f32 v10, v10, v11')
    p.e('v_add_f32 v4, v4, v6\nv_add_f32 v8, v8, v10\nv_add_f32 v4, v4, v8')
    reduce(4)
    p.e('v_mov_b32 v5, 0\nv_mov_b32 v6, 0')
    for i in range(16):
        t = 8 + (i & 3)
        p.e(f'v_sub_f32 v{t}, v{12+i}, v4')
        p.e(f'v_fmac_f32 v{5 + (i & 1)}, v{t}, v{t}')
    p.e('v_add_f32 v5, v5, v6\nv_cndmask_b32 v5, 0, v5, vcc')
    reduce(5)
    p.e(f"""
v_cvt_pk_bf16_f32 v4, v4, v5
v_and_b32 v5, 0xffff0000, v4
v_lshlrev_b32 v4, 16, v4
v_add_f32 v5, {hex(f2u(1e-5))}, v5
v_cvt_pk_bf16_f32 v5, v5, v5
v_lshlrev_b32 v5, 16, v5
v_sqrt_f32 v5, v5
s_nop 0
v_cvt_pk_bf16_f32 v5, v5, v5
v_lshlrev_b32 v5, 16, v5
v_rcp_f32 v5, v5
""")
    for i in range(16):
        p.e(f'v_sub_f32 v{12+i}, v{12+i}, v4')
    for i in range(8):
        p.e(f'v_cvt_pk_bf16_f32 v{44+i}, v{12+2*i}, v{13+2*i}')
    for i in range(8):
        p.e(f'v_lshlrev_b32 v{12+2*i}, 16, v{44+i}\nv_and_b32 v{13+2*i}, 0xffff0000, v{44+i}')
    for i in range(16):
        p.e(f'v_mul_f32 v{12+i}, v{12+i}, v5')
    for i in range(8):
        p.e(f'v_cvt_pk_bf16_f32 v{44+i}, v{12+2*i}, v{13+2*i}')
    p.e("""
buffer_store_dwordx4 v[44:47], v31, s[12:15], 0 offen
buffer_store_dwordx4 v[48:51], v31, s[12:15], 0 offen offset:512
""")
    p.label('K0_done')
    p.e('s_endpgm')
    return p

B0 = 0
B1 = 82944
K1_LDS = B1 + 73728

def gen_k1(store_flags=''):
    p = Prog()
    ACC = [0, 64]
    P_, Q_ = 8, 72
    S_ = 136
    FB = 168
    XV = 192
    T_ = 224
    vL16 = 232
    vDF, vDM, vDQ = 233, 236, 239
    vTR = 242
    vTM, vTA, vTB = 248, 249, 250
    vSC, vAD = 251, 252
    vKV0, vKV1 = 253, 254
    def X(tt, s):
        n = tt*36 + s
        return f'a[{4*n}:{4*n+3}]' if n < 64 else vr(XV + 4*(n-64), 4)
    sW, sC, sR, sQ = 20, 21, 22, 23
    sCol, sColM, sW3, sSo = 25, 26, 27, 30
    sXN, sH0, sHM, sQF, sKV, sT = 31, 32, 33, 34, 35, 28
    sQS = 40
    sMM = 48
    sNL, sCQ = 50, 51
    p.e(f"""
s_cmp_ge_u32 s2, 256
s_cbranch_scc1 K1_done
""")
    p.stamp('start'); p.stamp('rstart', True)
    p.e(f"""
s_load_dwordx2 s[52:53], s[0:1], 72
s_load_dwordx4 s[56:59], s[0:1], 32
s_load_dwordx2 s[54:55], s[0:1], 8
v_lshrrev_b32 v1, 6, v0
v_and_b32 v0, 63, v0
v_readfirstlane_b32 s{sW}, v1
s_and_b32 s{sQ}, s2, 7
s_lshr_b32 s3, s2, 3
s_and_b32 s24, s3, 3
s_lshr_b32 s{sR}, s3, 2
s_lshl_b32 s{sC}, s{sQ}, 2
s_add_u32 s{sC}, s{sC}, s24
s_mul_i32 s{sCol}, s{sQ}, 1152
s_lshl_b32 s3, s24, 5
s_add_u32 s{sColM}, s{sCol}, s3
s_add_u32 s{sColM}, s{sColM}, 1024
s_lshl_b32 s3, s24, 8
s_add_u32 s{sCol}, s{sCol}, s3
s_mul_i32 s{sW3}, s{sW}, 3072
s_lshl_b32 s{sT}, s{sR}, 3
s_lshl_b32 s3, s{sW}, 1
s_add_u32 s{sT}, s{sT}, s3
s_mul_i32 s{sXN}, s{sT}, {36*1024}
v_lshlrev_b32 v{vL16}, 4, v0
""")
    p.e(f"""
v_lshrrev_b32 v2, 3, v0
v_and_b32 v3, 7, v0
v_and_b32 v4, 2, v2
v_lshlrev_b32 v4, 1, v4
v_xor_b32 v3, v3, v4
s_mul_i32 s3, s{sW}, 24
v_add_u32 v2, s3, v2
v_mul_u32_u24 v2, 9216, v2
v_lshl_add_u32 v{vDF}, v3, 4, v2
v_add_u32 v{vDF+1}, {8*9216-1024}, v{vDF}
v_add_u32 v{vDF+2}, {2*(8*9216-1024)}, v{vDF}
s_waitcnt lgkmcnt(0)
""")
    srd(p, 4, 52, WS_SIZE)
    srd(p, 8, 56, 576*4608*2)
    srd(p, 12, 58, 576*4608*2)
    srd(p, 16, 54, 576*1728*2)

    def dma_full(g_srd, colreg, coladd, buf, i):
        ops = [('s', f's_add_u32 m0, s{sW3}, {buf + i*12288}\ns_add_u32 s{sSo}, s{colreg}, {coladd + i*96*9216}')]
        for j in range(3):
            ops.append(('dma', f'buffer_load_dwordx4 v{vDF+j}, s[{g_srd}:{g_srd+3}], s{sSo} offen offset:{1024*j} lds'))
        return ops
    def xload(tt, s):
        n = tt*36 + s
        return n
    xtok = {}
    dtok = {}
    def emit_xchunk(j):
        ops = []
        for half in range(2):
            s0 = 6*j + 3*half
            ops.append(('s', f's_add_u32 s60, s{sXN}, {WS_XN + s0*1024}\ns_add_u32 s61, s{sXN}, {WS_XN + (36+s0)*1024}'))
            for s in range(s0, s0+3):
                for tt in range(2):
                    ops.append(('x', (tt, s), f'buffer_load_dwordx4 {X(tt,s)}, v{vL16}, s[4:7], s{60+tt} offen offset:{(s-s0)*1024}'))
        return ops
    def do_op(op):
        if op[0] == 's': p.e(op[1])
        elif op[0] == 'dma': dtok['last'] = p.vm(op[1])
        elif op[0] == 'x': xtok[op[1]] = p.vm(op[2])
        elif op[0] == 'st': p.vm(op[1])
        elif op[0] == 'v': p.e(op[1])
        elif op[0] == 'mark': dtok[op[1]] = dtok['last']
    pro = []
    for j in range(6):
        pro.append(dma_full(8, sCol, 0, B0, j) + [('mark', ('G0', j))] + emit_xchunk(j))
    for j in range(4):
        for op in pro[j]: do_op(op)
    p.e(f"""
v_lshrrev_b32 v1, 4, v0
v_and_b32 v2, 15, v0
v_lshrrev_b32 v3, 1, v1
v_and_b32 v4, 1, v1
v_lshrrev_b32 v5, 2, v2
v_and_b32 v6, 3, v2
v_lshl_add_u32 v7, v3, 3, v5
""")
    p.e(f"""
v_lshrrev_b32 v{T_}, 1, v5
v_lshlrev_b32 v{T_}, 6, v{T_}
v_lshl_add_u32 v{T_}, v7, 7, v{T_}
v_lshl_add_u32 v{T_}, v4, 5, v{T_}
v_lshl_add_u32 v{vTR}, v6, 3, v{T_}
v_xor_b32 v{vTR+1}, 64, v{vTR}
v_add_u32 v{vTR+2}, 0x10000, v{vTR}
v_add_u32 v{vTR+3}, 0x10000, v{vTR+1}
v_add_u32 v{vTR+4}, 0x20000, v{vTR}
v_add_u32 v{vTR+5}, 0x20000, v{vTR+1}
v_mul_u32_u24 v{T_}, 18560, v4
v_lshl_add_u32 v{T_}, v7, 5, v{T_}
v_lshl_add_u32 v{T_}, v6, 3, v{T_}
v_add_u32 v{vTM}, {B1}, v{T_}
v_mul_u32_u24 v{T_}, 48, v7
v_mul_u32_u24 v{T_+1}, 27648, v4
v_lshl_add_u32 v{T_+2}, v6, 3, v{T_}
v_add_u32 v{vTA}, v{T_+1}, v{T_+2}
v_add_u32 v{T_+2}, {2*27648}, v{T_+2}
v_add_u32 v{T_+3}, 2, v6
v_mul_u32_u24 v{T_+4}, 11, v{T_+3}
v_lshrrev_b32 v{T_+4}, 5, v{T_+4}
v_mul_u32_u24 v{T_+4}, 3, v{T_+4}
v_sub_u32 v{T_+3}, v{T_+3}, v{T_+4}
v_mul_u32_u24 v{T_+3}, 27648, v{T_+3}
v_add3_u32 v{T_+3}, v{T_+3}, v{T_}, 32
v_cmp_eq_u32 vcc, 1, v4
s_nop 1
v_cndmask_b32 v{vTB}, v{T_+2}, v{T_+3}, vcc
""")
    assert B0 == 0
    p.e(f"""
v_lshrrev_b32 v{T_}, 1, v0
s_and_b32 s3, s{sW}, 1
s_mul_i32 s62, s3, 96
v_add_u32 v{T_}, s62, v{T_}
v_mul_u32_u24 v{T_}, 9216, v{T_}
v_and_b32 v{T_+1}, 1, v0
v_lshl_add_u32 v{vDM}, v{T_+1}, 4, v{T_}
v_add_u32 v{vDM+1}, {32*9216-1024}, v{vDM}
v_add_u32 v{vDM+2}, {2*(32*9216-1024)}, v{vDM}
s_mul_i32 s{sMM}, s3, 3072
s_lshr_b32 s3, s{sW}, 1
s_mul_i32 s62, s3, 18560
s_add_u32 s{sMM}, s{sMM}, s62
s_cmp_eq_u32 s3, 0
s_cselect_b32 s36, s56, s58
s_cselect_b32 s37, s57, s59
s_mov_b32 s38, {576*4608*2}
s_mov_b32 s39, 0x20000
""")
    for j in range(3):
        p.e(f"""
v_add_u32 v{T_}, {64*j}, v0
v_mul_u32_u24 v{T_+1}, 171, v{T_}
v_lshrrev_b32 v{T_+1}, 9, v{T_+1}
v_mul_u32_u24 v{T_+2}, 3, v{T_+1}
v_sub_u32 v{T_+2}, v{T_}, v{T_+2}
v_mul_u32_u24 v{T_+1}, 3456, v{T_+1}
v_lshl_add_u32 v{vDQ+j}, v{T_+2}, 4, v{T_+1}
""")
        if j: p.e(f'v_subrev_u32 v{vDQ+j}, {1024*j}, v{vDQ+j}')
    p.e(f's_mul_i32 s63, s{sC}, 36')
    for i in range(7):
        p.e(f"""
s_add_u32 s3, s{sW}, {4*i}
s_min_u32 s3, s3, 26
s_mul_i32 s62, s3, 57
s_lshr_b32 s62, s62, 9
s_mul_i32 s{sQS+i}, s3, {64*3456}
s_mul_i32 s62, s62, {9*64*3456 - 1152}
s_sub_u32 s{sQS+i}, s{sQS+i}, s62
s_add_u32 s{sQS+i}, s{sQS+i}, s63
""")
    p.e(f's_mul_i32 s{sQS+7}, s3, 3072')
    p.e(f"""
s_mul_i32 s{sH0}, s{sT}, {288*1024}
s_lshl_b32 s3, s{sColM}, 5
s_add_u32 s{sHM}, s{sH0}, s3
s_add_u32 s{sHM}, s{sHM}, {WS_H}
s_lshl_b32 s3, s{sCol}, 5
s_add_u32 s{sH0}, s{sH0}, s3
s_add_u32 s{sH0}, s{sH0}, {WS_H}
s_lshl_b32 s3, s{sC}, 6
s_add_u32 s3, s3, s{sT}
s_lshl_b32 s{sQF}, s3, 10
s_add_u32 s{sQF}, s{sQF}, {WS_QF}
s_mul_i32 s{sKV}, s3, 3072
s_add_u32 s{sKV}, s{sKV}, {WS_KV}
s_mov_b32 s{sNL}, {hex(f2u(-LOG2E))}
s_mov_b32 s{sCQ}, {hex(f2u(CQ))}
""")
    p.e(f"""
v_and_b32 v{T_}, 31, v0
v_mov_b32 v{vSC}, 1.0
v_mov_b32 v{vAD}, 0
v_mov_b32 v{T_+1}, s{sCQ}
v_and_b32 v{T_+2}, 30, v{T_}
v_cmp_eq_u32 vcc, 20, v{T_+2}
v_and_b32 v{T_+2}, 27, v{T_}
s_nop 0
v_cndmask_b32 v{vSC}, v{vSC}, v{T_+1}, vcc
v_cmp_eq_u32 vcc, 18, v{T_+2}
v_mov_b32 v{T_+1}, 1.0
s_nop 0
v_cndmask_b32 v{vAD}, v{vAD}, v{T_+1}, vcc
v_mov_b32 v{T_+1}, 0
s_nop 0
v_cndmask_b32 v{vSC}, v{vSC}, v{T_+1}, vcc
""")
    for u in range(2):
        p.e(f"""
v_lshl_add_u32 v{T_+1}, v3, 1, v{T_}
v_add_u32 v{T_+1}, {4*u}, v{T_+1}
v_and_b32 v{T_+1}, 7, v{T_+1}
v_or_b32 v{T_+1}, 24, v{T_+1}
v_cmp_le_u32 vcc, 24, v{T_}
s_nop 1
v_cndmask_b32 v{T_+1}, v{T_}, v{T_+1}, vcc
v_lshl_add_u32 v{T_+1}, v3, 5, v{T_+1}
v_lshlrev_b32 v{vKV0+u}, 4, v{T_+1}
""")

    def rd_full(buf):
        def f(s, fr, u):
            off = buf + s*2048 + u*512
            return f'v{vTR + 2*(off >> 16) + fr}', off & 0xffff
        return f
    steps = []
    def add_group(name, kind, buf, acc):
        if kind == 'full' or kind == 'qkv':
            for s in range(36):
                if kind == 'full':
                    rd = [rd_full(buf)(s, fr, u) for fr in range(2) for u in range(2)]
                else:
                    rd = [(f'v{vTA if fr == 0 else vTB}', s*768 + u*192) for fr in range(2) for u in range(2)]
                mf = [(acc + 32*fr + 16*tt, fr, (kind == 'qkv' and fr == 1), (tt, s), s == 0) for fr in range(2) for tt in range(2)]
                steps.append(dict(g=name, i=s, rd=rd, mf=mf))
        else:
            for s2 in range(18):
                rd = [(f'v{vTM}', (2*s2+fr)*512 + u*128) for fr in range(2) for u in range(2)]
                mf = [(acc + 16*tt, fr, False, (tt, 2*s2+fr), (2*s2+fr) == 0) for fr in range(2) for tt in range(2)]
                steps.append(dict(g=name, i=s2, rd=rd, mf=mf))
    add_group('G0', 'full', B0, P_)
    add_group('U0', 'full', B1, Q_)
    add_group('G1', 'full', B0, P_)
    add_group('U1', 'full', B1, Q_)
    add_group('QKV', 'qkv', B0, P_)
    add_group('M', 'mix', B1, Q_)
    order = ['G0', 'U0', 'G1', 'U1', 'QKV', 'M']

    def V(t, c=4): return ('v', t, c)
    def epi_G(acc):
        ops = []
        for tile in range(4):
            for b in range(4):
                r = acc + 16*tile + 4*b
                ops += [V(f'v_mul_f32 v{r+k}, s{sNL}, v{r+k}') for k in range(4)]
                ops += [V(f'v_exp_f32 v{r+k}, v{r+k}', 8) for k in range(4)]
                ops += [V(f'v_add_f32 v{r+k}, 1.0, v{r+k}') for k in range(4)]
                ops += [V(f'v_cvt_pk_bf16_f32 v{S_ + 8*tile + 2*b + k}, v{r+2*k}, v{r+2*k+1}') for k in range(2)]
        return ops
    def epi_U(acc, hadd):
        ops = [('s', f's_add_u32 s60, s{sH0}, {hadd}\ns_add_u32 s61, s{sH0}, {hadd + 288*1024}')]
        for tile in range(4):
            fr, tt = tile >> 1, tile & 1
            for b in range(4):
                r = acc + 16*tile + 4*b
                sreg = S_ + 8*tile + 2*b
                t = T_ + 4*(b & 1)
                ops += [V(f'v_lshlrev_b32 v{t}, 16, v{sreg}'), V(f'v_and_b32 v{t+1}, 0xffff0000, v{sreg}'),
                        V(f'v_lshlrev_b32 v{t+2}, 16, v{sreg+1}'), V(f'v_and_b32 v{t+3}, 0xffff0000, v{sreg+1}')]
                ops += [V(f'v_rcp_f32 v{t+k}, v{t+k}', 8) for k in range(4)]
                ops += [V(f'v_mul_f32 v{r+k}, v{r+k}, v{t+k}') for k in range(4)]
                ops += [V(f'v_cvt_pk_bf16_f32 v{sreg+k}, v{r+2*k}, v{r+2*k+1}') for k in range(2)]
                if b & 1:
                    q = S_ + 8*tile + 4*(b >> 1)
                    ops.append(('st', f'buffer_store_dwordx4 v[{q}:{q+3}], v{vL16}, s[4:7], s{60+tt} offen offset:{(2*fr + (b>>1))*1024}{store_flags}'))
        return ops
    def epi_QKV(acc):
        ops = [('s', f's_add_u32 s60, s{sQF}, 1024\ns_add_u32 s61, s{sKV}, 3072')]
        for tt in range(2):
            r = acc + 16*tt
            q = S_ + 8*tt
            ops += [V(f'v_mul_f32 v{r+k}, s{sCQ}, v{r+k}') for k in range(8)]
            ops += [V(f'v_cvt_pk_bf16_f32 v{q+k}, v{r+2*k}, v{r+2*k+1}') for k in range(8)]
            ops.append(('st', f'buffer_store_dwordx4 v[{q}:{q+3}], v{vL16}, s[4:7], s{sQF if tt == 0 else 60} offen{store_flags}'))
            ops.append(('st', f'buffer_store_dwordx4 v[{q+4}:{q+7}], v{vL16}, s[4:7], s{sKV if tt == 0 else 61} offen{store_flags}'))
        for tt in range(2):
            r = acc + 32 + 16*tt
            q = S_ + 16 + 8*tt
            ops += [V(f'v_fma_f32 v{r+k}, v{r+k}, v{vSC}, v{vAD}') for k in range(16)]
            ops += [V(f'v_cvt_pk_bf16_f32 v{q+k}, v{r+2*k}, v{r+2*k+1}') for k in range(8)]
            for u in range(2):
                ops.append(('st', f'buffer_store_dwordx4 v[{q+4*u}:{q+4*u+3}], v{vKV0+u}, s[4:7], s{sKV if tt == 0 else 61} offen offset:{1024*(1+u)}{store_flags}'))
        return ops
    def epi_M(acc):
        ops = [('s', f's_add_u32 s61, s{sHM}, {288*1024}')]
        for tt in range(2):
            r = acc + 16*tt
            q = T_ + 4*tt
            ops += [V(f'v_mul_f32 v{r+k}, s{sNL}, v{r+k}') for k in range(8)]
            ops += [V(f'v_exp_f32 v{r+k}, v{r+k}', 8) for k in range(8)]
            ops += [V(f'v_add_f32 v{r+k}, 1.0, v{r+k}') for k in range(8)]
            ops += [V(f'v_rcp_f32 v{r+k}, v{r+k}', 8) for k in range(8)]
            ops += [V(f'v_mul_f32 v{r+k}, v{r+k}, v{r+8+k}') for k in range(8)]
            ops += [V(f'v_cvt_pk_bf16_f32 v{q+k}, v{r+2*k}, v{r+2*k+1}') for k in range(4)]
            ops.append(('st', f'buffer_store_dwordx4 v[{q}:{q+3}], v{vL16}, s[4:7], s{sHM if tt == 0 else 61} offen{store_flags}'))
        return ops
    def dma_group(name):
        ops = []
        if name in ('U0', 'G1', 'U1'):
            g, add, buf = {'U0': (12, 0, B1), 'G1': (8, 128, B0), 'U1': (12, 128, B1)}[name]
            for i in range(6): ops += dma_full(g, sCol, add, buf, i)
        elif name == 'QKV':
            for i in range(7):
                m0 = f's_add_u32 m0, s{sW3}, {B0 + i*12288}' if i < 6 else f's_add_u32 m0, s{sQS+7}, {B0}'
                ops.append(('s', m0 + '\ns_nop 0'))
                for j in range(3):
                    ops.append(('dma', f'buffer_load_dwordx4 v{vDQ+j}, s[16:19], s{sQS+i} offen offset:{1024*j} lds'))
        elif name == 'M':
            for i in range(3):
                ops.append(('s', f's_add_u32 m0, s{sMM}, {B1 + i*6144}\ns_add_u32 s{sSo}, s{sColM}, {i*192*9216}'))
                for j in range(3):
                    ops.append(('dma', f'buffer_load_dwordx4 v{vDM+j}, s[36:39], s{sSo} offen offset:{1024*j} lds'))
        ops.append(('mark', (name, 0)))
        return ops
    mem_q = {
        'G0': pro[4] + pro[5] + dma_group('U0'),
        'U0': dma_group('G1'), 'G1': dma_group('U1'), 'U1': dma_group('QKV'), 'QKV': dma_group('M'), 'M': []}
    epi_q = {'G0': [], 'U0': epi_G(P_), 'G1': epi_U(Q_, 0), 'U1': epi_G(P_), 'QKV': epi_U(Q_, 4096), 'M': epi_QKV(P_)}

    rtok = {}
    def issue_read(n, k):
        st = steps[n]
        a, off = st['rd'][k]
        d = FB + 8*(n % 3) + 2*k
        rtok[n] = p.ds(f'ds_read_b64_tr_b16 v[{d}:{d+1}], {a} offset:{off}')
    def sync_for(n):
        st = steps[n]
        if st['g'] == 'G0':
            return ('G0', st['i'] // 6) if st['i'] % 6 == 0 else None
        return (st['g'], 0) if st['i'] == 0 else None
    p.stamp('setup')
    p.wait(vm=dtok[('G0', 0)]); p.e('s_barrier')
    p.stamp('first')
    for n in range(2):
        for k in range(4): issue_read(n, k)
    N = len(steps)
    cur = None
    for n in range(N):
        st = steps[n]
        if st['g'] != cur:
            cur = st['g']
            p.stamp(cur)
            ngaps = 4 * sum(1 for s in steps if s['g'] == cur)
            mq = list(mem_q[cur]); eq = list(epi_q[cur])
            tot = sum(o[2] for o in eq if o[0] == 'v')
            skip = 3
            rate = tot / max(1, (ngaps - skip - 10))
            credit = 0.0; gi = 0
            memgap = 2 if cur == 'G0' else 3
        sy = sync_for(n+2) if n + 2 < N else None
        rk = 0
        for m in range(4):
            acc, fr, swap, xid, first = st['mf'][m]
            need_vm = xtok[xid] if xid in xtok else None
            assert need_vm is not None, xid
            p.wait(lgkm=rtok[n] if m == 0 else None, vm=need_vm)
            fa = vr(FB + 8*(n % 3) + 4*fr, 4)
            a, b = (X(*xid), fa) if swap else (fa, X(*xid))
            p.e(f'v_mfma_f32_32x32x16_bf16 v[{acc}:{acc+15}], {a}, {b}, {"0" if first else vr(acc,16)}')
            used = 0
            if n + 2 < N:
                if sy is None:
                    issue_read(n+2, rk); rk += 1
                elif m == 1:
                    full = (sy[0] != 'G0')
                    p.wait(vm=dtok[sy], lgkm=(p.lgkm_issued if full else None))
                    p.e('s_barrier')
                    issue_read(n+2, 0); issue_read(n+2, 1); used += 12
                elif m >= 2:
                    issue_read(n+2, m)
            if mq and gi % memgap == 0 and gi >= 0:
                while mq and mq[0][0] in ('s', 'mark'):
                    o = mq.pop(0); do_op(o)
                    if o[0] == 's': used += 8
                if mq:
                    do_op(mq.pop(0)); used += 4
                while mq and mq[0][0] == 'mark': do_op(mq.pop(0))
            if gi >= skip:
                credit += rate
                while eq and eq[0][0] in ('s', 'st') and used < 12:
                    do_op(eq.pop(0)); used += 4
                while eq and eq[0][0] == 'v' and credit >= eq[0][2] - 0.01 and used + eq[0][2] <= 16:
                    o = eq.pop(0); do_op(o); credit -= o[2]; used += o[2]
            gi += 1
        if n + 1 == N or steps[n+1]['g'] != cur:
            assert not mq, (cur, len(mq))
            if eq:
                p.comment(f'leftover epilogue ops in {cur}: {len(eq)}')
                print('leftover', cur, len(eq))
                for o in eq: do_op(o)
    p.e('s_nop 7\ns_nop 3')
    p.stamp('tail')
    for o in epi_M(Q_): do_op(o)
    p.dump_stamps(1, sW, WS_ST)
    p.label('K1_done')
    p.e('s_endpgm')
    return p

if __name__ == '__main__':
    for nm, g in (('k0', gen_k0), ('k1', gen_k1)):
        p = g()
        pr = check_hazards(p.lines, nm)
        print(nm, len(p.lines), 'lines;', len(pr), 'hazards')
        for x in pr[:20]: print(x)
```

```python
from k01 import *

K2A_LDS = 3*24576
def gen_k2a(force_fallback=False):
    p = Prog()
    S0, S1, O_, P_ = 8, 24, 40, 56
    K_, V0, V1, Q_ = 64, 68, 72, 76
    KX, QX = 80, 82
    vA, vA2, vX, vX2 = 84, 85, 86, 87
    C_ = 88
    sW, sH, sT = 20, 21, 22
    sKV, sW3, sSo, sG = 23, 24, 25, 26
    p.e(f"""
s_cmp_ge_u32 s2, 256
s_cbranch_scc1 K2A_done
""")
    p.stamp('start'); p.stamp('rstart', True)
    p.e(f"""
s_load_dwordx2 s[8:9], s[0:1], 72
v_lshrrev_b32 v1, 6, v0
v_and_b32 v0, 63, v0
v_readfirstlane_b32 s{sW}, v1
s_and_b32 s3, s2, 7
s_lshr_b32 s12, s2, 3
s_and_b32 s13, s12, 3
s_lshl_b32 s{sH}, s3, 2
s_add_u32 s{sH}, s{sH}, s13
s_lshr_b32 s12, s12, 2
s_lshl_b32 s{sT}, s12, 3
s_add_u32 s{sT}, s{sT}, s{sW}
s_mul_i32 s{sG}, s{sH}, {64*3072}
s_add_u32 s{sG}, s{sG}, {WS_KV}
s_mul_i32 s{sW3}, s{sW}, 3072
s_add_u32 s{sKV}, s{sG}, s{sW3}
v_lshlrev_b32 v{vA}, 4, v0
s_waitcnt lgkmcnt(0)
""")
    srd(p, 4, 8, WS_SIZE)
    def dma(ch):
        p.e(f's_add_u32 m0, s{sW3}, {(ch % 3)*24576}\ns_add_u32 s{sSo}, s{sKV}, {ch*24576}')
        for j in range(3):
            t = p.vm(f'buffer_load_dwordx4 v{vA}, s[4:7], s{sSo} offen offset:{1024*j} lds')
        return t
    dt = {}
    dt[0] = dma(0)
    p.e(f"""
v_lshrrev_b32 v2, 5, v0
v_bfe_u32 v3, v0, 4, 1
v_bfe_u32 v4, v0, 2, 1
v_bfe_u32 v5, v0, 3, 1
v_and_b32 v6, 3, v0
v_lshl_add_u32 v6, v5, 2, v6
v_lshlrev_b32 v6, 1, v6
v_lshl_add_u32 v6, v3, 10, v6
v_lshl_add_u32 v6, v4, 9, v6
v_lshl_add_u32 v6, v2, 4, v6
v_add_u32 v7, {1024 + 20*16}, v6
v_lshl_add_u32 v6, v4, 5, v6
v_lshl_add_u32 v6, v3, 6, v6
v_add_u32 v{vX}, {1024 + 24*16}, v6
v_add_u32 v{vA2}, 49152, v{vA}
v_add_u32 v{vX2}, 49152, v{vX}
s_lshl_b32 s12, s{sH}, 6
s_add_u32 s12, s12, s{sT}
s_lshl_b32 s13, s12, 10
s_add_u32 s13, s13, {WS_QF}
s_mul_i32 s14, s12, 3072
s_add_u32 s14, s14, {WS_KV}
""")
    p.vm(f'buffer_load_dwordx4 v[{Q_}:{Q_+3}], v{vA}, s[4:7], s13 offen')
    qt = p.vm(f'buffer_load_ushort v{QX}, v7, s[4:7], s14 offen')
    dt[1] = dma(1)
    p.e(f'v_mov_b32 v{QX+1}, 0\nv_mov_b32 v{KX+1}, 0')
    def laddr(i, part):
        off = ((i >> 3) % 3)*24576 + (i & 7)*3072
        if part == 'x':
            return (f'v{vX}', off) if off < 49152 else (f'v{vX2}', off - 49152)
        off += {'k': 0, 'v0': 1024, 'v1': 2048}[part]
        return (f'v{vA}', off) if off < 49152 else (f'v{vA2}', off - 49152)
    tk = {}
    def rd(i, part):
        if i > 63: return
        if part == 'k' and i % 8 == 0:
            ch = i // 8
            p.wait(vm=dt[ch]); p.e('s_barrier')
            if ch >= 1 and ch + 1 < 8: dt[ch+1] = dma(ch+1)
        a, off = laddr(i, part)
        if part == 'x': tk[(i, part)] = p.ds(f'ds_read_u16 v{KX}, {a} offset:{off}')
        else:
            d = {'k': K_, 'v0': V0, 'v1': V1}[part]
            tk[(i, part)] = p.ds(f'ds_read_b128 v[{d}:{d+3}], {a} offset:{off}')
    Sb = [S0, S1]
    def qk1(i):
        p.wait(lgkm=tk[(i, 'k')])
        p.e(f'v_mfma_f32_32x32x16_bf16 {vr(Sb[i&1],16)}, {vr(K_,4)}, {vr(Q_,4)}, 0')
    def qk2(i):
        p.wait(lgkm=tk[(i, 'x')])
        p.e(f'v_mfma_f32_32x32x8bf16_1k {vr(Sb[i&1],16)}, {vr(KX,2)}, {vr(QX,2)}, {vr(Sb[i&1],16)}')
    def pv(i, u):
        p.wait(lgkm=tk[(i, 'v%d' % u)])
        c = '0' if (i == 0 and u == 0) else vr(O_, 16)
        p.e(f'v_mfma_f32_32x32x16_bf16 {vr(O_,16)}, {vr(V0 if u == 0 else V1,4)}, {vr(P_+4*u,4)}, {c}')
    def ex(i, a, b):
        for k in range(a, b): p.e(f'v_exp_f32 v{Sb[i&1]+k}, v{Sb[i&1]+k}')
    def cv(i, u):
        for k in range(4*u, 4*u+4): p.e(f'v_cvt_pk_bf16_f32 v{P_+k}, v{Sb[i&1]+2*k}, v{Sb[i&1]+2*k+1}')
    rd(0, 'k'); rd(0, 'x'); rd(0, 'v0')
    p.wait(vm=qt)
    qk1(0); rd(1, 'k'); qk2(0); rd(1, 'x')
    p.e('s_nop 7')
    for i in range(64):
        if i % 8 == 0: p.stamp(f't{i}')
        if i + 1 < 64: qk1(i+1); rd(i+2, 'k')
        ex(i, 0, 4)
        if i > 0: pv(i-1, 1)
        rd(i, 'v1')
        ex(i, 4, 8); cv(i, 0)
        if i + 1 < 64: qk2(i+1); rd(i+2, 'x')
        ex(i, 8, 12)
        pv(i, 0); rd(i+1, 'v0')
        ex(i, 12, 16); cv(i, 1)
    p.e('s_nop 1')
    pv(63, 1)
    p.e('s_nop 7\ns_nop 3')
    p.e(f"""
v_mov_b32 v1, {hex(f2u(2.0**-64))}
v_mov_b32 v2, {hex(f2u(2.0**64))}
v_cmp_nge_f32 vcc, v{O_+10}, v1
v_cmp_nle_f32 s[16:17], v{O_+10}, v2
s_or_b64 vcc, vcc, s[16:17]
""")
    if force_fallback: p.e('s_branch K2A_fallback')
    p.e('s_cbranch_vccnz K2A_fallback')
    p.label('K2A_finish')
    p.e(f"""
v_rcp_f32 v1, v{O_+10}
s_mul_i32 s12, s{sT}, {36*1024}
s_lshl_b32 s13, s{sH}, 10
s_add_u32 s13, s13, s12
s_add_u32 s13, s13, {WS_OF}
s_lshr_b32 s14, s{sH}, 3
s_lshl_b32 s14, s14, 10
s_add_u32 s14, s14, s12
s_bfe_u32 s15, s{sH}, 0x10002
s_lshl_b32 s15, s15, 9
s_add_u32 s14, s14, s15
s_and_b32 s15, s{sH}, 3
s_lshl_b32 s15, s15, 2
s_add_u32 s14, s14, s15
s_add_u32 s14, s14, {WS_OF + 32*1024}
""")
    for k in range(10): p.e(f'v_mul_f32 v{O_+k}, v{O_+k}, v1')
    for k in range(5): p.e(f'v_cvt_pk_bf16_f32 v{P_+k}, v{O_+2*k}, v{O_+2*k+1}')
    p.e(f"""
buffer_store_dwordx4 v[{P_}:{P_+3}], v{vA}, s[4:7], s13 offen
s_mov_b64 exec, 0xffffffff
buffer_store_dword v{P_+4}, v{vA}, s[4:7], s14 offen
""")
    p.dump_stamps(2, sW, WS_ST)
    p.label('K2A_done')
    p.e('s_endpgm')
    p.label('K2A_fallback')
    p.e(f"""
v_mov_b32 v1, 0xff800000
s_mov_b32 s12, s{sG}
s_mov_b32 s13, 64
""")
    p.label('K2A_fb1')
    p.e(f"""
buffer_load_dwordx4 v[{K_}:{K_+3}], v{vA}, s[4:7], s12 offen
buffer_load_ushort v{KX}, v{vX}, s[4:7], s12 offen
s_waitcnt vmcnt(0)
v_mfma_f32_32x32x16_bf16 {vr(S0,16)}, {vr(K_,4)}, {vr(Q_,4)}, 0
v_mfma_f32_32x32x8bf16_1k {vr(S0,16)}, {vr(KX,2)}, {vr(QX,2)}, {vr(S0,16)}
s_nop 7
s_nop 7
""")
    for k in range(8): p.e(f'v_max3_f32 v1, v1, v{S0+2*k}, v{S0+2*k+1}')
    p.e(f"""
s_add_u32 s12, s12, 3072
s_sub_u32 s13, s13, 1
s_cmp_lg_u32 s13, 0
s_cbranch_scc1 K2A_fb1
v_mov_b32 v2, v1
s_nop 1
v_permlane32_swap_b32 v1, v2
s_nop 1
v_max_f32 v1, v1, v2
""")
    for k in range(16): p.e(f'v_sub_f32 v{C_+k}, 0, v1\nv_mov_b32 v{O_+k}, 0')
    p.e(f's_mov_b32 s12, s{sG}\ns_mov_b32 s13, 64')
    p.label('K2A_fb2')
    p.e(f"""
buffer_load_dwordx4 v[{K_}:{K_+3}], v{vA}, s[4:7], s12 offen
buffer_load_ushort v{KX}, v{vX}, s[4:7], s12 offen
buffer_load_dwordx4 v[{V0}:{V0+3}], v{vA}, s[4:7], s12 offen offset:1024
buffer_load_dwordx4 v[{V1}:{V1+3}], v{vA}, s[4:7], s12 offen offset:2048
s_waitcnt vmcnt(0)
v_mfma_f32_32x32x16_bf16 {vr(S0,16)}, {vr(K_,4)}, {vr(Q_,4)}, {vr(C_,16)}
v_mfma_f32_32x32x8bf16_1k {vr(S0,16)}, {vr(KX,2)}, {vr(QX,2)}, {vr(S0,16)}
s_nop 7
s_nop 7
""")
    for k in range(16): p.e(f'v_exp_f32 v{S0+k}, v{S0+k}')
    p.e('s_nop 0')
    for k in range(8): p.e(f'v_cvt_pk_bf16_f32 v{P_+k}, v{S0+2*k}, v{S0+2*k+1}')
    p.e(f"""
s_nop 1
v_mfma_f32_32x32x16_bf16 {vr(O_,16)}, {vr(V0,4)}, {vr(P_,4)}, {vr(O_,16)}
v_mfma_f32_32x32x16_bf16 {vr(O_,16)}, {vr(V1,4)}, {vr(P_+4,4)}, {vr(O_,16)}
s_add_u32 s12, s12, 3072
s_sub_u32 s13, s13, 1
s_cmp_lg_u32 s13, 0
s_cbranch_scc1 K2A_fb2
s_nop 7
s_nop 7
s_branch K2A_finish
""")
    return p

NSLOT = 6
SLOT = 20480
K2B_LDS = NSLOT*SLOT
def gen_k2b():
    p = Prog()
    ACC = 8
    WF = 88
    HF = 108
    NH = 16
    vL16 = 172; vD = 173
    vDS = 177
    vT = 178
    vTS = 186
    sW, sT, sCB = 20, 21, 22
    sWA, sWB, sHA, sHB, sSh, sW4, sW1, sSo = 23, 24, 25, 26, 27, 28, 29, 30
    p.e(f"""
s_cmp_ge_u32 s2, 256
s_cbranch_scc1 K2B_done
""")
    p.stamp('start'); p.stamp('rstart', True)
    p.e(f"""
s_load_dwordx2 s[12:13], s[0:1], 72
s_load_dwordx2 s[14:15], s[0:1], 48
v_lshrrev_b32 v1, 6, v0
v_and_b32 v0, 63, v0
v_readfirstlane_b32 s{sW}, v1
s_and_b32 s3, s2, 7
s_lshr_b32 s16, s2, 3
s_and_b32 s{sCB}, s16, 3
s_lshr_b32 s16, s16, 2
s_and_b32 s17, s3, 1
s_lshl_b32 s17, s17, 3
s_add_u32 s16, s16, s17
s_lshl_b32 s{sT}, s16, 2
s_add_u32 s{sT}, s{sT}, s{sW}
s_lshr_b32 s31, s3, 1
s_and_b32 s17, s{sCB}, 1
s_mul_i32 s18, s31, 72
s_mul_i32 s19, s17, 36
s_add_u32 s32, s18, s19
s_sub_u32 s33, s18, s19
s_lshr_b32 s34, s{sCB}, 1
s_mul_i32 s34, s34, 576
s_mul_i32 s35, s17, 320
s_add_u32 s35, s35, s34
s_mul_i32 s{sWA}, s32, {16*1152}
s_add_u32 s{sSh}, s{sWA}, s34
s_add_u32 s{sSh}, s{sSh}, 256
s_add_u32 s{sWA}, s{sWA}, s35
s_mul_i32 s{sWB}, s33, {16*1152}
s_add_u32 s{sWB}, s{sWB}, s35
s_mul_i32 s36, s{sT}, {288*1024}
s_add_u32 s36, s36, {WS_H}
s_lshl_b32 s{sHA}, s32, 10
s_add_u32 s{sHA}, s{sHA}, s36
s_lshl_b32 s{sHB}, s33, 10
s_add_u32 s{sHB}, s{sHB}, s36
s_lshl_b32 s{sW4}, s{sW}, 12
s_lshl_b32 s{sW1}, s{sW}, 10
v_lshlrev_b32 v{vL16}, 4, v0
v_lshrrev_b32 v2, 4, v0
v_and_b32 v3, 15, v0
v_lshlrev_b32 v4, 2, v2
v_xor_b32 v3, v3, v4
s_lshl_b32 s3, s{sW}, 4
v_add_u32 v2, s3, v2
v_mul_u32_u24 v2, 1152, v2
v_lshl_add_u32 v{vD}, v3, 4, v2
v_add_u32 v{vD+1}, {4*1152-1024}, v{vD}
v_add_u32 v{vD+2}, {2*(4*1152-1024)}, v{vD}
v_add_u32 v{vD+3}, {3*(4*1152-1024)}, v{vD}
v_lshrrev_b32 v2, 2, v0
v_add_u32 v2, s3, v2
v_mul_u32_u24 v2, 1152, v2
v_and_b32 v3, 3, v0
v_lshl_add_u32 v{vDS}, v3, 4, v2
s_waitcnt lgkmcnt(0)
""")
    srd(p, 4, 12, WS_SIZE)
    srd(p, 8, 14, 4608*576*2)
    dt = {}; ht = {}
    def mem_ops(ci):
        sl = (ci % NSLOT)*SLOT
        wb = sWA if ci < 9 else sWB
        ops = [('s', f's_add_u32 m0, s{sW4}, {sl}\ns_add_u32 s{sSo}, s{wb}, {ci*64*1152}')]
        for j in range(4):
            ops.append(('dma', ci, f'buffer_load_dwordx4 v{vD+j}, s[8:11], s{sSo} offen offset:{1024*j} lds'))
        if ci < 9:
            ops.append(('s', f's_add_u32 m0, s{sW1}, {sl + 16384}\ns_add_u32 s{sSo}, s{sSh}, {ci*64*1152}'))
            ops.append(('dma', ci, f'buffer_load_dwordx4 v{vDS}, s[8:11], s{sSo} offen lds'))
        return ops
    def h_ops(ci):
        hb = sHA if ci < 9 else sHB
        ops = [('s', f's_add_u32 s37, s{hb}, {ci*4096}')]
        for j in range(4):
            s = 4*ci + j
            d = HF + 4*(s % NH)
            ops.append(('h', s, f'buffer_load_dwordx4 v[{d}:{d+3}], v{vL16}, s[4:7], s37 offen offset:{1024*j}'))
        return ops
    def do(o):
        if o[0] == 's': p.e(o[1])
        elif o[0] == 'dma': dt[o[1]] = p.vm(o[2])
        elif o[0] == 'h': ht[o[1]] = p.vm(o[2])
    for ci in range(NSLOT-1):
        for o in mem_ops(ci): do(o)
        if ci < NH//4 - 1:
            for o in h_ops(ci): do(o)
    p.e(f"""
v_lshrrev_b32 v1, 5, v0
v_bfe_u32 v2, v0, 4, 1
v_bfe_u32 v3, v0, 2, 2
v_and_b32 v4, 1, v0
v_bfe_u32 v5, v0, 1, 1
v_lshlrev_b32 v4, 5, v4
v_lshl_add_u32 v4, v2, 4, v4
v_lshl_add_u32 v4, v5, 3, v4
v_lshl_add_u32 v6, v1, 2, v3
v_lshl_add_u32 v7, v6, 8, v4
v_lshl_add_u32 v{vT}, v3, 6, v7
v_xor_b32 v{vT+1}, 64, v{vT}
v_xor_b32 v{vT+2}, 128, v{vT}
v_xor_b32 v{vT+3}, 192, v{vT}
v_lshl_add_u32 v{vTS}, v6, 6, v4
v_add_u32 v{vTS+1}, {3*SLOT}, v{vTS}
""")
    for t in range(4): p.e(f'v_add_u32 v{vT+4+t}, {3*SLOT}, v{vT+t}')
    rt = {}
    mq = []
    def rd(s, t):
        if s > 71 or (t == 4 and s >= 36): return
        ci = s // 4
        if t == 0 and s % 4 == 0:
            p.wait(vm=dt[ci]); p.e('s_barrier')
            if ci >= 1 and ci + NSLOT - 2 < 18: mq.extend(mem_ops(ci + NSLOT - 2))
        sl = ci % NSLOT
        reg, sl = (1, sl - 3) if sl >= 3 else (0, sl)
        for u in range(2):
            if t < 4: a, off = vT + 4*reg + t, sl*SLOT + (s % 4)*4096 + u*2048
            else: a, off = vTS + reg, sl*SLOT + 16384 + (s % 4)*1024 + u*512
            d = WF + 4*t + 2*u
            rt[(s, t)] = p.ds(f'ds_read_b64_tr_b16 v[{d}:{d+1}], v{a} offset:{off}')
    for t in range(5): rd(0, t)
    for s in range(72):
        nt = 5 if s < 36 else 4
        if s % 12 == 0: p.stamp(f's{s}')
        if s % 4 == 0:
            hc = s//4 + NH//4 - 1
            if hc < 18: mq.extend(h_ops(hc))
        for t in range(nt):
            p.wait(lgkm=rt[(s, t)], vm=ht[s])
            a = ACC + 16*t
            p.e(f'v_mfma_f32_32x32x16_bf16 {vr(a,16)}, {vr(WF+4*t,4)}, {vr(HF+4*(s % NH),4)}, {"0" if s == 0 else vr(a,16)}')
            rd(s+1, t)
            if mq:
                if mq[0][0] == 's': do(mq.pop(0))
                do(mq.pop(0))
    assert not mq
    p.e(f"""
s_lshl_b32 s3, s31, 6
s_add_u32 s3, s3, s{sT}
s_mul_i32 s3, s3, 20
s_mul_i32 s16, s{sCB}, 5
s_add_u32 s3, s3, s16
s_lshl_b32 s3, s3, 11
s_add_u32 s16, s3, {WS_DP}
s_add_u32 s17, s16, 4096
s_add_u32 s18, s16, 8192
s_nop 7
""")
    for t in (4, 0, 1, 2, 3):
        a = ACC + 16*t; q = HF + 8*t
        for k in range(8): p.e(f'v_cvt_pk_bf16_f32 v{q+k}, v{a+2*k}, v{a+2*k+1}')
        for hf in range(2):
            p.e(f'buffer_store_dwordx4 v[{q+4*hf}:{q+4*hf+3}], v{vL16}, s[4:7], s{16 + t//2} offen offset:{(t&1)*2048 + hf*1024}')
    p.dump_stamps(3, sW, WS_ST)
    p.label('K2B_done')
    p.e('s_endpgm')
    return p

K3_LDS = 73728
def gen_k3():
    p = Prog()
    OFR = 8
    DPR = 152
    ACC = 216
    XR = 232
    WF = 240
    vL16, vXO = 248, 249
    vD = 250
    vT = 1
    sW, sT, sCT = 20, 21, 22
    p.e(f"""
s_cmp_ge_u32 s2, 288
s_cbranch_scc1 K3_done
""")
    p.stamp('start'); p.stamp('rstart', True)
    p.e(f"""
s_load_dwordx2 s[24:25], s[0:1], 72
s_load_dwordx2 s[26:27], s[0:1], 16
s_load_dwordx2 s[28:29], s[0:1], 0
s_load_dwordx2 s[30:31], s[0:1], 56
v_lshrrev_b32 v1, 6, v0
v_and_b32 v0, 63, v0
v_readfirstlane_b32 s{sW}, v1
s_and_b32 s3, s2, 31
s_lshr_b32 s23, s2, 5
s_and_b32 s32, s{sW}, 1
s_lshr_b32 s33, s{sW}, 1
s_lshl_b32 s{sT}, s3, 1
s_add_u32 s{sT}, s{sT}, s32
s_lshl_b32 s{sCT}, s23, 1
s_add_u32 s{sCT}, s{sCT}, s33
v_lshlrev_b32 v{vL16}, 4, v0
v_lshrrev_b32 v2, 3, v0
v_and_b32 v3, 7, v0
v_and_b32 v4, 2, v2
v_lshlrev_b32 v4, 1, v4
v_xor_b32 v3, v3, v4
s_mul_i32 s34, s{sW}, 24
v_add_u32 v2, s34, v2
v_mul_u32_u24 v2, 1152, v2
v_lshl_add_u32 v{vD}, v3, 4, v2
v_add_u32 v{vD+1}, {8*1152-1024}, v{vD}
v_add_u32 v{vD+2}, {2*(8*1152-1024)}, v{vD}
s_mul_i32 s35, s{sW}, 3072
s_lshl_b32 s36, s23, 7
""")
    p.e(f"""
s_cmp_ge_u32 s{sCT}, 9
s_cselect_b32 s37, 1, 0
s_add_u32 s37, s37, s{sCT}
s_mul_i32 s38, s{sT}, 20
s_add_u32 s38, s38, s37
s_lshl_b32 s38, s38, 11
s_add_u32 s38, s38, {WS_DP}
s_add_u32 s39, s38, {5*2048}
s_cmp_eq_u32 s37, 4
s_cselect_b32 s40, 1, 0
s_cmp_eq_u32 s37, 14
s_cselect_b32 s40, 1, s40
s_cmp_eq_u32 s40, 1
s_cselect_b32 s40, 0, 0x7ff00000
v_add_u32 v253, s40, v{vL16}
s_mul_i32 s41, s{sT}, {36*1024}
s_add_u32 s41, s41, {WS_OF}
v_and_b32 v2, 31, v0
v_lshrrev_b32 v3, 5, v0
v_mul_u32_u24 v2, 1152, v2
v_lshl_add_u32 v{vXO}, v3, 5, v2
s_mul_i32 s42, s{sT}, {32*1152}
s_lshl_b32 s43, s{sCT}, 6
s_add_u32 s42, s42, s43
s_waitcnt lgkmcnt(0)
""")
    srd(p, 4, 24, WS_SIZE)
    srd(p, 8, 26, 576*576*2)
    srd(p, 12, 28, 2048*576*2)
    srd(p, 16, 30, 2048*576*2)
    dt = {}; ot = {}
    for i in range(6):
        p.e(f's_add_u32 m0, s35, {i*12288}\ns_add_u32 s44, s36, {i*96*1152}')
        for j in range(3):
            dl = p.vm(f'buffer_load_dwordx4 v{vD+j}, s[8:11], s44 offen offset:{1024*j} lds')
    for s in range(36):
        if s % 4 == 0: p.e(f's_add_u32 s44, s41, {s*1024}')
        ot[s] = p.vm(f'buffer_load_dwordx4 {vr(OFR+4*s,4)}, v{vL16}, s[4:7], s44 offen offset:{(s%4)*1024}')
    p.e(f"""
v_lshrrev_b32 v6, 5, v0
v_bfe_u32 v7, v0, 4, 1
v_bfe_u32 v{ACC}, v0, 2, 2
v_and_b32 v{ACC+1}, 1, v0
v_bfe_u32 v{ACC+2}, v0, 1, 1
v_lshlrev_b32 v{ACC+1}, 5, v{ACC+1}
v_lshl_add_u32 v{ACC+1}, v7, 4, v{ACC+1}
v_lshl_add_u32 v{ACC+1}, v{ACC+2}, 3, v{ACC+1}
v_lshrrev_b32 v{ACC+2}, 1, v{ACC}
v_xor_b32 v{ACC+3}, s33, v{ACC+2}
v_lshl_add_u32 v{ACC+1}, v{ACC+3}, 6, v{ACC+1}
v_lshl_add_u32 v{ACC+3}, v6, 2, v{ACC}
v_lshl_add_u32 v1, v{ACC+3}, 7, v{ACC+1}
v_xor_b32 v2, 64, v1
v_add_u32 v3, {16*18*128}, v1
v_add_u32 v4, {16*18*128}, v2
v_mul_u32_u24 v{ACC+3}, 72, v6
v_mul_u32_u24 v{ACC+2}, 18, v{ACC+2}
v_and_b32 v{ACC}, 1, v{ACC}
v_add3_u32 v{ACC+3}, v{ACC+3}, v{ACC+2}, v{ACC}
v_add_u32 v{ACC+3}, 16, v{ACC+3}
v_lshl_add_u32 v5, v{ACC+3}, 7, v{ACC+1}
""")
    p.stamp('issued')
    p.wait(vm=dl); p.e('s_barrier')
    p.stamp('dma')
    rt = {}
    def rd(s):
        if s > 35: return
        for u in range(2):
            if s < 32: a, off = 1 + (s & 1) + 2*(s >> 4), ((s & 15)*18 + 8*u)*128
            else: a, off = 5, ((s-32)*144 + 36*u)*128
            d = WF + 4*(s & 1) + 2*u
            rt[s] = p.ds(f'ds_read_b64_tr_b16 v[{d}:{d+1}], v{a} offset:{off}')
    rd(0); rd(1)
    late = []
    for k in range(4):
        late.append(('s', f's_add_u32 s45, s38, {k*64*20*2048}\ns_add_u32 s46, s39, {k*64*20*2048}'))
        for b in range(2):
            for hf in range(2):
                d = DPR + 8*(2*k+b) + 4*hf
                late.append(('m', f'buffer_load_dwordx4 {vr(d,4)}, v{vL16 if b == 0 else 253}, s[4:7], s{45+b} offen offset:{hf*1024}'))
    for hf in range(2):
        late.append(('m', f'buffer_load_dwordx4 {vr(XR+4*hf,4)}, v{vXO}, s[12:15], s42 offen offset:{16*hf}'))
    for o in late:
        if o[0] == 's': p.e(o[1])
        else: last = p.vm(o[1])
    for s in range(36):
        p.wait(lgkm=rt[s], vm=ot[s])
        p.e(f'v_mfma_f32_32x32x16_bf16 {vr(ACC,16)}, {vr(WF+4*(s&1),4)}, {vr(OFR+4*s,4)}, {"0" if s == 0 else vr(ACC,16)}')
        rd(s+2)
    p.stamp('mfma')
    p.wait(vm=last)
    p.stamp('dp')
    Dv = 8; Tv = 24
    for k in range(8):
        p.e(f'v_lshlrev_b32 v{Dv+2*k}, 16, v{DPR+k}\nv_and_b32 v{Dv+2*k+1}, 0xffff0000, v{DPR+k}')
    for b in range(1, 8):
        for k in range(8):
            p.e(f'v_lshlrev_b32 v{Tv+2*k}, 16, v{DPR+8*b+k}\nv_and_b32 v{Tv+2*k+1}, 0xffff0000, v{DPR+8*b+k}')
        for k in range(16): p.e(f'v_add_f32 v{Dv+k}, v{Dv+k}, v{Tv+k}')
    p.e(f's_mov_b32 s47, {hex(f2u(-LOG2E))}')
    for k in range(16): p.e(f'v_mul_f32 v{Tv+k}, s47, v{Dv+k}')
    for k in range(16): p.e(f'v_exp_f32 v{Tv+k}, v{Tv+k}')
    for k in range(16): p.e(f'v_add_f32 v{Tv+k}, 1.0, v{Tv+k}')
    for k in range(16): p.e(f'v_rcp_f32 v{Tv+k}, v{Tv+k}')
    for k in range(16): p.e(f'v_mul_f32 v{Dv+k}, v{Dv+k}, v{Tv+k}')
    for k in range(8):
        p.e(f'v_lshlrev_b32 v{Tv+2*k}, 16, v{XR+k}\nv_and_b32 v{Tv+2*k+1}, 0xffff0000, v{XR+k}')
    for k in range(16): p.e(f'v_fma_f32 v{Dv+k}, v{Dv+k}, v{ACC+k}, v{Tv+k}')
    for k in range(8): p.e(f'v_cvt_pk_bf16_f32 v{XR+k}, v{Dv+2*k}, v{Dv+2*k+1}')
    for hf in range(2):
        p.e(f'buffer_store_dwordx4 {vr(XR+4*hf,4)}, v{vXO}, s[16:19], s42 offen offset:{16*hf}')
    p.dump_stamps(4, sW, WS_ST)
    p.label('K3_done')
    p.e('s_endpgm')
    return p

if __name__ == '__main__':
    for nm, g in (('k2a', gen_k2a), ('k2b', gen_k2b), ('k3', gen_k3)):
        p = g()
        pr = check_hazards(p.lines, nm)
        print(nm, len(p.lines), 'lines;', len(pr), 'hazards')
        for x in pr[:20]: print(x)
```

```python
import sys
from k23 import *
NAME = 'recurrent_scan__softmax_full_mha__glu_gated_glu__prompt'
def build(out, force_fallback=False, prefetch=True, codepf=True, sf=''):
    ks = [
        ('k0_kernel', gen_k0(prefetch, codepf), (256, 512, 0), 56, 56),
        ('k1_kernel', gen_k1(sf), (256, 256, K1_LDS), 512, 256),
        ('k2a_kernel', gen_k2a(force_fallback), (256, 512, K2A_LDS), 104, 104),
        ('k2b_kernel', gen_k2b(), (256, 256, K2B_LDS), 192, 192),
        ('k3_kernel', gen_k3(), (288, 256, K3_LDS), 256, 256),
    ]
    ref = open('cdna_kernels/' + NAME + '.s.ref').read().split('\n')
    head = [l for l in ref[:11]]
    txt = '\n'.join(head) + '\n'
    for n, p, (g, b, lds), _, _ in ks:
        txt += f'; @launch kernel={n} grid=({g},1,1) block=({b},1,1) lds={lds}\n'
    txt += '.amdgcn_target "amdgcn-amd-amdhsa--gfx950"\n.text\n'
    for n, p, _, _, _ in ks:
        pr = check_hazards(p.lines, n)
        for x in pr: print('HAZARD', x)
        if n == 'k1_kernel': txt += 'CODE_BEGIN:\n'
        txt += f'.globl {n}\n.p2align 8\n.type {n},@function\n{n}:\n' + p.text()
    txt += 'CODE_END:\n'
    txt += '.section .rodata,"a"\n'
    for n, p, _, vg, ac in ks:
        txt += '.p2align 6\n' + kd(n, vg, ac)
    open(out, 'w').write(txt)
    return {n: getattr(p, 'stamps', []) for n, p, _, _, _ in ks}
if __name__ == '__main__':
    build('cdna_kernels/' + NAME + '.s')
    build('fb.s', force_fallback=True)
    build('v_nocode.s', codepf=False)
    build('v_nopf.s', codepf=True, prefetch=False)
    build('v_sc1.s', sf=' sc1')
    build('v_sc01.s', sf=' sc0 sc1')
    build('v_nt.s', sf=' nt')
    Prog.STAMPS = True
    st = build('st.s')
    import json; json.dump(st, open('st.json', 'w'))
```

```python
import re

class Prog:
    def __init__(self):
        self.lines = []
        self.lgkm_issued = 0
        self.lgkm_done = 0
        self.vm_issued = 0
        self.vm_done = 0
    def e(self, s):
        for ln in s.strip('\n').split('\n'):
            ln = ln.strip()
            if ln:
                self.lines.append(ln)
    def label(self, name):
        self.lines.append(name + ':')
    def comment(self, s):
        self.lines.append('; ' + s)
    def ds(self, s):
        self.e(s); self.lgkm_issued += 1
        return self.lgkm_issued
    def vm(self, s):
        self.e(s); self.vm_issued += 1
        return self.vm_issued
    def vm_opt(self, s):
        self.e(s)
        return self.vm_issued + 0.5
    def wait(self, lgkm=None, vm=None):
        parts = []
        if vm is not None and vm != int(vm):
            if vm > self.vm_done:
                n = self.vm_issued - int(vm)
                assert n <= 63
                parts.append(f'vmcnt({n})'); self.vm_done = vm
        elif vm is not None and vm > self.vm_done:
            n = self.vm_issued - vm
            if n <= 63:
                parts.append(f'vmcnt({n})'); self.vm_done = vm
            else:
                parts.append('vmcnt(63)'); self.vm_done = self.vm_issued - 63
                assert self.vm_done >= vm
        if lgkm is not None and lgkm > self.lgkm_done:
            n = self.lgkm_issued - lgkm
            if n > 15: n = 15
            parts.append(f'lgkmcnt({n})'); self.lgkm_done = self.lgkm_issued - n
        if parts:
            self.e('s_waitcnt ' + ' '.join(parts))
            return True
        return False
    STAMPS = False
    ONLY = None
    def stamp(self, name, real=False):
        if not Prog.STAMPS: return
        if Prog.ONLY is not None and name not in Prog.ONLY and name not in ('start', 'rstart', 'end', 'rend', 'end2'): return
        if not hasattr(self, 'stamps'): self.stamps = []
        i = len(self.stamps); self.stamps.append(name)
        r = 64 + 2*i
        assert r + 1 < 96
        self.e(f'{"s_memrealtime" if real else "s_memtime"} s[{r}:{r+1}]')
    def dump_stamps(self, kidx, wavereg, base, srd='s[4:7]', v=0):
        if not Prog.STAMPS: return
        self.stamp('end'); self.stamp('rend', True)
        self.e('s_waitcnt lgkmcnt(0) vmcnt(0)\ns_mov_b64 exec, -1')
        self.stamp('end2'); self.e('s_waitcnt lgkmcnt(0)')
        for i in range(len(self.stamps)):
            self.e(f'v_writelane_b32 v{v}, s{64+2*i}, {i}')
        self.e(f'''s_lshl_b32 s100, s2, 3
s_add_u32 s100, s100, s{wavereg}
s_lshl_b32 s100, s100, 8
s_add_u32 s100, s100, {base + kidx*(1<<20)}
v_mbcnt_lo_u32_b32 v{v+1}, -1, 0
v_mbcnt_hi_u32_b32 v{v+1}, -1, v{v+1}
v_lshlrev_b32 v{v+1}, 2, v{v+1}
buffer_store_dword v{v}, v{v+1}, {srd}, s100 offen''')
    def reset_counts(self):
        self.lgkm_issued = self.lgkm_done = self.vm_issued = self.vm_done = 0
    def text(self):
        out = []
        for ln in self.lines:
            if ln.endswith(':') or ln.startswith('.'):
                out.append(ln)
            else:
                out.append('    ' + ln)
        return '\n'.join(out) + '\n'

def vr(base, n=1, k='v'):
    return f'{k}{base}' if n == 1 else f'{k}[{base}:{base+n-1}]'

_reg = re.compile(r'\b([vas])(\d+)\b|\b([vas])\[(\d+):(\d+)\]')
def regs_of(op):
    out = set()
    for m in _reg.finditer(op):
        if m.group(1):
            out.add((m.group(1), int(m.group(2))))
        else:
            for i in range(int(m.group(4)), int(m.group(5)) + 1):
                out.add((m.group(3), i))
    if re.search(r'\bvcc\b', op): out.add(('x', 'vcc'))
    if re.search(r'\bexec\b', op): out.add(('x', 'exec'))
    if re.search(r'\bm0\b', op): out.add(('x', 'm0'))
    return out

TRANS = ('v_exp_', 'v_log_', 'v_rcp_', 'v_rsq_', 'v_sqrt_', 'v_sin_', 'v_cos_')
def parse(ln):
    ln = ln.split(';')[0].strip()
    if not ln or ln.endswith(':') or ln.startswith('.'):
        return None
    sp = ln.split(None, 1)
    op = sp[0]; rest = sp[1] if len(sp) > 1 else ''
    ops = [o.strip() for o in re.split(r',(?![^\[]*\])', rest)] if rest else []
    d = dict(op=op, ops=ops, text=ln, dst=set(), src=set(), kind='other', states=1)
    if op == 's_nop':
        d['states'] = int(ops[0], 0) + 1; d['kind'] = 'nop'
    elif op.startswith('v_mfma'):
        d['kind'] = 'mfma'
        d['dst'] = regs_of(ops[0]); d['A'] = regs_of(ops[1]); d['B'] = regs_of(ops[2]); d['C'] = regs_of(ops[3])
        d['src'] = d['A'] | d['B'] | d['C']
        d['passes'] = 8 if '32x32' in op else 4
    elif op.startswith('v_'):
        d['kind'] = 'valu'
        d['trans'] = op.startswith(TRANS)
        d['dst'] = regs_of(ops[0])
        nd = 1
        if op.startswith(('v_add_co', 'v_addc_co', 'v_sub_co', 'v_subb_co', 'v_div_scale', 'v_mad_u64')):
            d['dst'] |= regs_of(ops[1]); nd = 2
        for o in ops[nd:]:
            d['src'] |= regs_of(o)
        if op.startswith(('v_fmac', 'v_dot2c', 'v_permlane', 'v_writelane')) or 'dpp' in op or 'row_' in ln or 'quad_perm' in ln:
            d['src'] |= regs_of(ops[0])
        if op.startswith('v_permlane') and 'swap' in op:
            d['dst'] |= regs_of(ops[1])
        if op.startswith('v_cmpx'):
            d['dst'].add(('x', 'exec'))
        d['dpp'] = ('row_' in ln or 'quad_perm' in ln or 'wave_' in ln)
    elif op.startswith('ds_'):
        d['kind'] = 'ds'
        if 'read' in op or 'permute' in op or 'swizzle' in op or '_rtn' in op:
            d['dst'] = regs_of(ops[0])
            for o in ops[1:]: d['src'] |= regs_of(o)
        else:
            for o in ops: d['src'] |= regs_of(o)
    elif op.startswith(('buffer_', 'global_', 'flat_')):
        d['kind'] = 'vmem'
        islds = bool(re.search(r'\blds\b', ln)) or '_lds_' in op
        d['lds'] = islds
        if 'load' in op and not islds:
            d['dst'] = regs_of(ops[0])
            for o in ops[1:]: d['src'] |= regs_of(o)
        else:
            for o in ops: d['src'] |= regs_of(o)
            if 'atomic' in op and 'sc0' in ln: d['dst'] = regs_of(ops[0])
        if islds: d['src'].add(('x', 'm0'))
        d['widestore'] = ('store' in op and ('x4' in op or 'x3' in op))
        if d['widestore']:
            d['data'] = regs_of(ops[0] if op.startswith('buffer') else ops[1])
    elif op.startswith('s_'):
        d['kind'] = 'salu'
        if op.startswith(('s_waitcnt', 's_barrier', 's_branch', 's_cbranch', 's_endpgm', 's_setprio', 's_sleep', 's_cmp', 's_setpc')):
            for o in ops: d['src'] |= regs_of(o)
        else:
            if ops: d['dst'] = regs_of(ops[0])
            for o in ops[1:]: d['src'] |= regs_of(o)
            if 'saveexec' in op: d['dst'].add(('x', 'exec'))
    return d

def check_hazards(lines, name=''):
    ins = [p for p in (parse(l) for l in lines) if p]
    probs = []
    W = 24
    for i, c in enumerate(ins):
        dist = 0
        for j in range(i - 1, max(-1, i - W - 1), -1):
            p = ins[j]
            def need(n, why):
                if dist < n:
                    probs.append(f'{name}: need {n} have {dist} [{why}]: "{p["text"]}" -> "{c["text"]}"')
            vec = lambda s: {r for r in s if r[0] in 'va'}
            if p['kind'] == 'mfma':
                n_rw = {8: 12, 4: 8}[p['passes']]
                if c['kind'] == 'mfma':
                    if p['dst'] & (c['A'] | c['B']): need(n_rw, 'mfma D->A/B')
                    if p['dst'] & c['C']:
                        if not (p['dst'] == c['C'] and p['passes'] == c['passes']): need({8: 10, 4: 6}[p['passes']], 'mfma D->C overlap')
                    elif p['dst'] & c['dst']:
                        need({8: 10, 4: 6}[p['passes']], 'mfma WAW D')
                elif c['kind'] in ('valu', 'ds', 'vmem'):
                    if p['dst'] & (c['src'] | c['dst']): need(n_rw, 'mfma D->valu/mem')
                    if c['kind'] == 'valu' and (p['C'] & c['dst']): need({8: 7, 4: 3}[p['passes']], 'mfma C WAR')
            if p['kind'] == 'valu':
                if c['kind'] == 'mfma' and (vec(p['dst']) & c['src']): need(2, 'valu->mfma')
                if c['kind'] == 'mfma' and ('x', 'exec') in p['dst']: need(4, 'exec->mfma')
                if c['kind'] == 'valu':
                    if p.get('trans') and not c.get('trans') and (p['dst'] & c['src']): need(1, 'trans->valu')
                    if c.get('dpp') and (vec(p['dst']) & c['src']): need(2, 'valu->dpp')
                    if c.get('dpp') and ('x', 'exec') in p['dst']: need(5, 'exec->dpp')
                    if c['op'].startswith(('v_readlane', 'v_readfirstlane')) and (vec(p['dst']) & c['src']): need(1, 'valu->readlane')
                    if c['op'].startswith('v_permlane') and (vec(p['dst']) & c['src']): need(2, 'valu->permlane')
                    sd = {r for r in p['dst'] if r[0] == 's' or r == ('x', 'vcc')}
                    if sd & c['src']:
                        need(4 if c['op'].startswith(('v_readlane', 'v_writelane', 'v_div_fmas')) else 2, 'valu sgpr->valu')
                if c['kind'] == 'vmem':
                    sd = {r for r in p['dst'] if r[0] == 's'}
                    if sd & c['src']: need(5, 'valu sgpr->vmem')
            if p['kind'] == 'salu' and ('x', 'm0') in p['dst'] and c['kind'] == 'vmem' and c.get('lds'): need(1, 'm0->lds dma')
            if p['kind'] == 'vmem' and p.get('widestore') and (p['data'] & c['dst']):
                need(2 if c['kind'] == 'valu' else 1, 'store data WAR')
            dist += p['states']
            if dist >= 20: break
    return probs
```

```python
from asmlib import *
import math, struct

def f2u(x): return struct.unpack('<I', struct.pack('<f', x))[0]
LOG2E = 1.4426950408889634
CQ = (18 ** -0.5) * LOG2E

WS_XN = 0
WS_QF = WS_XN + 64*36*1024
WS_KV = WS_QF + 32*64*1024
WS_H  = WS_KV + 32*64*3072
WS_OF = WS_H + 64*288*1024
WS_DP = WS_OF + 64*36*1024
WS_END = WS_DP + 4*64*20*2048
WS_SIZE = 268435456
WS_ST = 128*1024*1024

def srd(p, d, ptr, nbytes):
    p.e(f's_mov_b32 s{d}, s{ptr}\ns_mov_b32 s{d+1}, s{ptr+1}\ns_mov_b32 s{d+2}, {nbytes}\ns_mov_b32 s{d+3}, 0x20000')

def kd(name, vgpr, acc, sgpr=102):
    return f""".amdhsa_kernel {name}
  .amdhsa_next_free_vgpr {vgpr}
  .amdhsa_next_free_sgpr {sgpr}
  .amdhsa_accum_offset {acc}
  .amdhsa_group_segment_fixed_size 0
  .amdhsa_kernarg_size 80
  .amdhsa_user_sgpr_count 2
  .amdhsa_user_sgpr_kernarg_segment_ptr 1
  .amdhsa_system_sgpr_workgroup_id_x 1
.end_amdhsa_kernel
"""

def gen_k0(prefetch=True, codepf=True, new_layout=False):
    p = Prog()
    p.e("""
s_cmp_ge_u32 s2, 256
s_cbranch_scc1 K0_done
""")
    p.stamp('start'); p.stamp('rstart', True)
    p.e("""
s_load_dwordx2 s[4:5], s[0:1], 0
s_load_dwordx2 s[6:7], s[0:1], 72
s_load_dwordx2 s[24:25], s[0:1], 8
s_load_dwordx4 s[28:31], s[0:1], 32
v_and_b32 v1, 63, v0
v_lshrrev_b32 v2, 6, v0
s_lshl_b32 s3, s2, 3
v_add_u32 v2, s3, v2
v_mul_u32_u24 v3, 1152, v2
v_lshl_add_u32 v3, v1, 5, v3
v_cmp_gt_u32 vcc, 36, v1
v_mov_b32 v30, 0x7ff00000
v_lshrrev_b32 v31, 5, v2
v_cndmask_b32 v3, v30, v3, vcc
""")
    if not new_layout: p.e("""
v_mul_u32_u24 v31, 36, v31
v_add_u32 v31, v31, v1
v_lshlrev_b32 v31, 10, v31
v_and_b32 v29, 31, v2
v_lshl_add_u32 v31, v29, 4, v31
""")
    else: p.e("""
v_mul_u32_u24 v31, 36864, v31
v_lshrrev_b32 v29, 1, v1
v_lshl_add_u32 v31, v29, 11, v31
v_and_b32 v29, 1, v1
v_lshl_add_u32 v31, v29, 9, v31
v_and_b32 v29, 16, v2
v_lshl_add_u32 v31, v29, 6, v31
v_and_b32 v29, 15, v2
v_lshl_add_u32 v31, v29, 4, v31
""")
    p.e("""
v_cndmask_b32 v31, v30, v31, vcc
s_waitcnt lgkmcnt(0)
""")
    srd(p, 8, 4, 2048*576*2)
    srd(p, 12, 6, WS_QF)
    p.e("""
buffer_load_dwordx4 v[4:7], v3, s[8:11], 0 offen
buffer_load_dwordx4 v[8:11], v3, s[8:11], 0 offen offset:16
""")
    if prefetch:
        srd(p, 32, 28, 576*4608*2)
        srd(p, 36, 30, 576*4608*2)
        srd(p, 40, 24, 576*1728*2)
        p.e("""
s_and_b32 s20, s2, 7
s_lshr_b32 s21, s2, 3
s_lshl_b32 s21, s21, 9
v_add_u32 v32, s21, v0
v_lshrrev_b32 v33, 4, v32
v_and_b32 v34, 15, v32
s_mul_i32 s22, s20, 1152
s_mul_i32 s23, s20, 144
v_mul_u32_u24 v35, 9216, v33
v_lshl_add_u32 v35, v34, 7, v35
v_add_u32 v35, s22, v35
v_cmp_gt_u32 vcc, 9, v34
v_mul_u32_u24 v36, 3456, v33
v_mul_u32_u24 v37, 11, v34
v_cndmask_b32 v35, v30, v35, vcc
v_lshrrev_b32 v37, 5, v37
v_mul_u32_u24 v38, 3, v37
v_sub_u32 v38, v34, v38
v_mul_u32_u24 v37, 1152, v37
v_mul_u32_u24 v38, 76, v38
v_add3_u32 v36, v36, v37, v38
v_add_u32 v36, s23, v36
v_cndmask_b32 v36, v30, v36, vcc
v_cmp_gt_u32 vcc, 36, v1
""")
    if codepf:
        p.e('''
s_getpc_b64 s[44:45]
K0_pc:
s_add_u32 s44, s44, CODE_BEGIN-K0_pc
s_addc_u32 s45, s45, 0
s_mov_b32 s46, CODE_END-CODE_BEGIN
s_mov_b32 s47, 0x20000
s_cmp_lt_u32 s2, 8
s_cselect_b32 s46, s46, 0
v_lshlrev_b32 v52, 7, v0
buffer_load_dword v53, v52, s[44:47], 0 offen
''')
    p.stamp('issued')
    p.e("s_waitcnt vmcnt(%d)" % (1 if codepf else 0))
    p.stamp('xin')
    for i in range(8):
        p.e(f'v_lshlrev_b32 v{12+2*i}, 16, v{4+i}\nv_and_b32 v{13+2*i}, 0xffff0000, v{4+i}')
    def reduce(r):
        p.e(f"""
s_nop 1
v_add_f32_dpp v{r}, v{r}, v{r} quad_perm:[1,0,3,2] row_mask:0xf bank_mask:0xf
s_nop 1
v_add_f32_dpp v{r}, v{r}, v{r} quad_perm:[2,3,0,1] row_mask:0xf bank_mask:0xf
s_nop 1
v_add_f32_dpp v{r}, v{r}, v{r} row_half_mirror row_mask:0xf bank_mask:0xf
s_nop 1
v_add_f32_dpp v{r}, v{r}, v{r} row_mirror row_mask:0xf bank_mask:0xf
s_nop 1
v_readlane_b32 s16, v{r}, 0
v_readlane_b32 s17, v{r}, 16
v_readlane_b32 s18, v{r}, 32
s_nop 1
v_mov_b32 v{r}, s16
v_add_f32 v{r}, s17, v{r}
v_add_f32 v{r}, s18, v{r}
v_mul_f32 v{r}, {hex(f2u(1.0/576))}, v{r}
""")
    p.e('v_add_f32 v4, v12, v13\nv_add_f32 v5, v14, v15\nv_add_f32 v6, v16, v17\nv_add_f32 v7, v18, v19')
    p.e('v_add_f32 v8, v20, v21\nv_add_f32 v9, v22, v23\nv_add_f32 v10, v24, v25\nv_add_f32 v11, v26, v27')
    p.e('v_add_f32 v4, v4, v5\nv_add_f32 v6, v6, v7\nv_add_f32 v8, v8, v9\nv_add_f32 v10, v10, v11')
    p.e('v_add_f32 v4, v4, v6\nv_add_f32 v8, v8, v10\nv_add_f32 v4, v4, v8')
    reduce(4)
    p.e('v_mov_b32 v5, 0\nv_mov_b32 v6, 0')
    for i in range(16):
        t = 8 + (i & 3)
        p.e(f'v_sub_f32 v{t}, v{12+i}, v4')
        p.e(f'v_fmac_f32 v{5 + (i & 1)}, v{t}, v{t}')
    p.e('v_add_f32 v5, v5, v6\nv_cndmask_b32 v5, 0, v5, vcc')
    reduce(5)
    p.e(f"""
v_cvt_pk_bf16_f32 v4, v4, v5
v_and_b32 v5, 0xffff0000, v4
v_lshlrev_b32 v4, 16, v4
v_add_f32 v5, {hex(f2u(1e-5))}, v5
v_cvt_pk_bf16_f32 v5, v5, v5
v_lshlrev_b32 v5, 16, v5
v_sqrt_f32 v5, v5
s_nop 0
v_cvt_pk_bf16_f32 v5, v5, v5
v_lshlrev_b32 v5, 16, v5
v_rcp_f32 v5, v5
""")
    for i in range(16):
        p.e(f'v_sub_f32 v{12+i}, v{12+i}, v4')
    for i in range(8):
        p.e(f'v_cvt_pk_bf16_f32 v{44+i}, v{12+2*i}, v{13+2*i}')
    for i in range(8):
        p.e(f'v_lshlrev_b32 v{12+2*i}, 16, v{44+i}\nv_and_b32 v{13+2*i}, 0xffff0000, v{44+i}')
    for i in range(16):
        p.e(f'v_mul_f32 v{12+i}, v{12+i}, v5')
    for i in range(8):
        p.e(f'v_cvt_pk_bf16_f32 v{44+i}, v{12+2*i}, v{13+2*i}')
    p.e(f"""
buffer_store_dwordx4 v[44:47], v31, s[12:15], 0 offen
buffer_store_dwordx4 v[48:51], v31, s[12:15], 0 offen offset:{256 if new_layout else 512}
""")
    if prefetch:
        p.e("""
buffer_load_dword v40, v35, s[32:35], 0 offen
buffer_load_dword v41, v35, s[36:39], 0 offen
buffer_load_dword v42, v36, s[40:43], 0 offen
""")
    if Prog.STAMPS:
        p.e('v_lshrrev_b32 v1, 6, v0\ns_nop 1\nv_readfirstlane_b32 s50, v1\ns_mov_b32 s14, %d' % WS_SIZE)
        p.dump_stamps(0, 50, WS_ST, srd='s[12:15]')
    p.label('K0_done')
    p.e('s_endpgm')
    return p

B0 = 0
B1 = 82944
K1_LDS = B1 + 73728

def gen_k1(store_flags=''):
    p = Prog()
    ACC = [0, 64]
    P_, Q_ = 8, 72
    S_ = 136
    FB = 168
    XV = 192
    T_ = 224
    vL16 = 232
    vDF, vDM, vDQ = 233, 236, 239
    vTR = 242
    vTM, vTA, vTB = 248, 249, 250
    vSC, vAD = 251, 252
    vKV0, vKV1 = 253, 254
    def X(tt, s):
        n = tt*36 + s
        return f'a[{4*n}:{4*n+3}]' if n < 64 else vr(XV + 4*(n-64), 4)
    sW, sC, sR, sQ = 20, 21, 22, 23
    sCol, sColM, sW3, sSo = 25, 26, 27, 30
    sXN, sH0, sHM, sQF, sKV, sT = 31, 32, 33, 34, 35, 28
    sQS = 40
    sMM = 48
    sNL, sCQ = 50, 51
    p.e(f"""
s_cmp_ge_u32 s2, 256
s_cbranch_scc1 K1_done
""")
    p.stamp('start'); p.stamp('rstart', True)
    p.e(f"""
s_load_dwordx2 s[52:53], s[0:1], 72
s_load_dwordx4 s[56:59], s[0:1], 32
s_load_dwordx2 s[54:55], s[0:1], 8
v_lshrrev_b32 v1, 6, v0
v_and_b32 v0, 63, v0
v_readfirstlane_b32 s{sW}, v1
s_and_b32 s{sQ}, s2, 7
s_lshr_b32 s3, s2, 3
s_and_b32 s24, s3, 3
s_lshr_b32 s{sR}, s3, 2
s_lshl_b32 s{sC}, s{sQ}, 2
s_add_u32 s{sC}, s{sC}, s24
s_mul_i32 s{sCol}, s{sQ}, 1152
s_lshl_b32 s3, s24, 5
s_add_u32 s{sColM}, s{sCol}, s3
s_add_u32 s{sColM}, s{sColM}, 1024
s_lshl_b32 s3, s24, 8
s_add_u32 s{sCol}, s{sCol}, s3
s_mul_i32 s{sW3}, s{sW}, 3072
s_lshl_b32 s{sT}, s{sR}, 3
s_lshl_b32 s3, s{sW}, 1
s_add_u32 s{sT}, s{sT}, s3
s_mul_i32 s{sXN}, s{sT}, {36*1024}
v_lshlrev_b32 v{vL16}, 4, v0
""")
    p.e(f"""
v_lshrrev_b32 v2, 3, v0
v_and_b32 v3, 7, v0
v_and_b32 v4, 2, v2
v_lshlrev_b32 v4, 1, v4
v_xor_b32 v3, v3, v4
s_mul_i32 s3, s{sW}, 24
v_add_u32 v2, s3, v2
v_mul_u32_u24 v2, 9216, v2
v_lshl_add_u32 v{vDF}, v3, 4, v2
v_add_u32 v{vDF+1}, {8*9216-1024}, v{vDF}
v_add_u32 v{vDF+2}, {2*(8*9216-1024)}, v{vDF}
s_waitcnt lgkmcnt(0)
""")
    srd(p, 4, 52, WS_SIZE)
    srd(p, 8, 56, 576*4608*2)
    srd(p, 12, 58, 576*4608*2)
    srd(p, 16, 54, 576*1728*2)

    def dma_full(g_srd, colreg, coladd, buf, i):
        ops = [('s', f's_add_u32 m0, s{sW3}, {buf + i*12288}\ns_add_u32 s{sSo}, s{colreg}, {coladd + i*96*9216}')]
        for j in range(3):
            ops.append(('dma', f'buffer_load_dwordx4 v{vDF+j}, s[{g_srd}:{g_srd+3}], s{sSo} offen offset:{1024*j} lds'))
        return ops
    def xload(tt, s):
        n = tt*36 + s
        return n
    xtok = {}
    dtok = {}
    def emit_xchunk(j):
        ops = []
        for half in range(2):
            s0 = 6*j + 3*half
            ops.append(('s', f's_add_u32 s60, s{sXN}, {WS_XN + s0*1024}\ns_add_u32 s61, s{sXN}, {WS_XN + (36+s0)*1024}'))
            for s in range(s0, s0+3):
                for tt in range(2):
                    ops.append(('x', (tt, s), f'buffer_load_dwordx4 {X(tt,s)}, v{vL16}, s[4:7], s{60+tt} offen offset:{(s-s0)*1024}'))
        return ops
    def do_op(op):
        if op[0] == 's': p.e(op[1])
        elif op[0] == 'dma': dtok['last'] = p.vm(op[1])
        elif op[0] == 'x': xtok[op[1]] = p.vm(op[2])
        elif op[0] == 'st': p.vm(op[1])
        elif op[0] == 'v': p.e(op[1])
        elif op[0] == 'mark': dtok[op[1]] = dtok['last']
    pro = []
    for j in range(6):
        pro.append(dma_full(8, sCol, 0, B0, j) + [('mark', ('G0', j))] + emit_xchunk(j))
    for j in range(4):
        for op in pro[j]: do_op(op)
    p.e(f"""
v_lshrrev_b32 v1, 4, v0
v_and_b32 v2, 15, v0
v_lshrrev_b32 v3, 1, v1
v_and_b32 v4, 1, v1
v_lshrrev_b32 v5, 2, v2
v_and_b32 v6, 3, v2
v_lshl_add_u32 v7, v3, 3, v5
""")
    p.e(f"""
v_lshrrev_b32 v{T_}, 1, v5
v_lshlrev_b32 v{T_}, 6, v{T_}
v_lshl_add_u32 v{T_}, v7, 7, v{T_}
v_lshl_add_u32 v{T_}, v4, 5, v{T_}
v_lshl_add_u32 v{vTR}, v6, 3, v{T_}
v_xor_b32 v{vTR+1}, 64, v{vTR}
v_add_u32 v{vTR+2}, 0x10000, v{vTR}
v_add_u32 v{vTR+3}, 0x10000, v{vTR+1}
v_add_u32 v{vTR+4}, 0x20000, v{vTR}
v_add_u32 v{vTR+5}, 0x20000, v{vTR+1}
v_mul_u32_u24 v{T_}, 18560, v4
v_lshl_add_u32 v{T_}, v7, 5, v{T_}
v_lshl_add_u32 v{T_}, v6, 3, v{T_}
v_add_u32 v{vTM}, {B1}, v{T_}
v_mul_u32_u24 v{T_}, 48, v7
v_mul_u32_u24 v{T_+1}, 27648, v4
v_lshl_add_u32 v{T_+2}, v6, 3, v{T_}
v_add_u32 v{vTA}, v{T_+1}, v{T_+2}
v_add_u32 v{T_+2}, {2*27648}, v{T_+2}
v_add_u32 v{T_+3}, 2, v6
v_mul_u32_u24 v{T_+4}, 11, v{T_+3}
v_lshrrev_b32 v{T_+4}, 5, v{T_+4}
v_mul_u32_u24 v{T_+4}, 3, v{T_+4}
v_sub_u32 v{T_+3}, v{T_+3}, v{T_+4}
v_mul_u32_u24 v{T_+3}, 27648, v{T_+3}
v_add3_u32 v{T_+3}, v{T_+3}, v{T_}, 32
v_cmp_eq_u32 vcc, 1, v4
s_nop 1
v_cndmask_b32 v{vTB}, v{T_+2}, v{T_+3}, vcc
""")
    assert B0 == 0
    p.e(f"""
v_lshrrev_b32 v{T_}, 1, v0
s_and_b32 s3, s{sW}, 1
s_mul_i32 s62, s3, 96
v_add_u32 v{T_}, s62, v{T_}
v_mul_u32_u24 v{T_}, 9216, v{T_}
v_and_b32 v{T_+1}, 1, v0
v_lshl_add_u32 v{vDM}, v{T_+1}, 4, v{T_}
v_add_u32 v{vDM+1}, {32*9216-1024}, v{vDM}
v_add_u32 v{vDM+2}, {2*(32*9216-1024)}, v{vDM}
s_mul_i32 s{sMM}, s3, 3072
s_lshr_b32 s3, s{sW}, 1
s_mul_i32 s62, s3, 18560
s_add_u32 s{sMM}, s{sMM}, s62
s_cmp_eq_u32 s3, 0
s_cselect_b32 s36, s56, s58
s_cselect_b32 s37, s57, s59
s_mov_b32 s38, {576*4608*2}
s_mov_b32 s39, 0x20000
""")
    for j in range(3):
        p.e(f"""
v_add_u32 v{T_}, {64*j}, v0
v_mul_u32_u24 v{T_+1}, 171, v{T_}
v_lshrrev_b32 v{T_+1}, 9, v{T_+1}
v_mul_u32_u24 v{T_+2}, 3, v{T_+1}
v_sub_u32 v{T_+2}, v{T_}, v{T_+2}
v_mul_u32_u24 v{T_+1}, 3456, v{T_+1}
v_lshl_add_u32 v{vDQ+j}, v{T_+2}, 4, v{T_+1}
""")
        if j: p.e(f'v_subrev_u32 v{vDQ+j}, {1024*j}, v{vDQ+j}')
    p.e(f's_mul_i32 s63, s{sC}, 36')
    for i in range(7):
        p.e(f"""
s_add_u32 s3, s{sW}, {4*i}
s_min_u32 s3, s3, 26
s_mul_i32 s62, s3, 57
s_lshr_b32 s62, s62, 9
s_mul_i32 s{sQS+i}, s3, {64*3456}
s_mul_i32 s62, s62, {9*64*3456 - 1152}
s_sub_u32 s{sQS+i}, s{sQS+i}, s62
s_add_u32 s{sQS+i}, s{sQS+i}, s63
""")
    p.e(f's_mul_i32 s{sQS+7}, s3, 3072')
    p.e(f"""
s_mul_i32 s{sH0}, s{sT}, {288*1024}
s_lshl_b32 s3, s{sColM}, 5
s_add_u32 s{sHM}, s{sH0}, s3
s_add_u32 s{sHM}, s{sHM}, {WS_H}
s_lshl_b32 s3, s{sCol}, 5
s_add_u32 s{sH0}, s{sH0}, s3
s_add_u32 s{sH0}, s{sH0}, {WS_H}
s_lshl_b32 s3, s{sC}, 6
s_add_u32 s3, s3, s{sT}
s_lshl_b32 s{sQF}, s3, 10
s_add_u32 s{sQF}, s{sQF}, {WS_QF}
s_mul_i32 s{sKV}, s3, 3072
s_add_u32 s{sKV}, s{sKV}, {WS_KV}
s_mov_b32 s{sNL}, {hex(f2u(-LOG2E))}
s_mov_b32 s{sCQ}, {hex(f2u(CQ))}
""")
    p.e(f"""
v_and_b32 v{T_}, 31, v0
v_mov_b32 v{vSC}, 1.0
v_mov_b32 v{vAD}, 0
v_mov_b32 v{T_+1}, s{sCQ}
v_and_b32 v{T_+2}, 30, v{T_}
v_cmp_eq_u32 vcc, 20, v{T_+2}
v_and_b32 v{T_+2}, 27, v{T_}
s_nop 0
v_cndmask_b32 v{vSC}, v{vSC}, v{T_+1}, vcc
v_cmp_eq_u32 vcc, 18, v{T_+2}
v_mov_b32 v{T_+1}, 1.0
s_nop 0
v_cndmask_b32 v{vAD}, v{vAD}, v{T_+1}, vcc
v_mov_b32 v{T_+1}, 0
s_nop 0
v_cndmask_b32 v{vSC}, v{vSC}, v{T_+1}, vcc
""")
    for u in range(2):
        p.e(f"""
v_lshl_add_u32 v{T_+1}, v3, 1, v{T_}
v_add_u32 v{T_+1}, {4*u}, v{T_+1}
v_and_b32 v{T_+1}, 7, v{T_+1}
v_or_b32 v{T_+1}, 24, v{T_+1}
v_cmp_le_u32 vcc, 24, v{T_}
s_nop 1
v_cndmask_b32 v{T_+1}, v{T_}, v{T_+1}, vcc
v_lshl_add_u32 v{T_+1}, v3, 5, v{T_+1}
v_lshlrev_b32 v{vKV0+u}, 4, v{T_+1}
""")

    def rd_full(buf):
        def f(s, fr, u):
            off = buf + s*2048 + u*512
            return f'v{vTR + 2*(off >> 16) + fr}', off & 0xffff
        return f
    steps = []
    def add_group(name, kind, buf, acc):
        if kind == 'full' or kind == 'qkv':
            for s in range(36):
                if kind == 'full':
                    rd = [rd_full(buf)(s, fr, u) for fr in range(2) for u in range(2)]
                else:
                    rd = [(f'v{vTA if fr == 0 else vTB}', s*768 + u*192) for fr in range(2) for u in range(2)]
                mf = [(acc + 32*fr + 16*tt, fr, (kind == 'qkv' and fr == 1), (tt, s), s == 0) for fr in range(2) for tt in range(2)]
                steps.append(dict(g=name, i=s, rd=rd, mf=mf))
        else:
            for s2 in range(18):
                rd = [(f'v{vTM}', (2*s2+fr)*512 + u*128) for fr in range(2) for u in range(2)]
                mf = [(acc + 16*tt, fr, False, (tt, 2*s2+fr), (2*s2+fr) == 0) for fr in range(2) for tt in range(2)]
                steps.append(dict(g=name, i=s2, rd=rd, mf=mf))
    add_group('G0', 'full', B0, P_)
    add_group('U0', 'full', B1, Q_)
    add_group('G1', 'full', B0, P_)
    add_group('U1', 'full', B1, Q_)
    add_group('QKV', 'qkv', B0, P_)
    add_group('M', 'mix', B1, Q_)
    order = ['G0', 'U0', 'G1', 'U1', 'QKV', 'M']

    def V(t, c=4): return ('v', t, c)
    def epi_G(acc):
        ops = []
        for tile in range(4):
            for b in range(4):
                r = acc + 16*tile + 4*b
                ops += [V(f'v_mul_f32 v{r+k}, s{sNL}, v{r+k}') for k in range(4)]
                ops += [V(f'v_exp_f32 v{r+k}, v{r+k}', 8) for k in range(4)]
                ops += [V(f'v_add_f32 v{r+k}, 1.0, v{r+k}') for k in range(4)]
                ops += [V(f'v_cvt_pk_bf16_f32 v{S_ + 8*tile + 2*b + k}, v{r+2*k}, v{r+2*k+1}') for k in range(2)]
        return ops
    def epi_U(acc, hadd):
        ops = [('s', f's_add_u32 s60, s{sH0}, {hadd}\ns_add_u32 s61, s{sH0}, {hadd + 288*1024}')]
        for tile in range(4):
            fr, tt = tile >> 1, tile & 1
            for b in range(4):
                r = acc + 16*tile + 4*b
                sreg = S_ + 8*tile + 2*b
                t = T_ + 4*(b & 1)
                ops += [V(f'v_lshlrev_b32 v{t}, 16, v{sreg}'), V(f'v_and_b32 v{t+1}, 0xffff0000, v{sreg}'),
                        V(f'v_lshlrev_b32 v{t+2}, 16, v{sreg+1}'), V(f'v_and_b32 v{t+3}, 0xffff0000, v{sreg+1}')]
                ops += [V(f'v_rcp_f32 v{t+k}, v{t+k}', 8) for k in range(4)]
                ops += [V(f'v_mul_f32 v{r+k}, v{r+k}, v{t+k}') for k in range(4)]
                ops += [V(f'v_cvt_pk_bf16_f32 v{sreg+k}, v{r+2*k}, v{r+2*k+1}') for k in range(2)]
                if b & 1:
                    q = S_ + 8*tile + 4*(b >> 1)
                    ops.append(('st', f'buffer_store_dwordx4 v[{q}:{q+3}], v{vL16}, s[4:7], s{60+tt} offen offset:{(2*fr + (b>>1))*1024}{store_flags}'))
        return ops
    def epi_QKV(acc):
        ops = [('s', f's_add_u32 s60, s{sQF}, 1024\ns_add_u32 s61, s{sKV}, 3072')]
        for tt in range(2):
            r = acc + 16*tt
            q = S_ + 8*tt
            ops += [V(f'v_mul_f32 v{r+k}, s{sCQ}, v{r+k}') for k in range(8)]
            ops += [V(f'v_cvt_pk_bf16_f32 v{q+k}, v{r+2*k}, v{r+2*k+1}') for k in range(8)]
            ops.append(('st', f'buffer_store_dwordx4 v[{q}:{q+3}], v{vL16}, s[4:7], s{sQF if tt == 0 else 60} offen{store_flags}'))
            ops.append(('st', f'buffer_store_dwordx4 v[{q+4}:{q+7}], v{vL16}, s[4:7], s{sKV if tt == 0 else 61} offen{store_flags}'))
        for tt in range(2):
            r = acc + 32 + 16*tt
            q = S_ + 16 + 8*tt
            ops += [V(f'v_fma_f32 v{r+k}, v{r+k}, v{vSC}, v{vAD}') for k in range(16)]
            ops += [V(f'v_cvt_pk_bf16_f32 v{q+k}, v{r+2*k}, v{r+2*k+1}') for k in range(8)]
            for u in range(2):
                ops.append(('st', f'buffer_store_dwordx4 v[{q+4*u}:{q+4*u+3}], v{vKV0+u}, s[4:7], s{sKV if tt == 0 else 61} offen offset:{1024*(1+u)}{store_flags}'))
        return ops
    def epi_M(acc):
        ops = [('s', f's_add_u32 s61, s{sHM}, {288*1024}')]
        for tt in range(2):
            r = acc + 16*tt
            q = T_ + 4*tt
            ops += [V(f'v_mul_f32 v{r+k}, s{sNL}, v{r+k}') for k in range(8)]
            ops += [V(f'v_exp_f32 v{r+k}, v{r+k}', 8) for k in range(8)]
            ops += [V(f'v_add_f32 v{r+k}, 1.0, v{r+k}') for k in range(8)]
            ops += [V(f'v_rcp_f32 v{r+k}, v{r+k}', 8) for k in range(8)]
            ops += [V(f'v_mul_f32 v{r+k}, v{r+k}, v{r+8+k}') for k in range(8)]
            ops += [V(f'v_cvt_pk_bf16_f32 v{q+k}, v{r+2*k}, v{r+2*k+1}') for k in range(4)]
            ops.append(('st', f'buffer_store_dwordx4 v[{q}:{q+3}], v{vL16}, s[4:7], s{sHM if tt == 0 else 61} offen{store_flags}'))
        return ops
    def dma_group(name):
        ops = []
        if name in ('U0', 'G1', 'U1'):
            g, add, buf = {'U0': (12, 0, B1), 'G1': (8, 128, B0), 'U1': (12, 128, B1)}[name]
            for i in range(6): ops += dma_full(g, sCol, add, buf, i)
        elif name == 'QKV':
            for i in range(7):
                m0 = f's_add_u32 m0, s{sW3}, {B0 + i*12288}' if i < 6 else f's_add_u32 m0, s{sQS+7}, {B0}'
                ops.append(('s', m0 + '\ns_nop 0'))
                for j in range(3):
                    ops.append(('dma', f'buffer_load_dwordx4 v{vDQ+j}, s[16:19], s{sQS+i} offen offset:{1024*j} lds'))
        elif name == 'M':
            for i in range(3):
                ops.append(('s', f's_add_u32 m0, s{sMM}, {B1 + i*6144}\ns_add_u32 s{sSo}, s{sColM}, {i*192*9216}'))
                for j in range(3):
                    ops.append(('dma', f'buffer_load_dwordx4 v{vDM+j}, s[36:39], s{sSo} offen offset:{1024*j} lds'))
        ops.append(('mark', (name, 0)))
        return ops
    mem_q = {
        'G0': pro[4] + pro[5] + dma_group('U0'),
        'U0': dma_group('G1'), 'G1': dma_group('U1'), 'U1': dma_group('QKV'), 'QKV': dma_group('M'), 'M': []}
    epi_q = {'G0': [], 'U0': epi_G(P_), 'G1': epi_U(Q_, 0), 'U1': epi_G(P_), 'QKV': epi_U(Q_, 4096), 'M': epi_QKV(P_)}

    rtok = {}
    def issue_read(n, k):
        st = steps[n]
        a, off = st['rd'][k]
        d = FB + 8*(n % 3) + 2*k
        rtok[n] = p.ds(f'ds_read_b64_tr_b16 v[{d}:{d+1}], {a} offset:{off}')
    def sync_for(n):
        st = steps[n]
        if st['g'] == 'G0':
            return ('G0', st['i'] // 6) if st['i'] % 6 == 0 else None
        return (st['g'], 0) if st['i'] == 0 else None
    p.stamp('setup')
    p.wait(vm=dtok[('G0', 0)]); p.e('s_barrier')
    p.stamp('first')
    for n in range(2):
        for k in range(4): issue_read(n, k)
    N = len(steps)
    cur = None
    for n in range(N):
        st = steps[n]
        if st['g'] != cur:
            cur = st['g']
            p.stamp(cur)
            ngaps = 4 * sum(1 for s in steps if s['g'] == cur)
            mq = list(mem_q[cur]); eq = list(epi_q[cur])
            tot = sum(o[2] for o in eq if o[0] == 'v')
            skip = 3
            rate = tot / max(1, (ngaps - skip - 10))
            credit = 0.0; gi = 0
            memgap = 2 if cur == 'G0' else 3
        sy = sync_for(n+2) if n + 2 < N else None
        rk = 0
        for m in range(4):
            acc, fr, swap, xid, first = st['mf'][m]
            need_vm = xtok[xid] if xid in xtok else None
            assert need_vm is not None, xid
            p.wait(lgkm=rtok[n] if m == 0 else None, vm=need_vm)
            fa = vr(FB + 8*(n % 3) + 4*fr, 4)
            a, b = (X(*xid), fa) if swap else (fa, X(*xid))
            p.e(f'v_mfma_f32_32x32x16_bf16 v[{acc}:{acc+15}], {a}, {b}, {"0" if first else vr(acc,16)}')
            used = 0
            if n + 2 < N:
                if sy is None:
                    issue_read(n+2, rk); rk += 1
                elif m == 1:
                    full = (sy[0] != 'G0')
                    p.wait(vm=dtok[sy], lgkm=(p.lgkm_issued if full else None))
                    p.e('s_barrier')
                    issue_read(n+2, 0); issue_read(n+2, 1); used += 12
                elif m >= 2:
                    issue_read(n+2, m)
            if mq and gi % memgap == 0 and gi >= 0:
                while mq and mq[0][0] in ('s', 'mark'):
                    o = mq.pop(0); do_op(o)
                    if o[0] == 's': used += 8
                if mq:
                    do_op(mq.pop(0)); used += 4
                while mq and mq[0][0] == 'mark': do_op(mq.pop(0))
            if gi >= skip:
                credit += rate
                while eq and eq[0][0] in ('s', 'st') and used < 12:
                    do_op(eq.pop(0)); used += 4
                while eq and eq[0][0] == 'v' and credit >= eq[0][2] - 0.01 and used + eq[0][2] <= 16:
                    o = eq.pop(0); do_op(o); credit -= o[2]; used += o[2]
            gi += 1
        if n + 1 == N or steps[n+1]['g'] != cur:
            assert not mq, (cur, len(mq))
            if eq:
                p.comment(f'leftover epilogue ops in {cur}: {len(eq)}')
                print('leftover', cur, len(eq))
                for o in eq: do_op(o)
    p.e('s_nop 7\ns_nop 3')
    p.stamp('tail')
    for o in epi_M(Q_): do_op(o)
    p.dump_stamps(1, sW, WS_ST)
    p.label('K1_done')
    p.e('s_endpgm')
    return p

if __name__ == '__main__':
    for nm, g in (('k0', gen_k0), ('k1', gen_k1)):
        p = g()
        pr = check_hazards(p.lines, nm)
        print(nm, len(p.lines), 'lines;', len(pr), 'hazards')
        for x in pr[:20]: print(x)
```

```python
from k01 import *

K2A_LDS = 3*24576
def gen_k2a(force_fallback=False):
    p = Prog()
    S0, S1, O_, P_ = 8, 24, 40, 56
    K_, V0, V1, Q_ = 64, 68, 72, 76
    KX, QX = 80, 82
    vA, vA2, vX, vX2 = 84, 85, 86, 87
    C_ = 88
    sW, sH, sT = 20, 21, 22
    sKV, sW3, sSo, sG = 23, 24, 25, 26
    p.e(f"""
s_cmp_ge_u32 s2, 256
s_cbranch_scc1 K2A_done
""")
    p.stamp('start'); p.stamp('rstart', True)
    p.e(f"""
s_load_dwordx2 s[8:9], s[0:1], 72
v_lshrrev_b32 v1, 6, v0
v_and_b32 v0, 63, v0
v_readfirstlane_b32 s{sW}, v1
s_and_b32 s3, s2, 7
s_lshr_b32 s12, s2, 3
s_and_b32 s13, s12, 3
s_lshl_b32 s{sH}, s3, 2
s_add_u32 s{sH}, s{sH}, s13
s_lshr_b32 s12, s12, 2
s_lshl_b32 s{sT}, s12, 3
s_add_u32 s{sT}, s{sT}, s{sW}
s_mul_i32 s{sG}, s{sH}, {64*3072}
s_add_u32 s{sG}, s{sG}, {WS_KV}
s_mul_i32 s{sW3}, s{sW}, 3072
s_add_u32 s{sKV}, s{sG}, s{sW3}
v_lshlrev_b32 v{vA}, 4, v0
s_waitcnt lgkmcnt(0)
""")
    srd(p, 4, 8, WS_SIZE)
    def dma(ch):
        p.e(f's_add_u32 m0, s{sW3}, {(ch % 3)*24576}\ns_add_u32 s{sSo}, s{sKV}, {ch*24576}')
        for j in range(3):
            t = p.vm(f'buffer_load_dwordx4 v{vA}, s[4:7], s{sSo} offen offset:{1024*j} lds')
        return t
    dt = {}
    dt[0] = dma(0)
    p.e(f"""
v_lshrrev_b32 v2, 5, v0
v_bfe_u32 v3, v0, 4, 1
v_bfe_u32 v4, v0, 2, 1
v_bfe_u32 v5, v0, 3, 1
v_and_b32 v6, 3, v0
v_lshl_add_u32 v6, v5, 2, v6
v_lshlrev_b32 v6, 1, v6
v_lshl_add_u32 v6, v3, 10, v6
v_lshl_add_u32 v6, v4, 9, v6
v_lshl_add_u32 v6, v2, 4, v6
v_and_b32 v7, 3, v0
v_lshl_add_u32 v7, v3, 2, v7
v_lshlrev_b32 v7, 1, v7
v_lshl_add_u32 v7, v5, 10, v7
v_lshl_add_u32 v7, v4, 9, v7
v_lshl_add_u32 v7, v2, 4, v7
v_add_u32 v7, {1024 + 20*16}, v7
v_lshl_add_u32 v6, v4, 5, v6
v_lshl_add_u32 v6, v3, 6, v6
v_add_u32 v{vX}, {1024 + 24*16}, v6
v_add_u32 v{vA2}, 49152, v{vA}
v_add_u32 v{vX2}, 49152, v{vX}
s_lshl_b32 s12, s{sH}, 6
s_add_u32 s12, s12, s{sT}
s_lshl_b32 s13, s12, 10
s_add_u32 s13, s13, {WS_QF}
s_mul_i32 s14, s12, 3072
s_add_u32 s14, s14, {WS_KV}
""")
    p.vm(f'buffer_load_dwordx4 v[{Q_}:{Q_+3}], v{vA}, s[4:7], s13 offen')
    qt = p.vm(f'buffer_load_ushort v{QX}, v7, s[4:7], s14 offen')
    dt[1] = dma(1)
    p.e(f'v_mov_b32 v{QX+1}, 0\nv_mov_b32 v{KX+1}, 0')
    def laddr(i, part):
        off = ((i >> 3) % 3)*24576 + (i & 7)*3072
        if part == 'x':
            return (f'v{vX}', off) if off < 49152 else (f'v{vX2}', off - 49152)
        off += {'k': 0, 'v0': 1024, 'v1': 2048}[part]
        return (f'v{vA}', off) if off < 49152 else (f'v{vA2}', off - 49152)
    tk = {}
    def rd(i, part):
        if i > 63: return
        if part == 'k' and i % 8 == 0:
            ch = i // 8
            p.wait(vm=dt[ch]); p.e('s_barrier')
            if ch >= 1 and ch + 1 < 8: dt[ch+1] = dma(ch+1)
        a, off = laddr(i, part)
        if part == 'x': tk[(i, part)] = p.ds(f'ds_read_u16 v{KX}, {a} offset:{off}')
        else:
            d = {'k': K_, 'v0': V0, 'v1': V1}[part]
            tk[(i, part)] = p.ds(f'ds_read_b128 v[{d}:{d+3}], {a} offset:{off}')
    Sb = [S0, S1]
    def qk1(i):
        p.wait(lgkm=tk[(i, 'k')])
        p.e(f'v_mfma_f32_32x32x16_bf16 {vr(Sb[i&1],16)}, {vr(K_,4)}, {vr(Q_,4)}, 0')
    def qk2(i):
        p.wait(lgkm=tk[(i, 'x')])
        p.e(f'v_mfma_f32_32x32x8bf16_1k {vr(Sb[i&1],16)}, {vr(KX,2)}, {vr(QX,2)}, {vr(Sb[i&1],16)}')
    def pv(i, u):
        p.wait(lgkm=tk[(i, 'v%d' % u)])
        c = '0' if (i == 0 and u == 0) else vr(O_, 16)
        p.e(f'v_mfma_f32_32x32x16_bf16 {vr(O_,16)}, {vr(V0 if u == 0 else V1,4)}, {vr(P_+4*u,4)}, {c}')
    def ex(i, a, b):
        for k in range(a, b): p.e(f'v_exp_f32 v{Sb[i&1]+k}, v{Sb[i&1]+k}')
    def cv(i, u):
        for k in range(4*u, 4*u+4): p.e(f'v_cvt_pk_bf16_f32 v{P_+k}, v{Sb[i&1]+2*k}, v{Sb[i&1]+2*k+1}')
    rd(0, 'k'); rd(0, 'x'); rd(0, 'v0')
    p.wait(vm=qt)
    qk1(0); rd(1, 'k'); qk2(0); rd(1, 'x')
    p.e('s_nop 7')
    for i in range(64):
        if i % 8 == 0: p.stamp(f't{i}')
        if i + 1 < 64: qk1(i+1); rd(i+2, 'k')
        ex(i, 0, 4)
        if i > 0: pv(i-1, 1)
        rd(i, 'v1')
        ex(i, 4, 8); cv(i, 0)
        if i + 1 < 64: qk2(i+1); rd(i+2, 'x')
        ex(i, 8, 12)
        pv(i, 0); rd(i+1, 'v0')
        ex(i, 12, 16); cv(i, 1)
    p.e('s_nop 1')
    pv(63, 1)
    p.e('s_nop 7\ns_nop 3')
    p.e(f"""
v_mov_b32 v1, {hex(f2u(2.0**-64))}
v_mov_b32 v2, {hex(f2u(2.0**64))}
v_cmp_nge_f32 vcc, v{O_+10}, v1
v_cmp_nle_f32 s[16:17], v{O_+10}, v2
s_or_b64 vcc, vcc, s[16:17]
""")
    if force_fallback: p.e('s_branch K2A_fallback')
    p.e('s_cbranch_vccnz K2A_fallback')
    p.label('K2A_finish')
    p.e(f"""
v_rcp_f32 v1, v{O_+10}
s_mul_i32 s12, s{sT}, {36*1024}
s_lshl_b32 s13, s{sH}, 10
s_add_u32 s13, s13, s12
s_add_u32 s13, s13, {WS_OF}
s_lshr_b32 s14, s{sH}, 3
s_lshl_b32 s14, s14, 10
s_add_u32 s14, s14, s12
s_bfe_u32 s15, s{sH}, 0x10002
s_lshl_b32 s15, s15, 9
s_add_u32 s14, s14, s15
s_and_b32 s15, s{sH}, 3
s_lshl_b32 s15, s15, 2
s_add_u32 s14, s14, s15
s_add_u32 s14, s14, {WS_OF + 32*1024}
""")
    for k in range(10): p.e(f'v_mul_f32 v{O_+k}, v{O_+k}, v1')
    for k in range(5): p.e(f'v_cvt_pk_bf16_f32 v{P_+k}, v{O_+2*k}, v{O_+2*k+1}')
    p.e(f"""
buffer_store_dwordx4 v[{P_}:{P_+3}], v{vA}, s[4:7], s13 offen
s_mov_b64 exec, 0xffffffff
buffer_store_dword v{P_+4}, v{vA}, s[4:7], s14 offen
""")
    p.dump_stamps(2, sW, WS_ST)
    p.label('K2A_done')
    p.e('s_endpgm')
    p.label('K2A_fallback')
    p.e(f"""
v_mov_b32 v1, 0xff800000
s_mov_b32 s12, s{sG}
s_mov_b32 s13, 64
""")
    p.label('K2A_fb1')
    p.e(f"""
buffer_load_dwordx4 v[{K_}:{K_+3}], v{vA}, s[4:7], s12 offen
buffer_load_ushort v{KX}, v{vX}, s[4:7], s12 offen
s_waitcnt vmcnt(0)
v_mfma_f32_32x32x16_bf16 {vr(S0,16)}, {vr(K_,4)}, {vr(Q_,4)}, 0
v_mfma_f32_32x32x8bf16_1k {vr(S0,16)}, {vr(KX,2)}, {vr(QX,2)}, {vr(S0,16)}
s_nop 7
s_nop 7
""")
    for k in range(8): p.e(f'v_max3_f32 v1, v1, v{S0+2*k}, v{S0+2*k+1}')
    p.e(f"""
s_add_u32 s12, s12, 3072
s_sub_u32 s13, s13, 1
s_cmp_lg_u32 s13, 0
s_cbranch_scc1 K2A_fb1
v_mov_b32 v2, v1
s_nop 1
v_permlane32_swap_b32 v1, v2
s_nop 1
v_max_f32 v1, v1, v2
""")
    for k in range(16): p.e(f'v_sub_f32 v{C_+k}, 0, v1\nv_mov_b32 v{O_+k}, 0')
    p.e(f's_mov_b32 s12, s{sG}\ns_mov_b32 s13, 64')
    p.label('K2A_fb2')
    p.e(f"""
buffer_load_dwordx4 v[{K_}:{K_+3}], v{vA}, s[4:7], s12 offen
buffer_load_ushort v{KX}, v{vX}, s[4:7], s12 offen
buffer_load_dwordx4 v[{V0}:{V0+3}], v{vA}, s[4:7], s12 offen offset:1024
buffer_load_dwordx4 v[{V1}:{V1+3}], v{vA}, s[4:7], s12 offen offset:2048
s_waitcnt vmcnt(0)
v_mfma_f32_32x32x16_bf16 {vr(S0,16)}, {vr(K_,4)}, {vr(Q_,4)}, {vr(C_,16)}
v_mfma_f32_32x32x8bf16_1k {vr(S0,16)}, {vr(KX,2)}, {vr(QX,2)}, {vr(S0,16)}
s_nop 7
s_nop 7
""")
    for k in range(16): p.e(f'v_exp_f32 v{S0+k}, v{S0+k}')
    p.e('s_nop 0')
    for k in range(8): p.e(f'v_cvt_pk_bf16_f32 v{P_+k}, v{S0+2*k}, v{S0+2*k+1}')
    p.e(f"""
s_nop 1
v_mfma_f32_32x32x16_bf16 {vr(O_,16)}, {vr(V0,4)}, {vr(P_,4)}, {vr(O_,16)}
v_mfma_f32_32x32x16_bf16 {vr(O_,16)}, {vr(V1,4)}, {vr(P_+4,4)}, {vr(O_,16)}
s_add_u32 s12, s12, 3072
s_sub_u32 s13, s13, 1
s_cmp_lg_u32 s13, 0
s_cbranch_scc1 K2A_fb2
s_nop 7
s_nop 7
s_branch K2A_finish
""")
    return p

NSLOT = 6
SLOT = 20480
K2B_LDS = NSLOT*SLOT
def gen_k2b():
    p = Prog()
    ACC = 8
    WF = 88
    HF = 108
    NH = 16
    vL16 = 172; vD = 173
    vDS = 177
    vT = 178
    vTS = 186
    sW, sT, sCB = 20, 21, 22
    sWA, sWB, sHA, sHB, sSh, sW4, sW1, sSo = 23, 24, 25, 26, 27, 28, 29, 30
    p.e(f"""
s_cmp_ge_u32 s2, 256
s_cbranch_scc1 K2B_done
""")
    p.stamp('start'); p.stamp('rstart', True)
    p.e(f"""
s_load_dwordx2 s[12:13], s[0:1], 72
s_load_dwordx2 s[14:15], s[0:1], 48
v_lshrrev_b32 v1, 6, v0
v_and_b32 v0, 63, v0
v_readfirstlane_b32 s{sW}, v1
s_and_b32 s3, s2, 7
s_lshr_b32 s16, s2, 3
s_and_b32 s{sCB}, s16, 3
s_lshr_b32 s16, s16, 2
s_and_b32 s17, s3, 1
s_lshl_b32 s17, s17, 3
s_add_u32 s16, s16, s17
s_lshl_b32 s{sT}, s16, 2
s_add_u32 s{sT}, s{sT}, s{sW}
s_lshr_b32 s31, s3, 1
s_and_b32 s17, s{sCB}, 1
s_mul_i32 s18, s31, 72
s_mul_i32 s19, s17, 36
s_add_u32 s32, s18, s19
s_sub_u32 s33, s18, s19
s_lshr_b32 s34, s{sCB}, 1
s_mul_i32 s34, s34, 576
s_mul_i32 s35, s17, 320
s_add_u32 s35, s35, s34
s_mul_i32 s{sWA}, s32, {16*1152}
s_add_u32 s{sSh}, s{sWA}, s34
s_add_u32 s{sSh}, s{sSh}, 256
s_add_u32 s{sWA}, s{sWA}, s35
s_mul_i32 s{sWB}, s33, {16*1152}
s_add_u32 s{sWB}, s{sWB}, s35
s_mul_i32 s36, s{sT}, {288*1024}
s_add_u32 s36, s36, {WS_H}
s_lshl_b32 s{sHA}, s32, 10
s_add_u32 s{sHA}, s{sHA}, s36
s_lshl_b32 s{sHB}, s33, 10
s_add_u32 s{sHB}, s{sHB}, s36
s_lshl_b32 s{sW4}, s{sW}, 12
s_lshl_b32 s{sW1}, s{sW}, 10
v_lshlrev_b32 v{vL16}, 4, v0
v_lshrrev_b32 v2, 4, v0
v_and_b32 v3, 15, v0
v_lshlrev_b32 v4, 2, v2
v_xor_b32 v3, v3, v4
s_lshl_b32 s3, s{sW}, 4
v_add_u32 v2, s3, v2
v_mul_u32_u24 v2, 1152, v2
v_lshl_add_u32 v{vD}, v3, 4, v2
v_add_u32 v{vD+1}, {4*1152-1024}, v{vD}
v_add_u32 v{vD+2}, {2*(4*1152-1024)}, v{vD}
v_add_u32 v{vD+3}, {3*(4*1152-1024)}, v{vD}
v_lshrrev_b32 v2, 2, v0
v_add_u32 v2, s3, v2
v_mul_u32_u24 v2, 1152, v2
v_and_b32 v3, 3, v0
v_lshl_add_u32 v{vDS}, v3, 4, v2
s_waitcnt lgkmcnt(0)
""")
    srd(p, 4, 12, WS_SIZE)
    srd(p, 8, 14, 4608*576*2)
    dt = {}; ht = {}
    def mem_ops(ci):
        sl = (ci % NSLOT)*SLOT
        wb = sWA if ci < 9 else sWB
        ops = [('s', f's_add_u32 m0, s{sW4}, {sl}\ns_add_u32 s{sSo}, s{wb}, {ci*64*1152}')]
        for j in range(4):
            ops.append(('dma', ci, f'buffer_load_dwordx4 v{vD+j}, s[8:11], s{sSo} offen offset:{1024*j} lds'))
        if ci < 9:
            ops.append(('s', f's_add_u32 m0, s{sW1}, {sl + 16384}\ns_add_u32 s{sSo}, s{sSh}, {ci*64*1152}'))
            ops.append(('dma', ci, f'buffer_load_dwordx4 v{vDS}, s[8:11], s{sSo} offen lds'))
        return ops
    def h_ops(ci):
        hb = sHA if ci < 9 else sHB
        ops = [('s', f's_add_u32 s37, s{hb}, {ci*4096}')]
        for j in range(4):
            s = 4*ci + j
            d = HF + 4*(s % NH)
            ops.append(('h', s, f'buffer_load_dwordx4 v[{d}:{d+3}], v{vL16}, s[4:7], s37 offen offset:{1024*j}'))
        return ops
    def do(o):
        if o[0] == 's': p.e(o[1])
        elif o[0] == 'dma': dt[o[1]] = p.vm(o[2])
        elif o[0] == 'h': ht[o[1]] = p.vm(o[2])
    for ci in range(NSLOT-1):
        for o in mem_ops(ci): do(o)
        if ci < NH//4 - 1:
            for o in h_ops(ci): do(o)
    p.e(f"""
v_lshrrev_b32 v1, 5, v0
v_bfe_u32 v2, v0, 4, 1
v_bfe_u32 v3, v0, 2, 2
v_and_b32 v4, 1, v0
v_bfe_u32 v5, v0, 1, 1
v_lshlrev_b32 v4, 5, v4
v_lshl_add_u32 v4, v2, 4, v4
v_lshl_add_u32 v4, v5, 3, v4
v_lshl_add_u32 v6, v1, 3, v3
v_lshl_add_u32 v7, v6, 8, v4
v_lshl_add_u32 v{vT}, v3, 6, v7
v_xor_b32 v{vT+1}, 64, v{vT}
v_xor_b32 v{vT+2}, 128, v{vT}
v_xor_b32 v{vT+3}, 192, v{vT}
v_lshl_add_u32 v{vTS}, v6, 6, v4
v_add_u32 v{vTS+1}, {3*SLOT}, v{vTS}
""")
    for t in range(4): p.e(f'v_add_u32 v{vT+4+t}, {3*SLOT}, v{vT+t}')
    rt = {}
    mq = []
    def rd(s, t):
        if s > 71 or (t == 4 and s >= 36): return
        ci = s // 4
        if t == 0 and s % 4 == 0:
            p.wait(vm=dt[ci]); p.e('s_barrier')
            if ci >= 1 and ci + NSLOT - 2 < 18: mq.extend(mem_ops(ci + NSLOT - 2))
        sl = ci % NSLOT
        reg, sl = (1, sl - 3) if sl >= 3 else (0, sl)
        for u in range(2):
            if t < 4: a, off = vT + 4*reg + t, sl*SLOT + (s % 4)*4096 + u*1024
            else: a, off = vTS + reg, sl*SLOT + 16384 + (s % 4)*1024 + u*256
            d = WF + 4*t + 2*u
            rt[(s, t)] = p.ds(f'ds_read_b64_tr_b16 v[{d}:{d+1}], v{a} offset:{off}')
    for t in range(5): rd(0, t)
    for s in range(72):
        nt = 5 if s < 36 else 4
        if s % 12 == 0: p.stamp(f's{s}')
        if s % 4 == 0:
            hc = s//4 + NH//4 - 1
            if hc < 18: mq.extend(h_ops(hc))
        for t in range(nt):
            p.wait(lgkm=rt[(s, t)], vm=ht[s])
            a = ACC + 16*t
            p.e(f'v_mfma_f32_32x32x16_bf16 {vr(a,16)}, {vr(WF+4*t,4)}, {vr(HF+4*(s % NH),4)}, {"0" if s == 0 else vr(a,16)}')
            rd(s+1, t)
            if mq:
                if mq[0][0] == 's': do(mq.pop(0))
                do(mq.pop(0))
    assert not mq
    p.e(f"""
s_lshl_b32 s3, s31, 6
s_add_u32 s3, s3, s{sT}
s_mul_i32 s3, s3, 20
s_mul_i32 s16, s{sCB}, 5
s_add_u32 s3, s3, s16
s_lshl_b32 s3, s3, 11
s_add_u32 s16, s3, {WS_DP}
s_add_u32 s17, s16, 4096
s_add_u32 s18, s16, 8192
s_nop 7
""")
    for t in (4, 0, 1, 2, 3):
        a = ACC + 16*t; q = HF + 8*t
        for k in range(8): p.e(f'v_cvt_pk_bf16_f32 v{q+k}, v{a+2*k}, v{a+2*k+1}')
        for hf in range(2):
            p.e(f'buffer_store_dwordx4 v[{q+4*hf}:{q+4*hf+3}], v{vL16}, s[4:7], s{16 + t//2} offen offset:{(t&1)*2048 + hf*1024}')
    p.dump_stamps(2, sW, WS_ST)
    p.label('K2B_done')
    p.e('s_endpgm')
    return p

K3_LDS = 73728
def gen_k3():
    p = Prog()
    OFR = 8
    DPR = 152
    ACC = 216
    XR = 232
    WF = 240
    vL16, vXO = 248, 249
    vD = 250
    vT = 1
    sW, sT, sCT = 20, 21, 22
    p.e(f"""
s_cmp_ge_u32 s2, 288
s_cbranch_scc1 K3_done
""")
    p.stamp('start'); p.stamp('rstart', True)
    p.e(f"""
s_load_dwordx2 s[24:25], s[0:1], 72
s_load_dwordx2 s[26:27], s[0:1], 16
s_load_dwordx2 s[28:29], s[0:1], 0
s_load_dwordx2 s[30:31], s[0:1], 56
v_lshrrev_b32 v1, 6, v0
v_and_b32 v0, 63, v0
v_readfirstlane_b32 s{sW}, v1
s_and_b32 s3, s2, 31
s_lshr_b32 s23, s2, 5
s_and_b32 s32, s{sW}, 1
s_lshr_b32 s33, s{sW}, 1
s_lshl_b32 s{sT}, s3, 1
s_add_u32 s{sT}, s{sT}, s32
s_lshl_b32 s{sCT}, s23, 1
s_add_u32 s{sCT}, s{sCT}, s33
v_lshlrev_b32 v{vL16}, 4, v0
v_lshrrev_b32 v2, 3, v0
v_and_b32 v3, 7, v0
v_and_b32 v4, 2, v2
v_lshlrev_b32 v4, 1, v4
v_xor_b32 v3, v3, v4
s_mul_i32 s34, s{sW}, 24
v_add_u32 v2, s34, v2
v_mul_u32_u24 v2, 1152, v2
v_lshl_add_u32 v{vD}, v3, 4, v2
v_add_u32 v{vD+1}, {8*1152-1024}, v{vD}
v_add_u32 v{vD+2}, {2*(8*1152-1024)}, v{vD}
s_mul_i32 s35, s{sW}, 3072
s_lshl_b32 s36, s23, 7
""")
    p.e(f"""
s_cmp_ge_u32 s{sCT}, 9
s_cselect_b32 s37, 1, 0
s_add_u32 s37, s37, s{sCT}
s_mul_i32 s38, s{sT}, 20
s_add_u32 s38, s38, s37
s_lshl_b32 s38, s38, 11
s_add_u32 s38, s38, {WS_DP}
s_add_u32 s39, s38, {5*2048}
s_cmp_eq_u32 s37, 4
s_cselect_b32 s40, 1, 0
s_cmp_eq_u32 s37, 14
s_cselect_b32 s40, 1, s40
s_cmp_eq_u32 s40, 1
s_cselect_b32 s40, 0, 0x7ff00000
v_add_u32 v253, s40, v{vL16}
s_mul_i32 s41, s{sT}, {36*1024}
s_add_u32 s41, s41, {WS_OF}
v_and_b32 v2, 31, v0
v_lshrrev_b32 v3, 5, v0
v_mul_u32_u24 v2, 1152, v2
v_lshl_add_u32 v{vXO}, v3, 5, v2
s_mul_i32 s42, s{sT}, {32*1152}
s_lshl_b32 s43, s{sCT}, 6
s_add_u32 s42, s42, s43
s_waitcnt lgkmcnt(0)
""")
    srd(p, 4, 24, WS_SIZE)
    srd(p, 8, 26, 576*576*2)
    srd(p, 12, 28, 2048*576*2)
    srd(p, 16, 30, 2048*576*2)
    dt = {}; ot = {}
    for i in range(6):
        p.e(f's_add_u32 m0, s35, {i*12288}\ns_add_u32 s44, s36, {i*96*1152}')
        for j in range(3):
            dl = p.vm(f'buffer_load_dwordx4 v{vD+j}, s[8:11], s44 offen offset:{1024*j} lds')
    for s in range(36):
        if s % 4 == 0: p.e(f's_add_u32 s44, s41, {s*1024}')
        ot[s] = p.vm(f'buffer_load_dwordx4 {vr(OFR+4*s,4)}, v{vL16}, s[4:7], s44 offen offset:{(s%4)*1024}')
    p.e(f"""
v_lshrrev_b32 v6, 5, v0
v_bfe_u32 v7, v0, 4, 1
v_bfe_u32 v{ACC}, v0, 2, 2
v_and_b32 v{ACC+1}, 1, v0
v_bfe_u32 v{ACC+2}, v0, 1, 1
v_lshlrev_b32 v{ACC+1}, 5, v{ACC+1}
v_lshl_add_u32 v{ACC+1}, v7, 4, v{ACC+1}
v_lshl_add_u32 v{ACC+1}, v{ACC+2}, 3, v{ACC+1}
v_lshrrev_b32 v{ACC+2}, 1, v{ACC}
v_xor_b32 v{ACC+3}, s33, v{ACC+2}
v_lshl_add_u32 v{ACC+1}, v{ACC+3}, 6, v{ACC+1}
v_lshl_add_u32 v{ACC+3}, v6, 2, v{ACC}
v_lshl_add_u32 v1, v{ACC+3}, 7, v{ACC+1}
v_xor_b32 v2, 64, v1
v_add_u32 v3, {16*18*128}, v1
v_add_u32 v4, {16*18*128}, v2
v_mul_u32_u24 v{ACC+3}, 72, v6
v_mul_u32_u24 v{ACC+2}, 18, v{ACC+2}
v_and_b32 v{ACC}, 1, v{ACC}
v_add3_u32 v{ACC+3}, v{ACC+3}, v{ACC+2}, v{ACC}
v_add_u32 v{ACC+3}, 16, v{ACC+3}
v_lshl_add_u32 v5, v{ACC+3}, 7, v{ACC+1}
""")
    p.stamp('issued')
    p.wait(vm=dl); p.e('s_barrier')
    p.stamp('dma')
    rt = {}
    def rd(s):
        if s > 35: return
        for u in range(2):
            if s < 32: a, off = 1 + (s & 1) + 2*(s >> 4), ((s & 15)*18 + 8*u)*128
            else: a, off = 5, ((s-32)*144 + 36*u)*128
            d = WF + 4*(s & 1) + 2*u
            rt[s] = p.ds(f'ds_read_b64_tr_b16 v[{d}:{d+1}], v{a} offset:{off}')
    rd(0); rd(1)
    late = []
    for k in range(4):
        late.append(('s', f's_add_u32 s45, s38, {k*64*20*2048}\ns_add_u32 s46, s39, {k*64*20*2048}'))
        for b in range(2):
            for hf in range(2):
                d = DPR + 8*(2*k+b) + 4*hf
                late.append(('m', f'buffer_load_dwordx4 {vr(d,4)}, v{vL16 if b == 0 else 253}, s[4:7], s{45+b} offen offset:{hf*1024}'))
    for hf in range(2):
        late.append(('m', f'buffer_load_dwordx4 {vr(XR+4*hf,4)}, v{vXO}, s[12:15], s42 offen offset:{16*hf}'))
    for o in late:
        if o[0] == 's': p.e(o[1])
        else: last = p.vm(o[1])
    for s in range(36):
        p.wait(lgkm=rt[s], vm=ot[s])
        p.e(f'v_mfma_f32_32x32x16_bf16 {vr(ACC,16)}, {vr(WF+4*(s&1),4)}, {vr(OFR+4*s,4)}, {"0" if s == 0 else vr(ACC,16)}')
        rd(s+2)
    p.stamp('mfma')
    p.wait(vm=last)
    p.stamp('dp')
    Dv = 8; Tv = 24
    for k in range(8):
        p.e(f'v_lshlrev_b32 v{Dv+2*k}, 16, v{DPR+k}\nv_and_b32 v{Dv+2*k+1}, 0xffff0000, v{DPR+k}')
    for b in range(1, 8):
        for k in range(8):
            p.e(f'v_lshlrev_b32 v{Tv+2*k}, 16, v{DPR+8*b+k}\nv_and_b32 v{Tv+2*k+1}, 0xffff0000, v{DPR+8*b+k}')
        for k in range(16): p.e(f'v_add_f32 v{Dv+k}, v{Dv+k}, v{Tv+k}')
    p.e(f's_mov_b32 s47, {hex(f2u(-LOG2E))}')
    for k in range(16): p.e(f'v_mul_f32 v{Tv+k}, s47, v{Dv+k}')
    for k in range(16): p.e(f'v_exp_f32 v{Tv+k}, v{Tv+k}')
    for k in range(16): p.e(f'v_add_f32 v{Tv+k}, 1.0, v{Tv+k}')
    for k in range(16): p.e(f'v_rcp_f32 v{Tv+k}, v{Tv+k}')
    for k in range(16): p.e(f'v_mul_f32 v{Dv+k}, v{Dv+k}, v{Tv+k}')
    for k in range(8):
        p.e(f'v_lshlrev_b32 v{Tv+2*k}, 16, v{XR+k}\nv_and_b32 v{Tv+2*k+1}, 0xffff0000, v{XR+k}')
    for k in range(16): p.e(f'v_fma_f32 v{Dv+k}, v{Dv+k}, v{ACC+k}, v{Tv+k}')
    for k in range(8): p.e(f'v_cvt_pk_bf16_f32 v{XR+k}, v{Dv+2*k}, v{Dv+2*k+1}')
    for hf in range(2):
        p.e(f'buffer_store_dwordx4 {vr(XR+4*hf,4)}, v{vXO}, s[16:19], s42 offen offset:{16*hf}')
    p.dump_stamps(2, sW, WS_ST)
    p.label('K3_done')
    p.e('s_endpgm')
    return p

if __name__ == '__main__':
    for nm, g in (('k2a', gen_k2a), ('k2b', gen_k2b), ('k3', gen_k3)):
        p = g()
        pr = check_hazards(p.lines, nm)
        print(nm, len(p.lines), 'lines;', len(pr), 'hazards')
        for x in pr[:20]: print(x)
```

```python
from k01 import *

WS_WQ = WS_END
WS_WM = WS_WQ + 32*576*128
WS_END2 = WS_WM + 32*288*128
L_B0A, L_B0B, L_B1A, L_B1B = 0, 40960, 73728, 114688
PH1_LDS = 147456
SF = ' sc1'

def ln_body(p, sf=''):
    for i in range(8):
        p.e(f'v_lshlrev_b32 v{12+2*i}, 16, v{4+i}\nv_and_b32 v{13+2*i}, 0xffff0000, v{4+i}')
    def reduce(r):
        p.e(f"""
s_nop 1
v_add_f32_dpp v{r}, v{r}, v{r} quad_perm:[1,0,3,2] row_mask:0xf bank_mask:0xf
s_nop 1
v_add_f32_dpp v{r}, v{r}, v{r} quad_perm:[2,3,0,1] row_mask:0xf bank_mask:0xf
s_nop 1
v_add_f32_dpp v{r}, v{r}, v{r} row_half_mirror row_mask:0xf bank_mask:0xf
s_nop 1
v_add_f32_dpp v{r}, v{r}, v{r} row_mirror row_mask:0xf bank_mask:0xf
s_nop 1
v_readlane_b32 s60, v{r}, 0
v_readlane_b32 s61, v{r}, 16
v_readlane_b32 s62, v{r}, 32
s_nop 1
v_mov_b32 v{r}, s60
v_add_f32 v{r}, s61, v{r}
v_add_f32 v{r}, s62, v{r}
v_mul_f32 v{r}, {hex(f2u(1.0/576))}, v{r}
""")
    p.e('v_add_f32 v4, v12, v13\nv_add_f32 v5, v14, v15\nv_add_f32 v6, v16, v17\nv_add_f32 v7, v18, v19')
    p.e('v_add_f32 v8, v20, v21\nv_add_f32 v9, v22, v23\nv_add_f32 v10, v24, v25\nv_add_f32 v11, v26, v27')
    p.e('v_add_f32 v4, v4, v5\nv_add_f32 v6, v6, v7\nv_add_f32 v8, v8, v9\nv_add_f32 v10, v10, v11')
    p.e('v_add_f32 v4, v4, v6\nv_add_f32 v8, v8, v10\nv_add_f32 v4, v4, v8')
    reduce(4)
    p.e('v_mov_b32 v5, 0\nv_mov_b32 v6, 0')
    for i in range(16):
        t = 8 + (i & 3)
        p.e(f'v_sub_f32 v{t}, v{12+i}, v4\nv_fmac_f32 v{5 + (i & 1)}, v{t}, v{t}')
    p.e('v_add_f32 v5, v5, v6\nv_cndmask_b32 v5, 0, v5, vcc')
    reduce(5)
    p.e(f"""
v_cvt_pk_bf16_f32 v4, v4, v5
v_and_b32 v5, 0xffff0000, v4
v_lshlrev_b32 v4, 16, v4
v_add_f32 v5, {hex(f2u(1e-5))}, v5
v_cvt_pk_bf16_f32 v5, v5, v5
v_lshlrev_b32 v5, 16, v5
v_sqrt_f32 v5, v5
s_nop 0
v_cvt_pk_bf16_f32 v5, v5, v5
v_lshlrev_b32 v5, 16, v5
v_rcp_f32 v5, v5
""")
    for i in range(16): p.e(f'v_sub_f32 v{12+i}, v{12+i}, v4')
    for i in range(8): p.e(f'v_cvt_pk_bf16_f32 v{44+i}, v{12+2*i}, v{13+2*i}')
    for i in range(8): p.e(f'v_lshlrev_b32 v{12+2*i}, 16, v{44+i}\nv_and_b32 v{13+2*i}, 0xffff0000, v{44+i}')
    for i in range(16): p.e(f'v_mul_f32 v{12+i}, v{12+i}, v5')
    for i in range(8): p.e(f'v_cvt_pk_bf16_f32 v{44+i}, v{12+2*i}, v{13+2*i}')

def gen_ph0(p, sf='', prefetch=True):
    p.e(f"""
s_load_dwordx4 s[52:55], s[0:1], 0
s_load_dwordx4 s[56:59], s[0:1], 32
s_load_dwordx2 s[48:49], s[0:1], 72
v_and_b32 v1, 63, v0
v_lshrrev_b32 v2, 6, v0
s_lshl_b32 s3, s2, 3
v_readfirstlane_b32 s20, v2
v_add_u32 v2, s3, v2
v_mul_u32_u24 v3, 1152, v2
v_lshl_add_u32 v3, v1, 5, v3
v_cmp_gt_u32 vcc, 36, v1
v_mov_b32 v30, 0x7ff00000
v_lshrrev_b32 v31, 5, v2
v_cndmask_b32 v3, v30, v3, vcc
v_mul_u32_u24 v31, 36864, v31
v_lshrrev_b32 v29, 1, v1
v_lshl_add_u32 v31, v29, 11, v31
v_and_b32 v29, 1, v1
v_lshl_add_u32 v31, v29, 9, v31
v_and_b32 v29, 16, v2
v_lshl_add_u32 v31, v29, 6, v31
v_and_b32 v29, 15, v2
v_lshl_add_u32 v31, v29, 4, v31
v_cndmask_b32 v31, v30, v31, vcc
s_add_u32 s21, s3, s20
v_lshrrev_b32 v32, 3, v1
v_and_b32 v33, 7, v1
""")
    def wq_addr(task, dA, dB, dD):
        p.e(f"""
s_lshr_b32 s22, s{task}, 2
s_and_b32 s23, s{task}, 3
s_and_b32 s24, s22, 2
s_lshr_b32 s25, s22, 1
s_and_b32 s25, s25, 4
s_or_b32 s24, s24, s25
s_lshl_b32 s23, s23, 3
v_xor_b32 v34, s24, v33
v_add_u32 v35, s23, v32
s_mul_i32 s25, s22, 3456
v_mul_u32_u24 v{dB}, 36, v35
v_add_u32 v{dB}, s25, v{dB}
v_lshrrev_b32 v36, 1, v34
v_and_b32 v37, 1, v34
v_lshlrev_b32 v38, 4, v37
v_sub_u32 v37, 2, v37
v_cmp_eq_u32 s[26:27], 3, v36
v_cmp_eq_u32 s[28:29], 6, v34
s_lshl_b32 s25, s22, 7
v_cndmask_b32 v36, v36, v37, s[26:27]
v_cndmask_b32 v38, v38, 32, s[26:27]
v_mul_u32_u24 v36, 1152, v36
v_add3_u32 v{dA}, v{dB}, v36, v38
v_add_u32 v{dB}, 32, v{dB}
v_cndmask_b32 v{dB}, v30, v{dB}, s[28:29]
v_mul_u32_u24 v{dD}, {576*128}, v35
v_lshl_add_u32 v{dD}, v33, 4, v{dD}
v_add_u32 v{dD}, s25, v{dD}
v_add_u32 v{dD}, {WS_WQ}, v{dD}
""")
    wq_addr(21, 52, 53, 54)
    p.e('s_waitcnt lgkmcnt(0)')
    srd(p, 4, 48, WS_SIZE)
    srd(p, 8, 56, 576*4608*2)
    srd(p, 12, 58, 576*4608*2)
    srd(p, 16, 54, 576*1728*2)
    srd(p, 44, 52, 2048*576*2)
    p.e("""
buffer_load_dwordx4 v[4:7], v3, s[44:47], 0 offen
buffer_load_dwordx4 v[8:11], v3, s[44:47], 0 offen offset:16
buffer_load_dwordx4 v[56:59], v52, s[16:19], 0 offen
buffer_load_dword v60, v53, s[16:19], 0 offen
s_mov_b64 s[30:31], s[28:29]
v_mov_b32 v55, v30
s_mov_b64 s[28:29], 0
s_cmp_ge_u32 s21, 256
s_cbranch_scc1 PH0_m
s_add_u32 s32, s21, 2048
""")
    wq_addr(32, 52, 53, 55)
    p.e("""
buffer_load_dwordx4 v[64:67], v52, s[16:19], 0 offen
buffer_load_dword v61, v53, s[16:19], 0 offen
s_branch PH0_j
""")
    p.label('PH0_m')
    p.e(f"""
s_sub_u32 s32, s21, 256
s_lshr_b32 s22, s32, 2
s_and_b32 s23, s32, 3
s_and_b32 s24, s22, 2
s_lshr_b32 s25, s22, 1
s_and_b32 s25, s25, 4
s_or_b32 s24, s24, s25
s_lshl_b32 s23, s23, 3
v_xor_b32 v34, s24, v33
v_add_u32 v35, s23, v32
v_lshrrev_b32 v36, 2, v35
v_mul_u32_u24 v36, 1152, v36
v_and_b32 v37, 3, v35
v_lshl_add_u32 v36, v37, 5, v36
v_and_b32 v37, 1, v34
v_lshl_add_u32 v36, v37, 4, v36
v_lshrrev_b32 v37, 2, v34
v_mul_u32_u24 v37, {288*9216}, v37
s_mul_i32 s25, s22, 9216
s_add_u32 s25, s25, 1024
v_add3_u32 v52, v36, v37, s25
v_and_b32 v37, 2, v34
v_cmp_eq_u32 s[26:27], 0, v37
v_mul_u32_u24 v55, {288*128}, v35
v_lshl_add_u32 v55, v33, 4, v55
s_lshl_b32 s25, s22, 7
s_add_u32 s25, s25, {WS_WM}
v_add_u32 v55, s25, v55
s_cmp_lt_u32 s32, 1152
s_cselect_b32 s25, 0, 0x7ff00000
v_or_b32 v55, s25, v55
v_or_b32 v52, s25, v52
s_mov_b64 exec, s[26:27]
buffer_load_dwordx4 v[64:67], v52, s[8:11], 0 offen
s_not_b64 exec, exec
buffer_load_dwordx4 v[64:67], v52, s[12:15], 0 offen
s_mov_b64 exec, -1
""")
    p.label('PH0_j')
    p.stamp('issued')
    p.e('s_waitcnt vmcnt(4)')
    p.stamp('xin')
    ln_body(p)
    p.e(f"""
buffer_store_dwordx4 v[44:47], v31, s[4:7], 0 offen{sf}
buffer_store_dwordx4 v[48:51], v31, s[4:7], 0 offen offset:256{sf}
s_waitcnt vmcnt(2)
v_cndmask_b32 v58, v58, v60, s[30:31]
v_cndmask_b32 v66, v66, v61, s[28:29]
buffer_store_dwordx4 v[56:59], v54, s[4:7], 0 offen{sf}
buffer_store_dwordx4 v[64:67], v55, s[4:7], 0 offen{sf}
""")
    if prefetch:
        p.e("""
s_and_b32 s22, s2, 7
s_lshr_b32 s23, s2, 3
s_lshl_b32 s23, s23, 9
v_add_u32 v32, s23, v0
v_lshrrev_b32 v33, 3, v32
v_and_b32 v34, 7, v32
s_mul_i32 s22, s22, 1152
v_mul_u32_u24 v35, 9216, v33
v_lshl_add_u32 v35, v34, 7, v35
v_add_u32 v35, s22, v35
v_subrev_u32 v36, %d, v35
buffer_load_dword v40, v35, s[8:11], 0 offen
buffer_load_dword v41, v36, s[12:15], 0 offen
""" % (576*9216))

def gen_k0n(prefetch=True):
    p = Prog()
    p.e('s_cmp_ge_u32 s2, 256\ns_cbranch_scc1 K0_done')
    p.stamp('start'); p.stamp('rstart', True)
    gen_ph0(p, prefetch=prefetch)
    p.dump_stamps(0, 20, WS_ST)
    p.label('K0_done')
    p.e('s_endpgm')
    return p

def gen_ph1(p, XD=4, cF=6, wait2=False, patC=True, SF=' sc1'):
    X_ = 0
    P_, Q_, S_, F_ = 144, 176, 208, 224
    TB = 240
    T_ = 244
    vL16, vDF, vF = 248, 249, 250
    R_ = 251
    def X(tt, kp): return vr(X_ + 4*(2*kp + tt), 4)
    sW, sC, sR, sQ = 20, 21, 22, 23
    sCol, sColM, sW1, sSo = 25, 26, 27, 30
    sXN, sH0, sHM, sQF, sKV, sT = 31, 32, 33, 34, 35, 28
    sWQ, sWM = 40, 41
    sNL, sCQ = 50, 51
    L = T_+1
    p.e(f"""
s_load_dwordx2 s[52:53], s[0:1], 72
s_load_dwordx4 s[56:59], s[0:1], 32
v_lshrrev_b32 v{T_}, 6, v0
v_and_b32 v{L}, 63, v0
v_readfirstlane_b32 s{sW}, v{T_}
v_lshlrev_b32 v{vL16}, 4, v{L}
s_and_b32 s{sQ}, s2, 7
s_lshr_b32 s3, s2, 3
s_and_b32 s24, s3, 3
s_lshr_b32 s{sR}, s3, 2
s_lshl_b32 s{sC}, s{sQ}, 2
s_add_u32 s{sC}, s{sC}, s24
s_mul_i32 s{sCol}, s{sQ}, 1152
s_lshl_b32 s3, s24, 5
s_add_u32 s{sColM}, s{sCol}, s3
s_add_u32 s{sColM}, s{sColM}, 1024
s_lshl_b32 s3, s24, 8
s_add_u32 s{sCol}, s{sCol}, s3
s_lshl_b32 s{sW1}, s{sW}, 10
s_lshl_b32 s{sT}, s{sR}, 3
s_add_u32 s{sT}, s{sT}, s{sW}
s_mul_i32 s{sXN}, s{sT}, {36*1024}
v_lshrrev_b32 v{T_+2}, 3, v{L}
v_and_b32 v{T_+3}, 7, v{L}
v_and_b32 v{T_}, 2, v{T_+2}
v_xor_b32 v{T_+3}, v{T_+3}, v{T_}
s_and_b32 s3, s{sW}, 1
s_lshl_b32 s3, s3, 2
v_xor_b32 v{T_+3}, s3, v{T_+3}
s_lshl_b32 s3, s{sW}, 3
v_add_u32 v{T_+2}, s3, v{T_+2}
v_mul_u32_u24 v{T_+2}, 9216, v{T_+2}
v_lshl_add_u32 v{vDF}, v{T_+3}, 4, v{T_+2}
s_waitcnt lgkmcnt(0)
""")
    srd(p, 4, 52, WS_SIZE)
    srd(p, 8, 56, 576*4608*2)
    srd(p, 12, 58, 576*4608*2)

    units = [('G0', 0), ('G0', 1), ('U0', 0), ('U0', 1), ('QKV', 0), ('QKV', 1), ('G1', 0), ('G1', 1), ('U1', 0), ('U1', 1), ('M', 0)]
    ubase = [L_B0A, L_B0B, L_B1A, L_B1B, L_B0A, L_B0B, L_B1A, L_B1B, L_B0A, L_B0B, L_B1A]
    xtok = {}; dtok = {}
    def V(t, c=4): return ('v', t, c)
    def do_op(op):
        k = op[0]
        if k in ('s', 'v'): p.e(op[1])
        elif k == 'dma': dtok[op[1]] = p.vm(op[2])
        elif k == 'x': xtok[op[1]] = p.vm(op[2])
        elif k == 'st': p.vm(op[1])
    def dma_unit(n):
        g, part = units[n]; base = ubase[n]
        ops = []
        for i in (range(5) if part == 0 else range(5, 9)):
            li = i if part == 0 else i - 5
            if g[0] in 'GU':
                sr = 8 if g[0] == 'G' else 12
                add = 128 if g[1] == '1' else 0
                ops.append(('s', f's_add_u32 m0, s{sW1}, {base + li*8192}\ns_add_u32 s{sSo}, s{sCol}, {add + i*64*9216}', 8))
                ops.append(('dma', n, f'buffer_load_dwordx4 v{vDF}, s[{sr}:{sr+3}], s{sSo} offen lds'))
            else:
                ops.append(('s', f's_add_u32 m0, s{sW1}, {base + li*8192}\ns_add_u32 s{sSo}, s{sWQ if g == "QKV" else sWM}, {i*8192}', 8))
                ops.append(('dma', n, f'buffer_load_dwordx4 v{vL16}, s[4:7], s{sSo} offen lds'))
        return ops
    def xops(kp0, kp1):
        ops = []
        for kp in range(kp0, kp1):
            if kp % 2 == 0: ops.append(('s', f's_add_u32 s60, s{sXN}, {WS_XN + kp*2048}', 4))
            for tt in range(2):
                ops.append(('x', (tt, kp), f'buffer_load_dwordx4 {X(tt,kp)}, v{vL16}, s[4:7], s60 offen offset:{(kp%2)*2048 + tt*1024}'))
        return ops
    for o in dma_unit(0) + xops(0, XD): do_op(o)
    p.e(f"""
v_lshrrev_b32 v{T_}, 4, v{L}
v_bfe_u32 v{T_+2}, v{L}, 2, 2
v_lshl_add_u32 v{T_+3}, v{T_}, 3, v{T_+2}
v_lshlrev_b32 v{vF}, 7, v{T_+3}
v_lshrrev_b32 v{T_+2}, 1, v{T_+2}
v_lshl_add_u32 v{vF}, v{T_+2}, 5, v{vF}
v_and_b32 v{T_}, 1, v{T_}
v_lshl_add_u32 v{vF}, v{T_}, 6, v{vF}
v_and_b32 v{T_}, 3, v{L}
v_lshl_add_u32 v{vF}, v{T_}, 3, v{vF}
s_mul_i32 s{sWQ}, s{sC}, {576*128}
s_add_u32 s{sWQ}, s{sWQ}, s{sW1}
s_add_u32 s{sWQ}, s{sWQ}, {WS_WQ}
s_mul_i32 s{sWM}, s{sC}, {288*128}
s_add_u32 s{sWM}, s{sWM}, s{sW1}
s_add_u32 s{sWM}, s{sWM}, {WS_WM}
s_mul_i32 s{sH0}, s{sT}, {288*1024}
s_lshl_b32 s3, s{sColM}, 5
s_add_u32 s{sHM}, s{sH0}, s3
s_add_u32 s{sHM}, s{sHM}, {WS_H}
s_lshl_b32 s3, s{sCol}, 5
s_add_u32 s{sH0}, s{sH0}, s3
s_add_u32 s{sH0}, s{sH0}, {WS_H}
s_add_u32 s61, s{sH0}, 4096
s_lshl_b32 s3, s{sC}, 6
s_add_u32 s3, s3, s{sT}
s_lshl_b32 s{sQF}, s3, 10
s_add_u32 s{sQF}, s{sQF}, {WS_QF}
s_mul_i32 s{sKV}, s3, 3072
s_add_u32 s{sKV}, s{sKV}, {WS_KV}
s_mov_b32 s{sNL}, {hex(f2u(-LOG2E))}
s_mov_b32 s{sCQ}, {hex(f2u(CQ))}
""")
    p.e(f"""
v_and_b32 v{R_+1}, {0x270}, v{vL16}
v_and_b32 v{T_}, 0x80, v{vL16}
v_lshl_add_u32 v{R_+1}, v{T_}, 1, v{R_+1}
v_and_b32 v{T_}, 0x100, v{vL16}
v_lshrrev_b32 v{T_}, 1, v{T_}
v_add_u32 v{R_+1}, v{R_+1}, v{T_}
v_and_b32 v{R_+2}, 0xf0, v{vL16}
v_and_b32 v{T_}, 0x300, v{vL16}
v_lshl_add_u32 v{R_+2}, v{T_}, 1, v{R_+2}
v_lshrrev_b32 v{T_}, 3, v{T_}
v_add_u32 v{T_}, v{T_}, v{vL16}
v_and_b32 v{T_}, 0x70, v{T_}
v_and_b32 v{T_+1}, 0xf8f, v{R_+2}
v_or_b32 v{T_+1}, v{T_+1}, v{T_}
v_and_b32 v{T_+2}, 0x80, v{vL16}
v_cmp_eq_u32 vcc, 0, v{T_+2}
v_and_b32 v{T_+2}, 0xf0, v{vL16}
v_mov_b32 v{R_+4}, 0
v_cndmask_b32 v{R_}, v{T_+1}, v{R_+2}, vcc
v_and_b32 v{T_+1}, 0xb0, v{T_+2}
v_cmp_eq_u32 vcc, 0x20, v{T_+1}
v_and_b32 v{T_+1}, 0x60, v{T_+2}
v_mov_b32 v{R_+3}, 0
v_cndmask_b32 v{R_+4}, v{R_+4}, 1.0, vcc
v_cmp_eq_u32 vcc, 0, v{T_+1}
v_and_b32 v{T_+1}, 0xe0, v{T_+2}
v_mov_b32 v{T_+3}, s{sCQ}
v_cndmask_b32 v{R_+3}, v{R_+3}, 1.0, vcc
v_cmp_eq_u32 vcc, 0x40, v{T_+1}
s_nop 1
v_cndmask_b32 v{R_+3}, v{R_+3}, v{T_+3}, vcc
""")
    accs = {'G0': P_, 'U0': Q_, 'QKV': P_, 'G1': Q_, 'U1': P_, 'M': Q_}
    pairs = []
    for n, (g, part) in enumerate(units):
        acc = accs[g]
        kps = range(9) if g == 'M' else range(10) if part == 0 else range(10, 18)
        for kp in kps:
            lk = kp - kps[0]
            for t in range(4):
                rd = [(TB + t, lk*4096 + u*512) for u in range(2)]
                if g == 'M': pairs.append(dict(n=n, g=g, kp=kp + 9*(t >> 1), acc=acc + 8*(t & 1), swap=False, rd=rd))
                else: pairs.append(dict(n=n, g=g, kp=kp, acc=acc + 8*t, swap=(g == 'QKV' and t >= 2), rd=rd))
    def base_ops(n):
        return f'v_add_u32 v{TB}, {ubase[n]}, v{vF}\nv_xor_b32 v{TB+1}, 32, v{TB}\nv_xor_b32 v{TB+2}, 64, v{TB}\nv_xor_b32 v{TB+3}, 96, v{TB}'
    def epi_G(acc):
        ops = []
        for b in range(8):
            r = acc + 4*b
            ops += [V(f'v_mul_f32 v{r+k}, s{sNL}, v{r+k}') for k in range(4)]
            ops += [V(f'v_exp_f32 v{r+k}, v{r+k}', 8) for k in range(4)]
            ops += [V(f'v_add_f32 v{r+k}, 1.0, v{r+k}') for k in range(4)]
            ops += [V(f'v_cvt_pk_bf16_f32 v{S_ + 2*b + k}, v{r+2*k}, v{r+2*k+1}') for k in range(2)]
        return ops
    def swapst(q, addr, so, off, nop=''):
        return [V(f'{nop}v_permlane16_swap_b32 v{q}, v{q+2}\nv_permlane16_swap_b32 v{q+1}, v{q+3}', 8),
                ('st', f'buffer_store_dwordx4 v[{q}:{q+3}], v{addr}, s[4:7], s{so} offen offset:{off}{SF}')]
    def epi_U(acc, so):
        ops = []; pend = []
        for b in range(8):
            r = acc + 4*b; sr = S_ + 2*b; t = T_
            ops += [V(f'v_lshlrev_b32 v{t}, 16, v{sr}'), V(f'v_and_b32 v{t+1}, 0xffff0000, v{sr}'),
                    V(f'v_lshlrev_b32 v{t+2}, 16, v{sr+1}'), V(f'v_and_b32 v{t+3}, 0xffff0000, v{sr+1}')]
            ops += pend; pend = []
            ops += [V(f'v_rcp_f32 v{t+k}, v{t+k}', 8) for k in range(4)]
            ops += [V(f'v_mul_f32 v{r+k}, v{r+k}, v{t+k}') for k in range(4)]
            ops += [V(f'v_cvt_pk_bf16_f32 v{sr+k}, v{r+2*k}, v{r+2*k+1}') for k in range(2)]
            if b & 1: pend = swapst(S_ + 4*(b >> 1), vL16, so, (b >> 1)*1024, 's_nop 1\n' if b == 7 else '')
        return ops + pend
    def epi_QKV(acc):
        cv = lambda a, b: [V(f'v_cvt_pk_bf16_f32 v{S_+k}, v{acc+2*k}, v{acc+2*k+1}') for k in range(a, b)]
        ops = cv(4, 12)
        ops.append(('st', f'buffer_store_dwordx4 v[{S_+8}:{S_+11}], v{R_+2}, s[4:7], s{sKV} offen offset:1024{SF}'))
        ops += [V(f'v_fma_f32 v{acc+24+k}, v{acc+24+k}, v{R_+3}, v{R_+4}') for k in range(8)]
        ops += swapst(S_+4, R_+1, sKV, 0)
        ops += cv(12, 16) + [V(f'v_mul_f32 v{acc+k}, s{sCQ}, v{acc+k}') for k in range(4)]
        ops.append(('st', f'buffer_store_dwordx4 v[{S_+12}:{S_+15}], v{R_}, s[4:7], s{sKV} offen offset:1280{SF}'))
        ops += [V(f'v_mul_f32 v{acc+k}, s{sCQ}, v{acc+k}') for k in range(4, 8)] + cv(0, 4)
        ops += swapst(S_, vL16, sQF, 0, 's_nop 1\n')
        return ops
    def epi_M(acc):
        ops = [V(f'v_mul_f32 v{acc+k}, s{sNL}, v{acc+k}') for k in range(8)]
        ops += [V(f'v_exp_f32 v{acc+k}, v{acc+k}', 8) for k in range(8)]
        ops += [V(f'v_add_f32 v{acc+k}, 1.0, v{acc+k}') for k in range(8)]
        ops += [V(f'v_rcp_f32 v{acc+k}, v{acc+k}', 8) for k in range(8)]
        ops += [V(f'v_mul_f32 v{acc+k}, v{acc+k}, v{acc+8+k}') for k in range(8)]
        ops += [V(f'v_cvt_pk_bf16_f32 v{T_+k}, v{acc+2*k}, v{acc+2*k+1}') for k in range(4)]
        ops += swapst(T_, vL16, sHM, 0, 's_nop 1\n')
        return ops
    epi_q = {'G0': [], 'U0': epi_G(P_), 'QKV': epi_U(Q_, sH0), 'G1': epi_QKV(P_), 'U1': epi_G(Q_), 'M': epi_U(P_, 61)}
    mem_after = {0: dma_unit(1) + dma_unit(2) + dma_unit(3)}
    for n in range(1, 8): mem_after[n] = dma_unit(n+3)
    xq = xops(XD, 18)
    ta = [8]
    N = len(pairs)
    rtok = {}
    mq = []
    def issue_read(P, u):
        if P >= N: return
        pr = pairs[P]
        if u == 0 and (P == 0 or pairs[P-1]['n'] != pr['n']):
            n = pr['n']
            while n not in dtok or any(o[0] == 'dma' and o[1] == n for o in mq): do_op(mq.pop(0))
            p.e(base_ops(n))
            p.wait(vm=dtok[n], lgkm=p.lgkm_issued)
            p.e('s_barrier')
            p.stamp(f'B{n}')
            mq.extend(mem_after.get(n, []))
        a, off = pr['rd'][u]
        d = F_ + 4*(P % 4) + 2*u
        rtok[P] = p.ds(f'ds_read_b64_tr_b16 v[{d}:{d+1}], v{a} offset:{off}')
    p.stamp('setup')
    for P in range(3):
        issue_read(P, 0); issue_read(P, 1)
    cur = None
    seen = set()
    for P in range(N):
        pr = pairs[P]
        if pr['g'] != cur:
            cur = pr['g']
            ng = sum(1 for q in pairs if q['g'] == cur)
            eq = list(epi_q[cur])
            skip = 2
            nb = sum(o[2] for o in eq if o[0] == 'v') / 8.0
            rate = nb / (ng - skip) * 1.01
            credit = 0.0; gi = 0
        for tt in range(2):
            xid = (tt, pr['kp'])
            if wait2: lg = rtok[min(P+1, N-1)] if (tt == 0 and P % 2 == 0) else None
            else: lg = rtok[P] if tt == 0 else None
            p.wait(lgkm=lg, vm=xtok[xid])
            fa = vr(F_ + 4*(P % 4), 4)
            a, b = (X(*xid), fa) if pr['swap'] else (fa, X(*xid))
            d = vr(pr['acc'] + 4*tt, 4)
            key = (pr['g'], d)
            p.e(f'v_mfma_f32_16x16x32_bf16 {d}, {a}, {b}, {d if key in seen else "0"}')
            seen.add(key)
            useC = patC and rate > 0.5
            if useC:
                if tt == 0: issue_read(P+3, 0); issue_read(P+3, 1)
            else:
                if tt == 0 or ('c', P) not in seen: issue_read(P+3, tt)
            if useC and tt == 0: seen.add(('c', P))
            G = 2*P + tt
            if xq and G % 4 == 0:
                while xq[0][0] == 's': do_op(xq.pop(0))
                do_op(xq.pop(0))
            elif mq and G >= ta[0]:
                while mq and mq[0][0] == 's': do_op(mq.pop(0))
                o = mq.pop(0); do_op(o)
                ta[0] = G + (cF if not xq else 10)
            if gi >= skip and tt == 1:
                credit += rate
                while eq and eq[0][0] == 'st': do_op(eq.pop(0))
                while eq and credit >= 0.999:
                    credit -= 1.0; c = 0
                    while eq and eq[0][0] == 'v' and c < 8:
                        o = eq.pop(0); do_op(o); c += o[2]
        gi += 1
        if P + 1 == N or pairs[P+1]['g'] != cur:
            if eq:
                print('leftover', cur, len(eq))
                for o in eq: do_op(o)
    assert not mq
    p.stamp('tail')
    p.e('s_nop 7')
    for o in epi_M(Q_): do_op(o)
    return sW

def gen_k1n(**kw):
    p = Prog()
    p.e('s_cmp_ge_u32 s2, 256\ns_cbranch_scc1 K1_done')
    p.stamp('start'); p.stamp('rstart', True)
    sW = gen_ph1(p, **kw)
    p.dump_stamps(1, sW, WS_ST)
    p.label('K1_done')
    p.e('s_endpgm')
    return p

if __name__ == '__main__':
    for g in (gen_k0n, gen_k1n):
        p = g()
        pr = check_hazards(p.lines, 'k')
        print(len(p.lines), 'lines;', len(pr), 'hazards')
        for x in pr[:20]: print(x)
```

```python
from ph1 import *

KV_RING = 16
L_KV = 0
NSLOT = 5
SLOT = 20480
L_WD = 49152
PH2_LDS = L_WD + NSLOT*SLOT

def plan(at, g0):
    a = [0]
    for n in at: a.append(a[-1] + n)
    assert a[-1] == 64 and g0 + 18 <= len(at)
    return a

def gen_att(p, a, force_fallback=False, SF=''):
    S0, S1, O0, O1, P0, P1 = 8, 24, 40, 56, 72, 80
    K_, V1, V0a, V0b, Q0, Q1 = 88, 92, 96, 100, 104, 108
    KX, QX0, QX1 = 112, 114, 116
    vA, vV, vX = 118, 119, 120
    C_ = 124
    sW, sH, sT, sG = 20, 21, 22, 26
    p.e(f"""
s_and_b32 s3, s2, 7
s_lshr_b32 s12, s2, 3
s_and_b32 s13, s12, 3
s_lshl_b32 s{sH}, s3, 2
s_add_u32 s{sH}, s{sH}, s13
s_lshr_b32 s12, s12, 2
s_lshl_b32 s{sT}, s12, 3
s_lshl_b32 s13, s{sW}, 1
s_add_u32 s{sT}, s{sT}, s13
s_mul_i32 s{sG}, s{sH}, {64*3072}
s_add_u32 s{sG}, s{sG}, {WS_KV}
v_lshlrev_b32 v{vA}, 4, v0
v_lshrrev_b32 v2, 5, v0
v_bfe_u32 v3, v0, 4, 1
v_bfe_u32 v4, v0, 2, 1
v_bfe_u32 v5, v0, 3, 1
v_and_b32 v7, 3, v0
v_lshl_add_u32 v7, v3, 2, v7
v_lshlrev_b32 v7, 1, v7
v_lshl_add_u32 v7, v5, 10, v7
v_lshl_add_u32 v7, v4, 9, v7
v_lshl_add_u32 v7, v2, 4, v7
v_add_u32 v7, {1024 + 20*16}, v7
s_lshl_b32 s12, s{sH}, 6
s_add_u32 s12, s12, s{sT}
s_lshl_b32 s13, s12, 10
s_add_u32 s13, s13, {WS_QF}
s_mul_i32 s14, s12, 3072
s_add_u32 s14, s14, {WS_KV}
""")
    p.vm(f'buffer_load_dwordx4 v[{Q0}:{Q0+3}], v{vA}, s[4:7], s13 offen')
    p.vm(f'buffer_load_ushort v{QX0}, v7, s[4:7], s14 offen')
    p.vm(f'buffer_load_dwordx4 v[{Q1}:{Q1+3}], v{vA}, s[4:7], s13 offen offset:1024')
    qt = p.vm(f'buffer_load_ushort v{QX1}, v7, s[4:7], s14 offen offset:3072')
    p.e(f"""
v_and_b32 v6, 3, v0
v_lshl_add_u32 v6, v5, 2, v6
v_lshlrev_b32 v6, 1, v6
v_lshl_add_u32 v6, v3, 10, v6
v_lshl_add_u32 v6, v4, 9, v6
v_lshl_add_u32 v6, v2, 4, v6
v_lshl_add_u32 v6, v4, 5, v6
v_lshl_add_u32 v6, v3, 6, v6
v_add_u32 v{vX}, {1024 + 24*16}, v6
v_and_b32 v6, 31, v0
v_cmp_eq_u32 vcc, 22, v6
v_min_u32 v1, 19, v6
v_mov_b32 v{QX0+1}, 0
v_cndmask_b32 v6, v1, v6, vcc
v_lshlrev_b32 v6, 4, v6
v_lshl_add_u32 v{vV}, v2, 9, v6
v_mov_b32 v{QX1+1}, 0
v_mov_b32 v{KX+1}, 0
""")
    tk = {}
    V0 = lambda i: V0a if i % 2 == 0 else V0b
    def rd(i, part):
        if i > 63: return
        if part == 'k' and i in a:
            p.e('s_barrier')
            if a.index(i) % 3 == 0: p.stamp(f'a{i}')
        off = L_KV + (i % KV_RING)*3072
        if part == 'x': tk[(i, part)] = p.ds(f'ds_read_u16 v{KX}, v{vX} offset:{off}')
        elif part == 'k': tk[(i, part)] = p.ds(f'ds_read_b128 {vr(K_,4)}, v{vA} offset:{off}')
        elif part == 'v0': tk[(i, part)] = p.ds(f'ds_read_b128 {vr(V0(i),4)}, v{vV} offset:{off+1024}')
        else: tk[(i, part)] = p.ds(f'ds_read_b128 {vr(V1,4)}, v{vV} offset:{off+2048}')
    def qk1(S, Q): p.e(f'v_mfma_f32_32x32x16_bf16 {vr(S,16)}, {vr(K_,4)}, {vr(Q,4)}, 0')
    def qk2(S, QX): p.e(f'v_mfma_f32_32x32x8bf16_1k {vr(S,16)}, {vr(KX,2)}, {vr(QX,2)}, {vr(S,16)}')
    def pv(O, Vr, P, first=False): p.e(f'v_mfma_f32_32x32x16_bf16 {vr(O,16)}, {vr(Vr,4)}, {vr(P,4)}, {"0" if first else vr(O,16)}')
    def ex(S, x, y):
        for k in range(x, y): p.e(f'v_exp_f32 v{S+k}, v{S+k}')
    def cv(P, S, u):
        for k in range(4*u, 4*u+4): p.e(f'v_cvt_pk_bf16_f32 v{P+k}, v{S+2*k}, v{S+2*k+1}')
    rd(0, 'k'); rd(0, 'x'); rd(0, 'v0')
    p.wait(vm=qt, lgkm=p.lgkm_issued)
    qk1(S0, Q0); qk2(S0, QX0)
    p.e('s_nop 7\ns_nop 1')
    for i in range(64):
        qk1(S1, Q1); rd(i+1, 'k'); rd(i+1, 'v0')
        ex(S0, 0, 4)
        if i > 0: pv(O1, V1, P1+4)
        rd(i, 'v1')
        ex(S0, 4, 8); cv(P0, S0, 0)
        qk2(S1, QX1); rd(i+1, 'x')
        ex(S0, 8, 12)
        pv(O0, V0(i), P0, i == 0)
        ex(S0, 12, 16); cv(P0, S0, 1)
        p.wait(lgkm=p.lgkm_issued)
        if i < 63: qk1(S0, Q0)
        ex(S1, 0, 4)
        pv(O0, V1, P0+4)
        ex(S1, 4, 8); cv(P1, S1, 0)
        if i < 63: qk2(S0, QX0)
        ex(S1, 8, 12)
        pv(O1, V0(i), P1, i == 0)
        ex(S1, 12, 16); cv(P1, S1, 1)
    p.e('s_nop 1')
    pv(O1, V1, P1+4)
    p.e('s_nop 7\ns_nop 3')
    p.e(f"""
v_mov_b32 v1, {hex(f2u(2.0**-64))}
v_mov_b32 v2, {hex(f2u(2.0**64))}
v_cmp_nge_f32 vcc, v{O0+10}, v1
v_cmp_nle_f32 s[16:17], v{O0+10}, v2
s_or_b64 vcc, vcc, s[16:17]
v_cmp_nge_f32 s[16:17], v{O1+10}, v1
s_or_b64 vcc, vcc, s[16:17]
v_cmp_nle_f32 s[16:17], v{O1+10}, v2
s_or_b64 vcc, vcc, s[16:17]
""")
    if force_fallback: p.e('s_branch ATT_fallback')
    p.e('s_cbranch_vccnz ATT_fallback')
    p.label('ATT_finish')
    p.e(f"""
v_rcp_f32 v1, v{O0+10}
v_rcp_f32 v2, v{O1+10}
s_mul_i32 s12, s{sT}, {36*1024}
s_lshl_b32 s13, s{sH}, 10
s_add_u32 s13, s13, s12
s_add_u32 s13, s13, {WS_OF}
s_lshr_b32 s14, s{sH}, 3
s_lshl_b32 s14, s14, 10
s_add_u32 s14, s14, s12
s_bfe_u32 s15, s{sH}, 0x10002
s_lshl_b32 s15, s15, 9
s_add_u32 s14, s14, s15
s_and_b32 s15, s{sH}, 3
s_lshl_b32 s15, s15, 2
s_add_u32 s14, s14, s15
s_add_u32 s14, s14, {WS_OF + 32*1024}
s_add_u32 s15, s13, {36*1024}
s_add_u32 s16, s14, {36*1024}
""")
    for O, P, r in ((O0, P0, 1), (O1, P1, 2)):
        for k in range(10): p.e(f'v_mul_f32 v{O+k}, v{O+k}, v{r}')
        for k in range(5): p.e(f'v_cvt_pk_bf16_f32 v{P+k}, v{O+2*k}, v{O+2*k+1}')
    p.e(f"""
buffer_store_dwordx4 v[{P0}:{P0+3}], v{vA}, s[4:7], s13 offen{SF}
buffer_store_dwordx4 v[{P1}:{P1+3}], v{vA}, s[4:7], s15 offen{SF}
s_mov_b64 exec, 0xffffffff
buffer_store_dword v{P0+4}, v{vA}, s[4:7], s14 offen{SF}
buffer_store_dword v{P1+4}, v{vA}, s[4:7], s16 offen{SF}
s_mov_b64 exec, -1
""")
    f = Prog()
    f.label('ATT_fallback')
    for t, (O, Q, QX) in enumerate(((O0, Q0, QX0), (O1, Q1, QX1))):
        f.e(f'v_mov_b32 v1, 0xff800000\ns_mov_b32 s12, s{sG}\ns_mov_b32 s13, 64')
        f.label(f'ATT_fb1_{t}')
        f.e(f"""
buffer_load_dwordx4 {vr(K_,4)}, v{vA}, s[4:7], s12 offen
buffer_load_ushort v{KX}, v{vX}, s[4:7], s12 offen
s_waitcnt vmcnt(0)
v_mfma_f32_32x32x16_bf16 {vr(S0,16)}, {vr(K_,4)}, {vr(Q,4)}, 0
v_mfma_f32_32x32x8bf16_1k {vr(S0,16)}, {vr(KX,2)}, {vr(QX,2)}, {vr(S0,16)}
s_nop 7
s_nop 7
""")
        for k in range(8): f.e(f'v_max3_f32 v1, v1, v{S0+2*k}, v{S0+2*k+1}')
        f.e(f"""
s_add_u32 s12, s12, 3072
s_sub_u32 s13, s13, 1
s_cmp_lg_u32 s13, 0
s_cbranch_scc1 ATT_fb1_{t}
v_mov_b32 v2, v1
s_nop 1
v_permlane32_swap_b32 v1, v2
s_nop 1
v_max_f32 v1, v1, v2
""")
        for k in range(16): f.e(f'v_sub_f32 v{C_+k}, 0, v1\nv_mov_b32 v{O+k}, 0')
        f.e(f's_mov_b32 s12, s{sG}\ns_mov_b32 s13, 64')
        f.label(f'ATT_fb2_{t}')
        f.e(f"""
buffer_load_dwordx4 {vr(K_,4)}, v{vA}, s[4:7], s12 offen
buffer_load_ushort v{KX}, v{vX}, s[4:7], s12 offen
buffer_load_dwordx4 {vr(V0a,4)}, v{vV}, s[4:7], s12 offen offset:1024
buffer_load_dwordx4 {vr(V1,4)}, v{vV}, s[4:7], s12 offen offset:2048
s_waitcnt vmcnt(0)
v_mfma_f32_32x32x16_bf16 {vr(S0,16)}, {vr(K_,4)}, {vr(Q,4)}, {vr(C_,16)}
v_mfma_f32_32x32x8bf16_1k {vr(S0,16)}, {vr(KX,2)}, {vr(QX,2)}, {vr(S0,16)}
s_nop 7
s_nop 7
""")
        for k in range(16): f.e(f'v_exp_f32 v{S0+k}, v{S0+k}')
        f.e('s_nop 0')
        for k in range(8): f.e(f'v_cvt_pk_bf16_f32 v{P0+k}, v{S0+2*k}, v{S0+2*k+1}')
        f.e(f"""
s_nop 1
v_mfma_f32_32x32x16_bf16 {vr(O,16)}, {vr(V0a,4)}, {vr(P0,4)}, {vr(O,16)}
v_mfma_f32_32x32x16_bf16 {vr(O,16)}, {vr(V1,4)}, {vr(P0+4,4)}, {vr(O,16)}
s_add_u32 s12, s12, 3072
s_sub_u32 s13, s13, 1
s_cmp_lg_u32 s13, 0
s_cbranch_scc1 ATT_fb2_{t}
s_nop 7
s_nop 7
""")
    f.e('s_branch ATT_finish')
    return f

def gen_down(p, a, g0, SF=''):
    NP = len(a) - 1
    ACC = 8
    WF = 88
    HF = 108; NH = 16
    vL16 = 172; vD = 173; vDS = 177
    vT = 178; vTS = 186
    sW, sT, sCB = 20, 21, 22
    sWA, sWB, sHA, sHB, sSh, sW4, sW1, sSo, sKV, sW3 = 23, 24, 25, 26, 27, 28, 29, 30, 38, 39
    p.e(f"""
s_and_b32 s3, s2, 7
s_lshr_b32 s16, s2, 3
s_and_b32 s{sCB}, s16, 3
s_lshl_b32 s17, s3, 2
s_add_u32 s17, s17, s{sCB}
s_mul_i32 s{sKV}, s17, {64*3072}
s_mul_i32 s{sW3}, s{sW}, 3072
s_add_u32 s{sKV}, s{sKV}, s{sW3}
s_add_u32 s{sKV}, s{sKV}, {WS_KV}
v_lshlrev_b32 v{vL16}, 4, v0
""")
    dt = {}; ht = {}; kt = {}
    def kv_ops(j):
        ops = [('s', f's_add_u32 m0, s{sW3}, {L_KV + (4*j % KV_RING)*3072}\ns_add_u32 s{sSo}, s{sKV}, {j*12288}')]
        return ops + [('kv', j, f'buffer_load_dwordx4 v{vL16}, s[4:7], s{sSo} offen offset:{1024*i} lds') for i in range(3)]
    def do(o):
        if o[0] == 's': p.e(o[1])
        else: {'dma': dt, 'h': ht, 'kv': kt}[o[0]][o[1]] = p.vm(o[2])
    for o in kv_ops(0) + kv_ops(1): do(o)
    p.e(f"""
s_lshr_b32 s16, s16, 2
s_and_b32 s17, s3, 1
s_lshl_b32 s17, s17, 3
s_add_u32 s16, s16, s17
s_lshl_b32 s{sT}, s16, 2
s_add_u32 s{sT}, s{sT}, s{sW}
s_lshr_b32 s31, s3, 1
s_and_b32 s17, s{sCB}, 1
s_mul_i32 s18, s31, 72
s_mul_i32 s19, s17, 36
s_add_u32 s32, s18, s19
s_sub_u32 s33, s18, s19
s_lshr_b32 s34, s{sCB}, 1
s_mul_i32 s34, s34, 576
s_mul_i32 s35, s17, 320
s_add_u32 s35, s35, s34
s_mul_i32 s{sWA}, s32, {16*1152}
s_add_u32 s{sSh}, s{sWA}, s34
s_add_u32 s{sSh}, s{sSh}, 256
s_add_u32 s{sWA}, s{sWA}, s35
s_mul_i32 s{sWB}, s33, {16*1152}
s_add_u32 s{sWB}, s{sWB}, s35
s_mul_i32 s36, s{sT}, {288*1024}
s_add_u32 s36, s36, {WS_H}
s_lshl_b32 s{sHA}, s32, 10
s_add_u32 s{sHA}, s{sHA}, s36
s_lshl_b32 s{sHB}, s33, 10
s_add_u32 s{sHB}, s{sHB}, s36
s_lshl_b32 s{sW4}, s{sW}, 12
s_lshl_b32 s{sW1}, s{sW}, 10
v_lshrrev_b32 v2, 4, v0
v_and_b32 v3, 15, v0
v_lshlrev_b32 v4, 2, v2
v_xor_b32 v3, v3, v4
s_lshl_b32 s3, s{sW}, 4
v_add_u32 v2, s3, v2
v_mul_u32_u24 v2, 1152, v2
v_lshl_add_u32 v{vD}, v3, 4, v2
v_add_u32 v{vD+1}, {4*1152-1024}, v{vD}
v_add_u32 v{vD+2}, {2*(4*1152-1024)}, v{vD}
v_add_u32 v{vD+3}, {3*(4*1152-1024)}, v{vD}
v_lshrrev_b32 v2, 2, v0
v_add_u32 v2, s3, v2
v_mul_u32_u24 v2, 1152, v2
v_and_b32 v3, 3, v0
v_lshl_add_u32 v{vDS}, v3, 4, v2
v_lshrrev_b32 v1, 5, v0
v_bfe_u32 v2, v0, 4, 1
v_bfe_u32 v3, v0, 2, 2
v_and_b32 v4, 1, v0
v_bfe_u32 v5, v0, 1, 1
v_lshlrev_b32 v4, 5, v4
v_lshl_add_u32 v4, v2, 4, v4
v_lshl_add_u32 v4, v5, 3, v4
v_lshl_add_u32 v6, v1, 3, v3
v_lshl_add_u32 v7, v6, 8, v4
v_lshl_add_u32 v7, v3, 6, v7
v_add_u32 v{vT}, {L_WD}, v7
v_xor_b32 v{vT+1}, 64, v{vT}
v_xor_b32 v{vT+2}, 128, v{vT}
v_xor_b32 v{vT+3}, 192, v{vT}
v_lshl_add_u32 v{vTS}, v6, 6, v4
v_add_u32 v{vTS}, {L_WD}, v{vTS}
v_add_u32 v{vTS+1}, {3*SLOT}, v{vTS}
""")
    for t in range(4): p.e(f'v_add_u32 v{vT+4+t}, {3*SLOT}, v{vT+t}')
    def mem_ops(ci):
        sl = L_WD + (ci % NSLOT)*SLOT
        wb = sWA if ci < 9 else sWB
        ops = [('s', f's_add_u32 m0, s{sW4}, {sl}\ns_add_u32 s{sSo}, s{wb}, {ci*64*1152}')]
        for j in range(4):
            ops.append(('dma', ci, f'buffer_load_dwordx4 v{vD+j}, s[8:11], s{sSo} offen offset:{1024*j} lds'))
        if ci < 9:
            ops.append(('s', f's_add_u32 m0, s{sW1}, {sl + 16384}\ns_add_u32 s{sSo}, s{sSh}, {ci*64*1152}'))
            ops.append(('dma', ci, f'buffer_load_dwordx4 v{vDS}, s[8:11], s{sSo} offen lds'))
        return ops
    def h_ops(ci):
        hb = sHA if ci < 9 else sHB
        ops = [('s', f's_add_u32 s37, s{hb}, {ci*4096}')]
        for j in range(4):
            s = 4*ci + j; d = HF + 4*(s % NH)
            ops.append(('h', s, f'buffer_load_dwordx4 v[{d}:{d+3}], v{vL16}, s[4:7], s37 offen offset:{1024*j}'))
        return ops
    mq = []
    nkv = [2]
    def barrier(ph):
        jneed = (a[ph+1] - 1)//4
        ci = ph - g0
        need = lambda o: (o[0] == 'kv' and o[1] <= jneed) or (o[0] == 'dma' and o[1] <= ci)
        while any(need(o) for o in mq): do(mq.pop(0))
        tok = kt[jneed]
        if 0 <= ci < 18: tok = max(tok, dt[ci])
        p.wait(vm=tok); p.e('s_barrier')
        if ph % 3 == 0: p.stamp(f'g{ph}')
        while nkv[0] < 16 and 4*nkv[0] + 3 - KV_RING <= a[ph] - 2:
            mq.extend(kv_ops(nkv[0])); nkv[0] += 1
        if ci >= 1 and ci + NSLOT - 2 < 18: mq.extend(mem_ops(ci + NSLOT - 2))
    for ci in range(NSLOT-1):
        mq.extend(mem_ops(ci))
        if ci < NH//4 - 1: mq.extend(h_ops(ci))
    for ph in range(g0):
        barrier(ph)
        while mq: do(mq.pop(0))
    rt = {}
    def rd(s, t):
        if s > 71 or (t == 4 and s >= 36): return
        ci = s // 4
        if t == 0 and s % 4 == 0: barrier(g0 + ci)
        sl = ci % NSLOT
        reg, sl = (1, sl - 3) if sl >= 3 else (0, sl)
        for u in range(2):
            if t < 4: ad, off = vT + 4*reg + t, sl*SLOT + (s % 4)*4096 + u*1024
            else: ad, off = vTS + reg, sl*SLOT + 16384 + (s % 4)*1024 + u*256
            d = WF + 4*t + 2*u
            rt[(s, t)] = p.ds(f'ds_read_b64_tr_b16 v[{d}:{d+1}], v{ad} offset:{off}')
    for t in range(5): rd(0, t)
    for s in range(72):
        nt = 5 if s < 36 else 4
        if s % 4 == 0:
            hc = s//4 + NH//4 - 1
            if hc < 18: mq.extend(h_ops(hc))
        for t in range(nt):
            while s not in ht: do(mq.pop(0))
            p.wait(lgkm=rt[(s, t)], vm=ht[s])
            ac = ACC + 16*t
            p.e(f'v_mfma_f32_32x32x16_bf16 {vr(ac,16)}, {vr(WF+4*t,4)}, {vr(HF+4*(s % NH),4)}, {"0" if s == 0 else vr(ac,16)}')
            rd(s+1, t)
            for _ in range(2 if len(mq) > 16 else 1):
                if mq:
                    if mq[0][0] == 's': do(mq.pop(0))
                    do(mq.pop(0))
    while mq: do(mq.pop(0))
    p.e(f"""
s_lshl_b32 s3, s31, 6
s_add_u32 s3, s3, s{sT}
s_mul_i32 s3, s3, 20
s_mul_i32 s16, s{sCB}, 5
s_add_u32 s3, s3, s16
s_lshl_b32 s3, s3, 11
s_add_u32 s16, s3, {WS_DP}
s_add_u32 s17, s16, 4096
s_add_u32 s18, s16, 8192
s_nop 7
""")
    for t in (4, 0, 1, 2, 3):
        ac = ACC + 16*t; q = HF + 8*t
        for k in range(8): p.e(f'v_cvt_pk_bf16_f32 v{q+k}, v{ac+2*k}, v{ac+2*k+1}')
        for hf in range(2):
            p.vm(f'buffer_store_dwordx4 v[{q+4*hf}:{q+4*hf+3}], v{vL16}, s[4:7], s{16 + t//2} offen offset:{(t&1)*2048 + hf*1024}{SF}')
    for ph in range(g0 + 18, NP):
        barrier(ph)
        while mq: do(mq.pop(0))

def gen_k2(at=[4]*10 + [3]*8, g0=0, force_fallback=False, SF=' sc1', prio=(0, 0)):
    a = plan(at, g0)
    p = Prog()
    p.e('s_cmp_ge_u32 s2, 256\ns_cbranch_scc1 K2_done')
    p.stamp('start'); p.stamp('rstart', True)
    p.e("""
s_load_dwordx2 s[12:13], s[0:1], 72
s_load_dwordx2 s[14:15], s[0:1], 48
v_lshrrev_b32 v1, 6, v0
v_and_b32 v0, 63, v0
v_readfirstlane_b32 s40, v1
s_waitcnt lgkmcnt(0)
""")
    srd(p, 4, 12, WS_SIZE)
    srd(p, 8, 14, 4608*576*2)
    p.e('s_and_b32 s20, s40, 3\ns_cmp_ge_u32 s40, 4\ns_cbranch_scc1 K2_down')
    if prio[0]: p.e(f's_setprio {prio[0]}')
    n0 = len(getattr(p, 'stamps', []))
    fb = gen_att(p, a, force_fallback, SF)
    p.e('s_branch K2_end')
    p.label('K2_down')
    if prio[1]: p.e(f's_setprio {prio[1]}')
    p.reset_counts()
    if Prog.STAMPS:
        names = p.stamps[n0:]; p.stamps = p.stamps[:n0]
    gen_down(p, a, g0, SF)
    if Prog.STAMPS:
        assert len(p.stamps) - n0 == len(names), (p.stamps, names)
    p.label('K2_end')
    p.dump_stamps(2, 40, WS_ST)
    p.label('K2_done')
    p.e('s_endpgm')
    p.lines += fb.lines
    return p

if __name__ == '__main__':
    p = gen_k2()
    pr = check_hazards(p.lines, 'k2')
    print(len(p.lines), 'lines;', len(pr), 'hazards', sum(1 for l in p.lines if l == 's_barrier'))
    for x in pr[:20]: print(x)
```

```python
import sys
from k23 import *
from ph2 import *
NAME = 'recurrent_scan__softmax_full_mha__glu_gated_glu__prompt'
def build(out, force_fallback=False, prefetch=True, codepf=True, sf='', k1={}, k2={}):
    ks = [
        ('k0_kernel', gen_k0n(prefetch), (256, 512, 0), 72, 72),
        ('k1_kernel', gen_k1n(**k1), (256, 512, PH1_LDS), 256, 256),
        ('k2_kernel', gen_k2(force_fallback=force_fallback, **k2), (256, 512, PH2_LDS), 192, 192),
        ('k3_kernel', gen_k3(), (288, 256, K3_LDS), 256, 256),
    ]
    ref = open('cdna_kernels/' + NAME + '.s.ref').read().split('\n')
    head = [l for l in ref[:11]]
    txt = '\n'.join(head) + '\n'
    for n, p, (g, b, lds), _, _ in ks:
        txt += f'; @launch kernel={n} grid=({g},1,1) block=({b},1,1) lds={lds}\n'
    txt += '.amdgcn_target "amdgcn-amd-amdhsa--gfx950"\n.text\n'
    for n, p, _, _, _ in ks:
        pr = check_hazards(p.lines, n)
        for x in pr: print('HAZARD', x)
        if n == 'k1_kernel': txt += 'CODE_BEGIN:\n'
        txt += f'.globl {n}\n.p2align 8\n.type {n},@function\n{n}:\n' + p.text()
    txt += 'CODE_END:\n'
    txt += '.section .rodata,"a"\n'
    for n, p, _, vg, ac in ks:
        txt += '.p2align 6\n' + kd(n, vg, ac)
    open(out, 'w').write(txt)
    return {n: getattr(p, 'stamps', []) for n, p, _, _, _ in ks}
VARS = [dict(k2=dict(prio=(1,0))), dict(k2=dict(at=[4]+[3]*18+[3,3], g0=1)), dict(k2=dict(at=[2]+[4]*8+[3]*10, g0=1)), dict(k2=dict(SF='')), dict(k2=dict(at=[3]*9+[2]*9+[4,4,4,4,3], g0=0))]
if __name__ == '__main__':
    build('cdna_kernels/' + NAME + '.s')
    build('fb.s', force_fallback=True)
    Prog.STAMPS = True
    st = build('st.s', sf=' sc1')
    allst = {'st.s': st}
    for i, kw in enumerate(VARS): allst[f'st{i}.s'] = build(f'st{i}.s', **kw)
    import json; json.dump(allst, open('st.json', 'w'))
```

```python
from k01 import *

WS_WQ = WS_END
WS_WM = WS_WQ + 32*576*128
WS_FL = WS_WM + 32*288*128 + 4096
WS_END2 = WS_FL + 256*128
L_B0A, L_B0B, L_B1A, L_B1B = 0, 40960, 73728, 114688
PH1_LDS = 147456
SF = ' sc1'

def ln_body(p, sf=''):
    for i in range(8):
        p.e(f'v_lshlrev_b32 v{12+2*i}, 16, v{4+i}\nv_and_b32 v{13+2*i}, 0xffff0000, v{4+i}')
    def reduce(r):
        p.e(f"""
s_nop 1
v_add_f32_dpp v{r}, v{r}, v{r} quad_perm:[1,0,3,2] row_mask:0xf bank_mask:0xf
s_nop 1
v_add_f32_dpp v{r}, v{r}, v{r} quad_perm:[2,3,0,1] row_mask:0xf bank_mask:0xf
s_nop 1
v_add_f32_dpp v{r}, v{r}, v{r} row_half_mirror row_mask:0xf bank_mask:0xf
s_nop 1
v_add_f32_dpp v{r}, v{r}, v{r} row_mirror row_mask:0xf bank_mask:0xf
s_nop 1
v_readlane_b32 s60, v{r}, 0
v_readlane_b32 s61, v{r}, 16
v_readlane_b32 s62, v{r}, 32
s_nop 1
v_mov_b32 v{r}, s60
v_add_f32 v{r}, s61, v{r}
v_add_f32 v{r}, s62, v{r}
v_mul_f32 v{r}, {hex(f2u(1.0/576))}, v{r}
""")
    p.e('v_add_f32 v4, v12, v13\nv_add_f32 v5, v14, v15\nv_add_f32 v6, v16, v17\nv_add_f32 v7, v18, v19')
    p.e('v_add_f32 v8, v20, v21\nv_add_f32 v9, v22, v23\nv_add_f32 v10, v24, v25\nv_add_f32 v11, v26, v27')
    p.e('v_add_f32 v4, v4, v5\nv_add_f32 v6, v6, v7\nv_add_f32 v8, v8, v9\nv_add_f32 v10, v10, v11')
    p.e('v_add_f32 v4, v4, v6\nv_add_f32 v8, v8, v10\nv_add_f32 v4, v4, v8')
    reduce(4)
    p.e('v_mov_b32 v5, 0\nv_mov_b32 v6, 0')
    for i in range(16):
        t = 8 + (i & 3)
        p.e(f'v_sub_f32 v{t}, v{12+i}, v4\nv_fmac_f32 v{5 + (i & 1)}, v{t}, v{t}')
    p.e('v_add_f32 v5, v5, v6\nv_cndmask_b32 v5, 0, v5, vcc')
    reduce(5)
    p.e(f"""
v_cvt_pk_bf16_f32 v4, v4, v5
v_and_b32 v5, 0xffff0000, v4
v_lshlrev_b32 v4, 16, v4
v_add_f32 v5, {hex(f2u(1e-5))}, v5
v_cvt_pk_bf16_f32 v5, v5, v5
v_lshlrev_b32 v5, 16, v5
v_sqrt_f32 v5, v5
s_nop 0
v_cvt_pk_bf16_f32 v5, v5, v5
v_lshlrev_b32 v5, 16, v5
v_rcp_f32 v5, v5
""")
    for i in range(16): p.e(f'v_sub_f32 v{12+i}, v{12+i}, v4')
    for i in range(8): p.e(f'v_cvt_pk_bf16_f32 v{44+i}, v{12+2*i}, v{13+2*i}')
    for i in range(8): p.e(f'v_lshlrev_b32 v{12+2*i}, 16, v{44+i}\nv_and_b32 v{13+2*i}, 0xffff0000, v{44+i}')
    for i in range(16): p.e(f'v_mul_f32 v{12+i}, v{12+i}, v5')
    for i in range(8): p.e(f'v_cvt_pk_bf16_f32 v{44+i}, v{12+2*i}, v{13+2*i}')

def gen_ph0(p, sf='', prefetch=True):
    p.e(f"""
s_load_dwordx4 s[52:55], s[0:1], 0
s_load_dwordx4 s[56:59], s[0:1], 32
s_load_dwordx2 s[48:49], s[0:1], 72
v_and_b32 v1, 63, v0
v_lshrrev_b32 v2, 6, v0
s_lshl_b32 s3, s2, 3
v_readfirstlane_b32 s20, v2
v_add_u32 v2, s3, v2
v_mul_u32_u24 v3, 1152, v2
v_lshl_add_u32 v3, v1, 5, v3
v_cmp_gt_u32 vcc, 36, v1
v_mov_b32 v30, 0x7ff00000
v_lshrrev_b32 v31, 5, v2
v_cndmask_b32 v3, v30, v3, vcc
v_mul_u32_u24 v31, 36864, v31
v_lshrrev_b32 v29, 1, v1
v_lshl_add_u32 v31, v29, 11, v31
v_and_b32 v29, 1, v1
v_lshl_add_u32 v31, v29, 9, v31
v_and_b32 v29, 16, v2
v_lshl_add_u32 v31, v29, 6, v31
v_and_b32 v29, 15, v2
v_lshl_add_u32 v31, v29, 4, v31
v_cndmask_b32 v31, v30, v31, vcc
s_add_u32 s21, s3, s20
v_lshrrev_b32 v32, 3, v1
v_and_b32 v33, 7, v1
""")
    def wq_addr(task, dA, dB, dD):
        p.e(f"""
s_lshr_b32 s22, s{task}, 2
s_and_b32 s23, s{task}, 3
s_and_b32 s24, s22, 2
s_lshr_b32 s25, s22, 1
s_and_b32 s25, s25, 4
s_or_b32 s24, s24, s25
s_lshl_b32 s23, s23, 3
v_xor_b32 v34, s24, v33
v_add_u32 v35, s23, v32
s_mul_i32 s25, s22, 3456
v_mul_u32_u24 v{dB}, 36, v35
v_add_u32 v{dB}, s25, v{dB}
v_lshrrev_b32 v36, 1, v34
v_and_b32 v37, 1, v34
v_lshlrev_b32 v38, 4, v37
v_sub_u32 v37, 2, v37
v_cmp_eq_u32 s[26:27], 3, v36
v_cmp_eq_u32 s[28:29], 6, v34
s_lshl_b32 s25, s22, 7
v_cndmask_b32 v36, v36, v37, s[26:27]
v_cndmask_b32 v38, v38, 32, s[26:27]
v_mul_u32_u24 v36, 1152, v36
v_add3_u32 v{dA}, v{dB}, v36, v38
v_add_u32 v{dB}, 32, v{dB}
v_cndmask_b32 v{dB}, v30, v{dB}, s[28:29]
v_mul_u32_u24 v{dD}, {576*128}, v35
v_lshl_add_u32 v{dD}, v33, 4, v{dD}
v_add_u32 v{dD}, s25, v{dD}
v_add_u32 v{dD}, {WS_WQ}, v{dD}
""")
    wq_addr(21, 52, 53, 54)
    p.e('s_waitcnt lgkmcnt(0)')
    srd(p, 4, 48, WS_SIZE)
    srd(p, 8, 56, 576*4608*2)
    srd(p, 12, 58, 576*4608*2)
    srd(p, 16, 54, 576*1728*2)
    srd(p, 44, 52, 2048*576*2)
    p.e("""
buffer_load_dwordx4 v[4:7], v3, s[44:47], 0 offen
buffer_load_dwordx4 v[8:11], v3, s[44:47], 0 offen offset:16
buffer_load_dwordx4 v[56:59], v52, s[16:19], 0 offen
buffer_load_dword v60, v53, s[16:19], 0 offen
s_mov_b64 s[30:31], s[28:29]
v_mov_b32 v55, v30
s_mov_b64 s[28:29], 0
s_cmp_ge_u32 s21, 256
s_cbranch_scc1 PH0_m
s_add_u32 s32, s21, 2048
""")
    wq_addr(32, 52, 53, 55)
    p.e("""
buffer_load_dwordx4 v[64:67], v52, s[16:19], 0 offen
buffer_load_dword v61, v53, s[16:19], 0 offen
s_branch PH0_j
""")
    p.label('PH0_m')
    p.e(f"""
s_sub_u32 s32, s21, 256
s_lshr_b32 s22, s32, 2
s_and_b32 s23, s32, 3
s_and_b32 s24, s22, 2
s_lshr_b32 s25, s22, 1
s_and_b32 s25, s25, 4
s_or_b32 s24, s24, s25
s_lshl_b32 s23, s23, 3
v_xor_b32 v34, s24, v33
v_add_u32 v35, s23, v32
v_lshrrev_b32 v36, 2, v35
v_mul_u32_u24 v36, 1152, v36
v_and_b32 v37, 3, v35
v_lshl_add_u32 v36, v37, 5, v36
v_and_b32 v37, 1, v34
v_lshl_add_u32 v36, v37, 4, v36
v_lshrrev_b32 v37, 2, v34
v_mul_u32_u24 v37, {288*9216}, v37
s_mul_i32 s25, s22, 9216
s_add_u32 s25, s25, 1024
v_add3_u32 v52, v36, v37, s25
v_and_b32 v37, 2, v34
v_cmp_eq_u32 s[26:27], 0, v37
v_mul_u32_u24 v55, {288*128}, v35
v_lshl_add_u32 v55, v33, 4, v55
s_lshl_b32 s25, s22, 7
s_add_u32 s25, s25, {WS_WM}
v_add_u32 v55, s25, v55
s_cmp_lt_u32 s32, 1152
s_cselect_b32 s25, 0, 0x7ff00000
v_or_b32 v55, s25, v55
v_or_b32 v52, s25, v52
s_mov_b64 exec, s[26:27]
buffer_load_dwordx4 v[64:67], v52, s[8:11], 0 offen
s_not_b64 exec, exec
buffer_load_dwordx4 v[64:67], v52, s[12:15], 0 offen
s_mov_b64 exec, -1
""")
    p.label('PH0_j')
    p.stamp('issued')
    p.e('s_waitcnt vmcnt(4)')
    p.stamp('xin')
    ln_body(p)
    p.e(f"""
buffer_store_dwordx4 v[44:47], v31, s[4:7], 0 offen{sf}
buffer_store_dwordx4 v[48:51], v31, s[4:7], 0 offen offset:256{sf}
s_waitcnt vmcnt(2)
v_cndmask_b32 v58, v58, v60, s[30:31]
v_cndmask_b32 v66, v66, v61, s[28:29]
buffer_store_dwordx4 v[56:59], v54, s[4:7], 0 offen{sf}
buffer_store_dwordx4 v[64:67], v55, s[4:7], 0 offen{sf}
""")
    p.e(f"""
v_cmp_gt_u32 vcc, 32, v0
s_lshl_b32 s22, s2, 7
v_mov_b32 v40, 0
v_lshlrev_b32 v41, 2, v0
v_cndmask_b32 v41, v30, v41, vcc
s_add_u32 s22, s22, {WS_FL}
buffer_store_dword v40, v41, s[4:7], s22 offen{sf}
""")
    if prefetch:
        p.e("""
s_and_b32 s22, s2, 7
s_lshr_b32 s23, s2, 3
s_lshl_b32 s23, s23, 9
v_add_u32 v32, s23, v0
v_lshrrev_b32 v33, 3, v32
v_and_b32 v34, 7, v32
s_mul_i32 s22, s22, 1152
v_mul_u32_u24 v35, 9216, v33
v_lshl_add_u32 v35, v34, 7, v35
v_add_u32 v35, s22, v35
v_subrev_u32 v36, %d, v35
buffer_load_dword v42, v35, s[8:11], 0 offen
buffer_load_dword v43, v36, s[12:15], 0 offen
""" % (576*9216))

def gen_k0n(prefetch=True):
    p = Prog()
    p.e('s_cmp_ge_u32 s2, 256\ns_cbranch_scc1 K0_done')
    p.stamp('start'); p.stamp('rstart', True)
    gen_ph0(p, prefetch=prefetch)
    p.dump_stamps(0, 20, WS_ST)
    p.label('K0_done')
    p.e('s_endpgm')
    return p

def gen_ph1(p, XD=4, cF=6, wait2=False, patC=True, SF=' sc1', roles=None, common=None, touch=True):
    X_ = 0
    P_, Q_, S_, F_ = 144, 176, 208, 224
    TB = 240
    T_ = 244
    vL16, vDF, vF = 248, 249, 250
    R_ = 251
    def X(tt, kp): return vr(X_ + 4*(2*kp + tt), 4)
    sW, sC, sR, sQ = 20, 21, 22, 23
    sCol, sColM, sW1, sSo = 25, 26, 27, 30
    sXN, sH0, sHM, sQF, sKV, sT = 31, 32, 33, 34, 35, 28
    sWQ, sWM = 40, 41
    sNL, sCQ = 50, 51
    L = T_+1
    p.e(f"""
s_load_dwordx2 s[52:53], s[0:1], 72
s_load_dwordx4 s[56:59], s[0:1], 32
s_load_dwordx2 s[54:55], s[0:1], 48
v_lshrrev_b32 v{T_}, 6, v0
v_and_b32 v{L}, 63, v0
v_readfirstlane_b32 s{sW}, v{T_}
v_lshlrev_b32 v{vL16}, 4, v{L}
s_and_b32 s{sQ}, s2, 7
s_lshr_b32 s3, s2, 3
s_and_b32 s24, s3, 3
s_lshr_b32 s{sR}, s3, 2
s_lshl_b32 s{sC}, s{sQ}, 2
s_add_u32 s{sC}, s{sC}, s24
s_mul_i32 s{sCol}, s{sQ}, 1152
s_lshl_b32 s3, s24, 5
s_add_u32 s{sColM}, s{sCol}, s3
s_add_u32 s{sColM}, s{sColM}, 1024
s_lshl_b32 s3, s24, 8
s_add_u32 s{sCol}, s{sCol}, s3
s_lshl_b32 s{sW1}, s{sW}, 10
s_lshl_b32 s{sT}, s{sR}, 3
s_add_u32 s{sT}, s{sT}, s{sW}
s_mul_i32 s{sXN}, s{sT}, {36*1024}
v_lshrrev_b32 v{T_+2}, 3, v{L}
v_and_b32 v{T_+3}, 7, v{L}
v_and_b32 v{T_}, 2, v{T_+2}
v_xor_b32 v{T_+3}, v{T_+3}, v{T_}
s_and_b32 s3, s{sW}, 1
s_lshl_b32 s3, s3, 2
v_xor_b32 v{T_+3}, s3, v{T_+3}
s_lshl_b32 s3, s{sW}, 3
v_add_u32 v{T_+2}, s3, v{T_+2}
v_mul_u32_u24 v{T_+2}, 9216, v{T_+2}
v_lshl_add_u32 v{vDF}, v{T_+3}, 4, v{T_+2}
s_waitcnt lgkmcnt(0)
""")
    srd(p, 4, 52, WS_SIZE)
    srd(p, 8, 56, 576*4608*2)
    srd(p, 12, 58, 576*4608*2)
    srd(p, 16, 54, 4608*576*2)

    units = [('G0', 0, 5), ('G0', 5, 9), ('U0', 0, 5), ('U0', 5, 9), ('QKV', 0, 5), ('QKV', 5, 9), ('M', 0, 5), ('G1', 0, 4), ('G1', 4, 9), ('U1', 0, 4), ('U1', 4, 9)]
    ubase = [L_B0A, L_B0B, L_B1A, L_B1B, L_B0A, L_B0B, L_B1A, L_B1B, L_B0A, L_B0B, L_B1A]
    xtok = {}; dtok = {}; stok = [0]
    def V(t, c=4): return ('v', t, c)
    def do_op(op):
        k = op[0]
        if k in ('s', 'v'): p.e(op[1])
        elif k == 'dma': dtok[op[1]] = p.vm(op[2])
        elif k == 'x': xtok[op[1]] = p.vm(op[2])
        elif k == 'st': stok[0] = p.vm(op[1])
        elif k == 'fn': op[1]()
    def dma_unit(n):
        g, i0, i1 = units[n]; base = ubase[n]
        ops = []
        for i in range(i0, i1):
            li = i - i0
            if g[0] in 'GU':
                sr = 8 if g[0] == 'G' else 12
                add = 128 if g[1] == '1' else 0
                ops.append(('s', f's_add_u32 m0, s{sW1}, {base + li*8192}\ns_add_u32 s{sSo}, s{sCol}, {add + i*64*9216}', 8))
                ops.append(('dma', n, f'buffer_load_dwordx4 v{vDF}, s[{sr}:{sr+3}], s{sSo} offen lds'))
            else:
                ops.append(('s', f's_add_u32 m0, s{sW1}, {base + li*8192}\ns_add_u32 s{sSo}, s{sWQ if g == "QKV" else sWM}, {i*8192}', 8))
                ops.append(('dma', n, f'buffer_load_dwordx4 v{vL16}, s[4:7], s{sSo} offen lds'))
        return ops
    def xops(kp0, kp1):
        ops = []
        for kp in range(kp0, kp1):
            if kp % 2 == 0: ops.append(('s', f's_add_u32 s60, s{sXN}, {WS_XN + kp*2048}', 4))
            for tt in range(2):
                ops.append(('x', (tt, kp), f'buffer_load_dwordx4 {X(tt,kp)}, v{vL16}, s[4:7], s60 offen offset:{(kp%2)*2048 + tt*1024}'))
        return ops
    for o in dma_unit(0) + xops(0, XD): do_op(o)
    p.e(f"""
v_lshrrev_b32 v{T_}, 4, v{L}
v_bfe_u32 v{T_+2}, v{L}, 2, 2
v_lshl_add_u32 v{T_+3}, v{T_}, 3, v{T_+2}
v_lshlrev_b32 v{vF}, 7, v{T_+3}
v_lshrrev_b32 v{T_+2}, 1, v{T_+2}
v_lshl_add_u32 v{vF}, v{T_+2}, 5, v{vF}
v_and_b32 v{T_}, 1, v{T_}
v_lshl_add_u32 v{vF}, v{T_}, 6, v{vF}
v_and_b32 v{T_}, 3, v{L}
v_lshl_add_u32 v{vF}, v{T_}, 3, v{vF}
s_mul_i32 s{sWQ}, s{sC}, {576*128}
s_add_u32 s{sWQ}, s{sWQ}, s{sW1}
s_add_u32 s{sWQ}, s{sWQ}, {WS_WQ}
s_mul_i32 s{sWM}, s{sC}, {288*128}
s_add_u32 s{sWM}, s{sWM}, s{sW1}
s_add_u32 s{sWM}, s{sWM}, {WS_WM}
s_mul_i32 s{sH0}, s{sT}, {288*1024}
s_lshl_b32 s3, s{sColM}, 5
s_add_u32 s{sHM}, s{sH0}, s3
s_add_u32 s{sHM}, s{sHM}, {WS_H}
s_lshl_b32 s3, s{sCol}, 5
s_add_u32 s{sH0}, s{sH0}, s3
s_add_u32 s{sH0}, s{sH0}, {WS_H}
s_add_u32 s61, s{sH0}, 4096
s_lshl_b32 s3, s{sC}, 6
s_add_u32 s3, s3, s{sT}
s_lshl_b32 s{sQF}, s3, 10
s_add_u32 s{sQF}, s{sQF}, {WS_QF}
s_mul_i32 s{sKV}, s3, 3072
s_add_u32 s{sKV}, s{sKV}, {WS_KV}
s_mov_b32 s{sNL}, {hex(f2u(-LOG2E))}
s_mov_b32 s{sCQ}, {hex(f2u(CQ))}
""")
    p.e(f"""
v_and_b32 v{R_+1}, {0x270}, v{vL16}
v_and_b32 v{T_}, 0x80, v{vL16}
v_lshl_add_u32 v{R_+1}, v{T_}, 1, v{R_+1}
v_and_b32 v{T_}, 0x100, v{vL16}
v_lshrrev_b32 v{T_}, 1, v{T_}
v_add_u32 v{R_+1}, v{R_+1}, v{T_}
v_and_b32 v{R_+2}, 0xf0, v{vL16}
v_and_b32 v{T_}, 0x300, v{vL16}
v_lshl_add_u32 v{R_+2}, v{T_}, 1, v{R_+2}
v_lshrrev_b32 v{T_}, 3, v{T_}
v_add_u32 v{T_}, v{T_}, v{vL16}
v_and_b32 v{T_}, 0x70, v{T_}
v_and_b32 v{T_+1}, 0xf8f, v{R_+2}
v_or_b32 v{T_+1}, v{T_+1}, v{T_}
v_and_b32 v{T_+2}, 0x80, v{vL16}
v_cmp_eq_u32 vcc, 0, v{T_+2}
v_and_b32 v{T_+2}, 0xf0, v{vL16}
v_mov_b32 v{R_+4}, 0
v_cndmask_b32 v{R_}, v{T_+1}, v{R_+2}, vcc
v_and_b32 v{T_+1}, 0xb0, v{T_+2}
v_cmp_eq_u32 vcc, 0x20, v{T_+1}
v_and_b32 v{T_+1}, 0x60, v{T_+2}
v_mov_b32 v{R_+3}, 0
v_cndmask_b32 v{R_+4}, v{R_+4}, 1.0, vcc
v_cmp_eq_u32 vcc, 0, v{T_+1}
v_and_b32 v{T_+1}, 0xe0, v{T_+2}
v_mov_b32 v{T_+3}, s{sCQ}
v_cndmask_b32 v{R_+3}, v{R_+3}, 1.0, vcc
v_cmp_eq_u32 vcc, 0x40, v{T_+1}
s_nop 1
v_cndmask_b32 v{R_+3}, v{R_+3}, v{T_+3}, vcc
""")
    accs = {'G0': P_, 'U0': Q_, 'QKV': P_, 'M': Q_, 'G1': P_, 'U1': Q_}
    pairs = []
    for n, (g, i0, i1) in enumerate(units):
        acc = accs[g]
        kps = range(9) if g == 'M' else range(2*i0, 2*i1)
        for kp in kps:
            lk = kp - kps[0]
            for t in range(4):
                rd = [(TB + t, lk*4096 + u*512) for u in range(2)]
                if g == 'M': pairs.append(dict(n=n, g=g, kp=kp + 9*(t >> 1), acc=acc + 8*(t & 1), swap=False, rd=rd))
                else: pairs.append(dict(n=n, g=g, kp=kp, acc=acc + 8*t, swap=(g == 'QKV' and t >= 2), rd=rd))
    def base_ops(n):
        return f'v_add_u32 v{TB}, {ubase[n]}, v{vF}\nv_xor_b32 v{TB+1}, 32, v{TB}\nv_xor_b32 v{TB+2}, 64, v{TB}\nv_xor_b32 v{TB+3}, 96, v{TB}'
    def epi_G(acc):
        ops = []
        for b in range(8):
            r = acc + 4*b
            ops += [V(f'v_mul_f32 v{r+k}, s{sNL}, v{r+k}') for k in range(4)]
            ops += [V(f'v_exp_f32 v{r+k}, v{r+k}', 8) for k in range(4)]
            ops += [V(f'v_add_f32 v{r+k}, 1.0, v{r+k}') for k in range(4)]
            ops += [V(f'v_cvt_pk_bf16_f32 v{S_ + 2*b + k}, v{r+2*k}, v{r+2*k+1}') for k in range(2)]
        return ops
    def swapst(q, addr, so, off, nop=''):
        return [V(f'{nop}v_permlane16_swap_b32 v{q}, v{q+2}\nv_permlane16_swap_b32 v{q+1}, v{q+3}', 8),
                ('st', f'buffer_store_dwordx4 v[{q}:{q+3}], v{addr}, s[4:7], s{so} offen offset:{off}{SF}')]
    def epi_U(acc, so):
        ops = []; pend = []
        for b in range(8):
            r = acc + 4*b; sr = S_ + 2*b; t = T_
            ops += [V(f'v_lshlrev_b32 v{t}, 16, v{sr}'), V(f'v_and_b32 v{t+1}, 0xffff0000, v{sr}'),
                    V(f'v_lshlrev_b32 v{t+2}, 16, v{sr+1}'), V(f'v_and_b32 v{t+3}, 0xffff0000, v{sr+1}')]
            ops += pend; pend = []
            ops += [V(f'v_rcp_f32 v{t+k}, v{t+k}', 8) for k in range(4)]
            ops += [V(f'v_mul_f32 v{r+k}, v{r+k}, v{t+k}') for k in range(4)]
            ops += [V(f'v_cvt_pk_bf16_f32 v{sr+k}, v{r+2*k}, v{r+2*k+1}') for k in range(2)]
            if b & 1: pend = swapst(S_ + 4*(b >> 1), vL16, so, (b >> 1)*1024, 's_nop 1\n' if b == 7 else '')
        return ops + pend
    def epi_QKV(acc):
        cv = lambda a, b: [V(f'v_cvt_pk_bf16_f32 v{S_+k}, v{acc+2*k}, v{acc+2*k+1}') for k in range(a, b)]
        ops = cv(4, 12)
        ops.append(('st', f'buffer_store_dwordx4 v[{S_+8}:{S_+11}], v{R_+2}, s[4:7], s{sKV} offen offset:1024{SF}'))
        ops += [V(f'v_fma_f32 v{acc+24+k}, v{acc+24+k}, v{R_+3}, v{R_+4}') for k in range(8)]
        ops += cv(12, 16) + [V(f'v_mul_f32 v{acc+k}, s{sCQ}, v{acc+k}') for k in range(4)]
        ops += swapst(S_+4, R_+1, sKV, 0)
        ops += [V(f'v_mul_f32 v{acc+k}, s{sCQ}, v{acc+k}') for k in range(4, 8)] + cv(0, 4)
        late = [('st', f'buffer_store_dwordx4 v[{S_+12}:{S_+15}], v{R_}, s[4:7], s{sKV} offen offset:1280{SF}')], swapst(S_, vL16, sQF, 0)
        return ops, late
    def epi_G2(acc):
        ops = []
        for b in range(8):
            r = acc + 4*b
            ops += [V(f'v_mul_f32 v{r+k}, s{sNL}, v{r+k}') for k in range(4)]
            ops += [V(f'v_exp_f32 v{r+k}, v{r+k}', 8) for k in range(4)]
            ops += [V(f'v_add_f32 v{r+k}, 1.0, v{r+k}') for k in range(4)]
            ops += [V(f'v_rcp_f32 v{r+k}, v{r+k}', 8) for k in range(4)]
        return ops
    def epi_U2():
        ops = [V(f'v_mul_f32 v{Q_+k}, v{Q_+k}, v{P_+k}') for k in range(32)]
        ops += [V(f'v_cvt_pk_bf16_f32 v{Q_+k}, v{Q_+2*k}, v{Q_+2*k+1}') for k in range(16)]
        sts = []
        for t in range(4):
            a, b = swapst(Q_ + 4*t, vL16, 61, t*1024)
            ops.append(a); sts.append(b[1])
        return ops, sts
    def epi_M(acc):
        ops = [V(f'v_mul_f32 v{acc+k}, s{sNL}, v{acc+k}') for k in range(8)]
        ops += [V(f'v_exp_f32 v{acc+k}, v{acc+k}', 8) for k in range(8)]
        ops += [V(f'v_add_f32 v{acc+k}, 1.0, v{acc+k}') for k in range(8)]
        ops += [V(f'v_rcp_f32 v{acc+k}, v{acc+k}', 8) for k in range(8)]
        ops += [V(f'v_mul_f32 v{acc+k}, v{acc+k}, v{acc+8+k}') for k in range(8)]
        ops += [V(f'v_cvt_pk_bf16_f32 v{T_+k}, v{acc+2*k}, v{acc+2*k+1}') for k in range(4)]
        ops += swapst(T_, vL16, sHM, 0, 's_nop 1\n')
        return ops
    eqkv, late = epi_QKV(P_)
    em = epi_M(Q_)
    idle = [V('', 8)]*16
    epi_q = {'G0': [], 'U0': epi_G(P_), 'QKV': epi_U(Q_, sH0), 'M': eqkv, 'G1': em[:4] + late[0] + em[4:22] + late[1] + em[22:] + idle, 'U1': epi_G2(P_)}
    mem_after = {0: dma_unit(1) + dma_unit(2) + dma_unit(3)}
    for n in range(1, 8): mem_after[n] = dma_unit(n+3)
    if roles: mem_after[9] = common()
    if roles and touch:
        pre = f'''s_lshr_b32 s62, s2, 3
s_lshl_b32 s62, s62, 3
s_add_u32 s62, s62, s{sW}
s_mul_i32 s62, s62, {41*128}
s_lshr_b32 s63, s{sQ}, 1
s_mul_i32 s63, s63, {1152*1152}
s_add_u32 s62, s62, s63
v_lshlrev_b32 v{T_}, 3, v{vL16}'''
        tl = lambda i: ('fn', lambda: (p.e(f's_mov_b64 exec, 0x3fff'), dtok.__setitem__('touch', p.vm(f'buffer_load_dword v{T_+1}, v{T_}, s[16:19], s62 offen offset:{i*14*128}')), p.e('s_mov_b64 exec, -1')))
        mem_after[2] = mem_after[2] + [('s', pre, 4), tl(0), tl(1)]
        mem_after[3] = [tl(2)] + mem_after[3]
    xq = xops(XD, 18)
    ta = [8]
    N = len(pairs)
    import copy
    st = dict(rtok={}, mq=[], cur=None, seen=set(), eq=[], rate=0, credit=0.0, gi=0, stok=0)
    def issue_read(P, u):
        if P >= N: return
        pr = pairs[P]; mq = st['mq']
        if u == 0 and (P == 0 or pairs[P-1]['n'] != pr['n']):
            n = pr['n']
            while n not in dtok or any(o[0] == 'dma' and o[1] == n for o in mq): do_op(mq.pop(0))
            p.e(base_ops(n))
            tok = dtok[n]
            if n == 4: tok = max(tok, dtok.get('touch', 0))
            if roles and n == 9: tok = max(tok, stok[0])
            p.wait(vm=tok, lgkm=p.lgkm_issued)
            p.e('s_barrier')
            if n in (0, 2, 10) or not roles: p.stamp(f'B{n}')
            if roles and n == 9: publish(p, 1, sW, 0, T_, 'PH1_pub')
            mq.extend(mem_after.get(n, []))
        a, off = pr['rd'][u]
        d = F_ + 4*(P % 4) + 2*u
        st['rtok'][P] = p.ds(f'ds_read_b64_tr_b16 v[{d}:{d+1}], v{a} offset:{off}')
    def run(P0, P1, xgap=None):
        rtok, mq, seen = st['rtok'], st['mq'], st['seen']
        for P in range(P0, P1):
            pr = pairs[P]
            if pr['g'] != st['cur']:
                st['cur'] = pr['g']
                ng = sum(1 for q in pairs if q['g'] == pr['g'])
                st['eq'] = list(epi_q[pr['g']])
                nb = sum(o[2] for o in st['eq'] if o[0] == 'v') / 8.0
                st['rate'] = nb / (ng - 2) * 1.01
                st['credit'] = 0.0; st['gi'] = 0
            eq = st['eq']
            for tt in range(2):
                xid = (tt, pr['kp'])
                if wait2: lg = rtok[min(P+1, N-1)] if (tt == 0 and P % 2 == 0) else None
                else: lg = rtok[P] if tt == 0 else None
                p.wait(lgkm=lg, vm=xtok[xid])
                fa = vr(F_ + 4*(P % 4), 4)
                a, b = (X(*xid), fa) if pr['swap'] else (fa, X(*xid))
                d = vr(pr['acc'] + 4*tt, 4)
                key = (pr['g'], d)
                p.e(f'v_mfma_f32_16x16x32_bf16 {d}, {a}, {b}, {d if key in seen else "0"}')
                seen.add(key)
                if patC and st['rate'] > 0.5:
                    if tt == 0: issue_read(P+3, 0); issue_read(P+3, 1)
                else: issue_read(P+3, tt)
                G = 2*P + tt
                if xq and G % 4 == 0:
                    while xq[0][0] == 's': do_op(xq.pop(0))
                    do_op(xq.pop(0))
                elif mq and G >= ta[0]:
                    while mq and mq[0][0] == 's': do_op(mq.pop(0))
                    if mq: do_op(mq.pop(0))
                    ta[0] = G + (xgap or (cF if not xq else 10))
                if st['gi'] >= 2 and tt == 1:
                    st['credit'] += st['rate']
                    while eq and eq[0][0] == 'st': do_op(eq.pop(0))
                    while eq and st['credit'] >= 0.999:
                        st['credit'] -= 1.0; c = 0
                        while eq and eq[0][0] == 'v' and c < 8:
                            o = eq.pop(0); do_op(o); c += o[2]
            st['gi'] += 1
            if P + 1 == N or pairs[P+1]['g'] != st['cur']:
                for o in eq: do_op(o)
                del eq[:]
    def tail():
        while st['mq']: do_op(st['mq'].pop(0))
        p.stamp('tail')
        p.e('s_nop 7')
        ops, sts = epi_U2()
        for o in ops: do_op(o)
        return sts
    if not roles: p.stamp('setup')
    for P in range(3):
        issue_read(P, 0); issue_read(P, 1)
    if not roles:
        run(0, N)
        for t in tail(): p.vm(t)
        return sW
    PM = min(i for i, q in enumerate(pairs) if q['n'] == 10)
    run(0, PM)
    assert not st['mq']
    p.e(f's_cmp_ge_u32 s{sW}, 4\ns_cbranch_scc1 PH_role1')
    save = (copy.deepcopy(st), p.lgkm_issued, p.lgkm_done, p.vm_issued, p.vm_done, ta[0], list(getattr(p, 'stamps', [])))
    for ri, (pre, body) in enumerate(roles):
        if ri == 1:
            p.label('PH_role1')
            st.clear(); st.update(save[0])
            p.lgkm_issued, p.lgkm_done, p.vm_issued, p.vm_done, ta[0] = save[1:6]
            if Prog.STAMPS: p.stamps = save[6]
        st['mq'].extend(pre())
        run(PM, N, xgap=3)
        body(tail())
    return sW

def publish(p, val, sW, wave, vt, lab):
    p.e(f"""
s_cmp_lg_u32 s{sW}, {wave}
s_cbranch_scc1 {lab}
s_lshl_b32 s62, s2, 7
s_add_u32 s62, s62, {WS_FL}
v_mov_b32 v{vt}, {val}
s_mov_b64 exec, 1
buffer_store_dword v{vt}, off, s[4:7], s62 sc1
s_mov_b64 exec, -1
""")
    p.label(lab)

def gen_k1n(**kw):
    p = Prog()
    p.e('s_cmp_ge_u32 s2, 256\ns_cbranch_scc1 K1_done')
    p.stamp('start'); p.stamp('rstart', True)
    sW = gen_ph1(p, **kw)
    p.dump_stamps(1, sW, WS_ST)
    p.label('K1_done')
    p.e('s_endpgm')
    return p

if __name__ == '__main__':
    for g in (gen_k0n, gen_k1n):
        p = g()
        pr = check_hazards(p.lines, 'k')
        print(len(p.lines), 'lines;', len(pr), 'hazards')
        for x in pr[:20]: print(x)
```

```python
from ph1 import *

KV_RING = 16
L_KV = 114688
NSLOT = 5
SLOT = 20480
L_WD = 0
PK_LDS = 163840
vL16 = 248
SPIN_MAX = 1 << 20
PUB2 = 5
INV = [True]
ROT = [True]
PACE = [1]

def plan(at, g0):
    a = [0]
    for n in at: a.append(a[-1] + n)
    assert a[-1] == 64 and g0 + 18 <= len(at), a
    return a

def lines_ops(txt, per=2):
    ls = [l for l in txt.strip().split('\n') if l.strip()]
    return [('v', '\n'.join(ls[i:i+per]), 4) for i in range(0, len(ls), per)]

def poll(p, vaddr, vdst, stage, lab, tok):
    p.wait(vm=tok)
    p.e(f"""
v_cmp_gt_u32 vcc, {stage}, v{vdst}
s_cbranch_vccz {lab}_ok
s_mov_b32 s63, {SPIN_MAX}
""")
    p.label(f'{lab}_spin')
    p.e(f"""
s_sleep 2
buffer_load_dword v{vdst}, v{vaddr}, s[4:7], 0 offen sc1
s_waitcnt vmcnt(0)
v_cmp_gt_u32 vcc, {stage}, v{vdst}
s_sub_u32 s63, s63, 1
s_cbranch_scc1 {lab}_ok
s_cbranch_vccnz {lab}_spin
""")
    p.label(f'{lab}_ok')
    if INV[0]: p.e('buffer_inv sc1')

def role_att(p, a, force_fallback, SF, out):
    S0, S1, O0, O1, P0, P1 = 8, 24, 40, 56, 72, 80
    K_, V1, V0a, V0b = 88, 92, 96, 100
    KX = 104
    C_ = 108
    Q0, Q1, QX0, QX1 = 208, 212, 216, 218
    vK, vV, vX = 220, 221, 222
    t0, t1, t2, t3, t4, t5 = 223, 251, 252, 253, 254, 255
    sW, sH, sR = 20, 21, 22
    sT, sG = 36, 37
    qt = [0]
    def pre():
        ops = lines_ops(f"""
s_lshl_b32 s{sT}, s{sR}, 3
s_lshl_b32 s38, s{sW}, 1
s_add_u32 s{sT}, s{sT}, s38
s_mul_i32 s{sG}, s{sH}, {64*3072}
s_add_u32 s{sG}, s{sG}, {WS_KV - L_KV}
s_lshl_b32 s38, s{sH}, 6
s_add_u32 s38, s38, s{sT}
s_lshl_b32 s39, s38, 10
s_add_u32 s39, s39, {WS_QF}
s_mul_i32 s38, s38, 3072
s_add_u32 s38, s38, {WS_KV}
v_bfe_u32 v{t1}, v{vL16}, 9, 1
v_bfe_u32 v{t2}, v{vL16}, 8, 1
v_bfe_u32 v{t3}, v{vL16}, 6, 1
v_bfe_u32 v{t4}, v{vL16}, 7, 1
v_bfe_u32 v{t5}, v{vL16}, 4, 2
v_lshlrev_b32 v{t5}, 1, v{t5}
v_lshl_add_u32 v{t5}, v{t3}, 9, v{t5}
v_lshl_add_u32 v{t5}, v{t1}, 4, v{t5}
v_lshl_add_u32 v{t0}, v{t2}, 3, v{t5}
v_lshl_add_u32 v{t0}, v{t4}, 10, v{t0}
v_add_u32 v{t0}, {1024 + 20*16}, v{t0}
""", 3)
        def q():
            p.vm(f'buffer_load_dwordx4 v[{Q0}:{Q0+3}], v{vL16}, s[4:7], s39 offen sc1')
            p.vm(f'buffer_load_ushort v{QX0}, v{t0}, s[4:7], s38 offen sc1')
            p.vm(f'buffer_load_dwordx4 v[{Q1}:{Q1+3}], v{vL16}, s[4:7], s39 offen offset:1024 sc1')
            qt[0] = p.vm(f'buffer_load_ushort v{QX1}, v{t0}, s[4:7], s38 offen offset:3072 sc1')
        ops.append(('fn', q))
        ops += lines_ops(f"""
v_lshl_add_u32 v{vX}, v{t4}, 3, v{t5}
v_lshl_add_u32 v{vX}, v{t2}, 10, v{vX}
v_lshl_add_u32 v{vX}, v{t3}, 5, v{vX}
v_lshl_add_u32 v{vX}, v{t2}, 6, v{vX}
v_add_u32 v{vX}, {L_KV + 1024 + 24*16}, v{vX}
v_bfe_u32 v{t2}, v{vL16}, 4, 5
v_cmp_eq_u32 vcc, 22, v{t2}
v_min_u32 v{t3}, 19, v{t2}
v_add_u32 v{vK}, {L_KV}, v{vL16}
v_cndmask_b32 v{t2}, v{t3}, v{t2}, vcc
v_lshlrev_b32 v{t2}, 4, v{t2}
v_lshl_add_u32 v{vV}, v{t1}, 9, v{t2}
v_add_u32 v{vV}, {L_KV}, v{vV}
v_mov_b32 v{QX0+1}, 0
v_mov_b32 v{QX1+1}, 0
""", 2)
        return ops
    def body(sts):
        stok = [0]
        p.e(f'v_mov_b32 v{KX+1}, 0')
        V0 = lambda i: V0a if i % 2 == 0 else V0b
        def rd(i, part):
            if i > 63: return
            if part == 'k' and i in a:
                ph = a.index(i)
                if ph == 0: p.wait(vm=qt[0])
                if ph == PUB2: p.wait(vm=stok[0])
                p.e('s_barrier')
                if sts: stok[0] = p.vm(sts.pop(0))
                if ph in (0, 4, 12, 19, 20): p.stamp(f'a{i}')
            off = (i % KV_RING)*3072
            if part == 'x': p.ds(f'ds_read_u16 v{KX}, v{vX} offset:{off}')
            elif part == 'k': p.ds(f'ds_read_b128 {vr(K_,4)}, v{vK} offset:{off}')
            elif part == 'v0': p.ds(f'ds_read_b128 {vr(V0(i),4)}, v{vV} offset:{off+1024}')
            else: p.ds(f'ds_read_b128 {vr(V1,4)}, v{vV} offset:{off+2048}')
        def qk1(S, Q): p.e(f'v_mfma_f32_32x32x16_bf16 {vr(S,16)}, {vr(K_,4)}, {vr(Q,4)}, 0')
        def qk2(S, QX): p.e(f'v_mfma_f32_32x32x8bf16_1k {vr(S,16)}, {vr(KX,2)}, {vr(QX,2)}, {vr(S,16)}')
        def pv(O, Vr, P, first=False): p.e(f'v_mfma_f32_32x32x16_bf16 {vr(O,16)}, {vr(Vr,4)}, {vr(P,4)}, {"0" if first else vr(O,16)}')
        def ex(S, x, y):
            for k in range(x, y): p.e(f'v_exp_f32 v{S+k}, v{S+k}')
        def cv(P, S, u):
            for k in range(4*u, 4*u+4): p.e(f'v_cvt_pk_bf16_f32 v{P+k}, v{S+2*k}, v{S+2*k+1}')
        rd(0, 'k'); rd(0, 'x'); rd(0, 'v0')
        p.wait(vm=qt[0], lgkm=p.lgkm_issued)
        qk1(S0, Q0); qk2(S0, QX0)
        p.e('s_nop 7\ns_nop 1')
        for i in range(64):
            qk1(S1, Q1); rd(i+1, 'k'); rd(i+1, 'v0')
            ex(S0, 0, 4)
            if i > 0: pv(O1, V1, P1+4)
            rd(i, 'v1')
            ex(S0, 4, 8); cv(P0, S0, 0)
            qk2(S1, QX1); rd(i+1, 'x')
            ex(S0, 8, 12)
            pv(O0, V0(i), P0, i == 0)
            ex(S0, 12, 16); cv(P0, S0, 1)
            p.wait(lgkm=p.lgkm_issued)
            if i < 63: qk1(S0, Q0)
            ex(S1, 0, 4)
            pv(O0, V1, P0+4)
            ex(S1, 4, 8); cv(P1, S1, 0)
            if i < 63: qk2(S0, QX0)
            ex(S1, 8, 12)
            pv(O1, V0(i), P1, i == 0)
            ex(S1, 12, 16); cv(P1, S1, 1)
        p.e('s_nop 1')
        pv(O1, V1, P1+4)
        p.e(f"""
s_mul_i32 s42, s{sT}, {36*1024}
s_lshl_b32 s43, s{sH}, 10
s_add_u32 s43, s43, s42
s_add_u32 s43, s43, {WS_OF}
s_lshr_b32 s44, s{sH}, 3
s_lshl_b32 s44, s44, 10
s_add_u32 s44, s44, s42
s_bfe_u32 s45, s{sH}, 0x10002
s_lshl_b32 s45, s45, 9
s_add_u32 s44, s44, s45
s_and_b32 s45, s{sH}, 3
s_lshl_b32 s45, s45, 2
s_add_u32 s44, s44, s45
s_add_u32 s44, s44, {WS_OF + 32*1024}
s_add_u32 s45, s43, {36*1024}
s_add_u32 s46, s44, {36*1024}
v_mov_b32 v1, {hex(f2u(2.0**-64))}
v_mov_b32 v2, {hex(f2u(2.0**64))}
v_cmp_nge_f32 vcc, v{O0+10}, v1
v_cmp_nle_f32 s[48:49], v{O0+10}, v2
s_or_b64 vcc, vcc, s[48:49]
v_cmp_nge_f32 s[48:49], v{O1+10}, v1
s_or_b64 vcc, vcc, s[48:49]
v_cmp_nle_f32 s[48:49], v{O1+10}, v2
s_or_b64 vcc, vcc, s[48:49]
""")
        if force_fallback: p.e('s_branch ATT_fallback')
        p.e('s_cbranch_vccnz ATT_fallback')
        p.label('ATT_finish')
        for nm in ('dpst', 'dpfl', 'gdone', 'ofl'): p.stamp(nm)
        p.e(f'v_rcp_f32 v1, v{O0+10}\nv_rcp_f32 v2, v{O1+10}\ns_nop 0')
        for O, P, r in ((O0, P0, 1), (O1, P1, 2)):
            for k in range(10): p.e(f'v_mul_f32 v{O+k}, v{O+k}, v{r}')
            for k in range(5): p.e(f'v_cvt_pk_bf16_f32 v{P+k}, v{O+2*k}, v{O+2*k+1}')
        p.e(f"""
buffer_store_dwordx4 v[{P0}:{P0+3}], v{vL16}, s[4:7], s43 offen{SF}
buffer_store_dwordx4 v[{P1}:{P1+3}], v{vL16}, s[4:7], s45 offen{SF}
s_mov_b64 exec, 0xffffffff
buffer_store_dword v{P0+4}, v{vL16}, s[4:7], s44 offen{SF}
buffer_store_dword v{P1+4}, v{vL16}, s[4:7], s46 offen{SF}
s_lshl_b32 s42, s2, 7
s_lshl_b32 s43, s{sW}, 2
s_add_u32 s42, s42, s43
s_add_u32 s42, s42, {WS_FL + 4}
v_mov_b32 v1, 1
s_mov_b64 exec, 1
s_waitcnt vmcnt(0)
buffer_store_dword v1, off, s[4:7], s42 sc1
s_mov_b64 exec, -1
s_branch PK_end
""")
        f = Prog()
        f.label('ATT_fallback')
        for t, (O, Q, QX) in enumerate(((O0, Q0, QX0), (O1, Q1, QX1))):
            f.e(f'v_mov_b32 v1, 0xff800000\ns_mov_b32 s38, s{sG}\ns_mov_b32 s39, 64')
            f.label(f'ATT_fb1_{t}')
            f.e(f"""
buffer_load_dwordx4 {vr(K_,4)}, v{vK}, s[4:7], s38 offen sc1
buffer_load_ushort v{KX}, v{vX}, s[4:7], s38 offen sc1
s_waitcnt vmcnt(0)
v_mfma_f32_32x32x16_bf16 {vr(S0,16)}, {vr(K_,4)}, {vr(Q,4)}, 0
v_mfma_f32_32x32x8bf16_1k {vr(S0,16)}, {vr(KX,2)}, {vr(QX,2)}, {vr(S0,16)}
s_nop 7
s_nop 7
""")
            for k in range(8): f.e(f'v_max3_f32 v1, v1, v{S0+2*k}, v{S0+2*k+1}')
            f.e(f"""
s_add_u32 s38, s38, 3072
s_sub_u32 s39, s39, 1
s_cmp_lg_u32 s39, 0
s_cbranch_scc1 ATT_fb1_{t}
v_mov_b32 v2, v1
s_nop 1
v_permlane32_swap_b32 v1, v2
s_nop 1
v_max_f32 v1, v1, v2
""")
            for k in range(16): f.e(f'v_sub_f32 v{C_+k}, 0, v1\nv_mov_b32 v{O+k}, 0')
            f.e(f's_mov_b32 s38, s{sG}\ns_mov_b32 s39, 64')
            f.label(f'ATT_fb2_{t}')
            f.e(f"""
buffer_load_dwordx4 {vr(K_,4)}, v{vK}, s[4:7], s38 offen sc1
buffer_load_ushort v{KX}, v{vX}, s[4:7], s38 offen sc1
buffer_load_dwordx4 {vr(V0a,4)}, v{vV}, s[4:7], s38 offen offset:1024 sc1
buffer_load_dwordx4 {vr(V1,4)}, v{vV}, s[4:7], s38 offen offset:2048 sc1
s_waitcnt vmcnt(0)
v_mfma_f32_32x32x16_bf16 {vr(S0,16)}, {vr(K_,4)}, {vr(Q,4)}, {vr(C_,16)}
v_mfma_f32_32x32x8bf16_1k {vr(S0,16)}, {vr(KX,2)}, {vr(QX,2)}, {vr(S0,16)}
s_nop 7
s_nop 7
""")
            for k in range(16): f.e(f'v_exp_f32 v{S0+k}, v{S0+k}')
            f.e('s_nop 0')
            for k in range(8): f.e(f'v_cvt_pk_bf16_f32 v{P0+k}, v{S0+2*k}, v{S0+2*k+1}')
            f.e(f"""
s_nop 1
v_mfma_f32_32x32x16_bf16 {vr(O,16)}, {vr(V0a,4)}, {vr(P0,4)}, {vr(O,16)}
v_mfma_f32_32x32x16_bf16 {vr(O,16)}, {vr(V1,4)}, {vr(P0+4,4)}, {vr(O,16)}
s_add_u32 s38, s38, 3072
s_sub_u32 s39, s39, 1
s_cmp_lg_u32 s39, 0
s_cbranch_scc1 ATT_fb2_{t}
s_nop 7
s_nop 7
""")
        f.e('s_branch ATT_finish')
        out.append(f)
    return pre, body

ORDER = [(0, l) for l in (0, 2, 4, 6, 8)] + [(1, l) for l in (0, 2, 4, 6, 8)] + [(0, l) for l in (1, 3, 5, 7)] + [(1, l) for l in (1, 3, 5, 7)]

def role_down(p, a, g0, SF):
    NP = len(a) - 1
    ACC = 8
    WF = 88
    HF = 108; NH = 16
    vP, vPd = 212, 213
    t0, t1, t2 = 210, 211, 209
    vT, vTS = 196, 204
    LF = '' if INV[0] else ' sc1'
    vD, vDS = 251, 255
    sW8, sC, sQ, sCB = 20, 21, 23, 24
    sW, sT, sKS = 36, 37, 38
    sWA, sWB, sHA, sHB, sSh, sW4, sW1, sSo, sKV, sW3, sHo = 39, 42, 43, 44, 45, 46, 47, 48, 49, 52, 53
    sR2 = 40
    sLN = 8
    LREG = {0: 8, 2: 9, 4: 10, 6: 11, 8: 12, 1: 13, 3: 14, 5: 15, 7: 25}
    LROT = {0: 4, 2: 6, 4: 8, 6: 0, 8: 2, 1: 5, 3: 7, 5: 1, 7: 3} if ROT[0] else {l: l for l in range(9)}
    dt = {}; ht = {}; kt = {}; pt = [0]
    def do(o):
        if o[0] in ('s', 'v'): p.e(o[1])
        elif o[0] == 'fn': o[1]()
        else: {'dma': dt, 'h': ht, 'kv': kt}[o[0]][o[1]] = p.vm(o[2])
    def kv_ops(j):
        ops = [('s', f's_add_u32 m0, s{sW3}, {L_KV + (4*j % KV_RING)*3072}\ns_add_u32 s{sSo}, s{sR2}, {j}\ns_and_b32 s{sSo}, s{sSo}, 15\n'
                     f's_mul_i32 s{sSo}, s{sSo}, 12288\ns_add_u32 s{sSo}, s{sSo}, s{sKV}')]
        return ops + [('kv', j, f'buffer_load_dwordx4 v{vL16}, s[4:7], s{sSo} offen offset:{1024*i}{LF} lds') for i in range(3)]
    def mem_ops(ci):
        sl = L_WD + (ci % NSLOT)*SLOT
        b, l = ORDER[ci]
        ops = [('s', f's_add_u32 m0, s{sW4}, {sl}\ns_mul_i32 s{sSo}, s{LREG[l]}, {64*1152}\ns_add_u32 s{sSo}, s{sSo}, s{sWB if b else sWA}')]
        for j in range(4):
            ops.append(('dma', ci, f'buffer_load_dwordx4 v{vD+j}, s[16:19], s{sSo} offen offset:{1024*j} lds'))
        if b == 0:
            ops.append(('s', f's_add_u32 m0, s{sW1}, {sl + 16384}\ns_mul_i32 s{sSo}, s{LREG[l]}, {64*1152}\ns_add_u32 s{sSo}, s{sSo}, s{sSh}'))
            ops.append(('dma', ci, f'buffer_load_dwordx4 v{vDS}, s[16:19], s{sSo} offen lds'))
        return ops
    def h_ops(ci):
        b, l = ORDER[ci]
        ops = []
        if ci == 10:
            ops += [('fn', lambda: pt.__setitem__(0, p.vm(f'buffer_load_dword v{vPd}, v{vP}, s[4:7], 0 offen sc1'))),
                    ('fn', lambda: None), ('fn', lambda: None), ('fn', lambda: None),
                    ('fn', lambda: poll(p, vP, vPd, 2, 'POLL2', pt[0]))]
        ops.append(('s', f's_lshl_b32 s{sHo}, s{LREG[l]}, 12\ns_add_u32 s{sHo}, s{sHo}, s{sHB if b else sHA}'))
        for j in range(4):
            s = 4*ci + j; d = HF + 4*(s % NH)
            ops.append(('h', s, f'buffer_load_dwordx4 v[{d}:{d+3}], v{vL16}, s[4:7], s{sHo} offen offset:{1024*j}{LF}'))
        return ops
    wrap = lambda ops: [o if o[0] in ('s', 'v', 'fn') else ('fn', (lambda o=o: do(o))) for o in ops]
    def common():
        ops = lines_ops(f"""
s_and_b32 s{sW}, s{sW8}, 3
s_lshr_b32 s{sKS}, s{sQ}, 1
s_and_b32 s55, s{sCB}, 1
s_lshl_b32 s56, s{sKS}, 1
s_add_u32 s57, s56, s55
s_xor_b32 s58, s57, 1
s_lshr_b32 s59, s{sCB}, 1
s_mul_i32 s59, s59, 576
s_mul_i32 s55, s55, 320
s_add_u32 s55, s55, s59
s_mul_i32 s{sWA}, s57, {576*1152}
s_add_u32 s{sSh}, s{sWA}, s59
s_add_u32 s{sSh}, s{sSh}, 256
s_add_u32 s{sWA}, s{sWA}, s55
s_mul_i32 s{sWB}, s58, {576*1152}
s_add_u32 s{sWB}, s{sWB}, s55
s_lshl_b32 s{sW4}, s{sW}, 12
s_lshl_b32 s{sW1}, s{sW}, 10
s_lshl_b32 s55, s{sW}, 4
s_lshl_b32 s{sR2}, s22, {1 if ROT[0] else 8}
""", 10) + [('v', f's_cmp_ge_u32 s{sCB}, 2\n' + '\n'.join(f's_cselect_b32 s{LREG[l]}, {LROT[l]}, {l}' for l in range(9)) +
                     f'\ns_cmp_ge_u32 s{sW8}, 4\ns_cselect_b32 s59, s{LREG[2]}, s{LREG[0]}\ns_cselect_b32 s56, {SLOT}, 0\ns_mul_i32 s59, s59, {64*1152}', 4)] + lines_ops(f"""
v_lshrrev_b32 v{t0}, 8, v{vL16}
v_bfe_u32 v{t1}, v{vL16}, 4, 4
v_lshlrev_b32 v{t2}, 2, v{t0}
v_xor_b32 v{t1}, v{t1}, v{t2}
v_add_u32 v{t0}, s55, v{t0}
v_mul_u32_u24 v{t0}, 1152, v{t0}
v_lshl_add_u32 v{vD}, v{t1}, 4, v{t0}
v_add_u32 v{vD+1}, {4*1152-1024}, v{vD}
v_add_u32 v{vD+2}, {2*(4*1152-1024)}, v{vD}
v_add_u32 v{vD+3}, {3*(4*1152-1024)}, v{vD}
v_lshrrev_b32 v{t0}, 6, v{vL16}
v_add_u32 v{t0}, s55, v{t0}
v_mul_u32_u24 v{t0}, 1152, v{t0}
v_and_b32 v{t1}, 0x30, v{vL16}
v_add_u32 v{vDS}, v{t1}, v{t0}
""", 10)
        assert ORDER[0] == (0, 0) and ORDER[1] == (0, 2) and L_WD == 0
        d = [('s', f's_add_u32 m0, s{sW4}, s56\ns_add_u32 s{sSo}, s{sWA}, s59')]
        d += [('dma', 1, f'buffer_load_dwordx4 v{vD+j}, s[16:19], s{sSo} offen offset:{1024*j} lds') for j in range(4)]
        d += [('s', f's_add_u32 s56, s56, 16384\ns_add_u32 m0, s{sW1}, s56\ns_add_u32 s{sSo}, s{sSh}, s59'),
              ('dma', 1, f'buffer_load_dwordx4 v{vDS}, s[16:19], s{sSo} offen lds')]
        dt[0] = 0
        return ops + wrap(d)
    def pre():
        ops = lines_ops(f"""
s_and_b32 s54, s{sQ}, 1
s_lshl_b32 s54, s54, 3
s_add_u32 s54, s54, s22
v_bfe_u32 v{t0}, v{vL16}, 4, 3
v_lshlrev_b32 v{vP}, 5, v{t0}
s_lshl_b32 s55, s{sCB}, 3
s_add_u32 s55, s55, s{sQ}
v_add_u32 v{vP}, s55, v{vP}
v_and_b32 v{t1}, 3, v{t0}
v_lshrrev_b32 v{t0}, 2, v{t0}
v_lshl_add_u32 v{t0}, v{t1}, 3, v{t0}
s_lshr_b32 s55, s54, 1
s_lshl_b32 s55, s55, 5
s_lshl_b32 s56, s{sKS}, 1
s_add_u32 s55, s55, s56
v_add_u32 v{t0}, s55, v{t0}
v_and_b32 v{t1}, 0x80, v{vL16}
v_cmp_eq_u32 vcc, 0, v{t1}
s_mul_i32 s{sKV}, s{sC}, {64*3072}
s_mul_i32 s{sW3}, s{sW}, 3072
v_cndmask_b32 v{vP}, v{t0}, v{vP}, vcc
v_lshlrev_b32 v{vP}, 7, v{vP}
v_add_u32 v{vP}, {WS_FL}, v{vP}
""", 6)
        ops.append(('fn', lambda: pt.__setitem__(0, p.vm(f'buffer_load_dword v{vPd}, v{vP}, s[4:7], 0 offen sc1'))))
        ops += lines_ops(f"""
s_add_u32 s{sKV}, s{sKV}, s{sW3}
s_add_u32 s{sKV}, s{sKV}, {WS_KV}
s_lshl_b32 s{sT}, s54, 2
s_add_u32 s{sT}, s{sT}, s{sW}
s_mul_i32 s56, s{sT}, {288*1024}
s_add_u32 s56, s56, {WS_H}
s_mul_i32 s{sHA}, s57, {36*1024}
s_add_u32 s{sHA}, s{sHA}, s56
s_mul_i32 s{sHB}, s58, {36*1024}
s_add_u32 s{sHB}, s{sHB}, s56
""", 2)
        ops += [('fn', lambda: None)]*3
        ops.append(('fn', lambda: poll(p, vP, vPd, 1, 'POLL1', pt[0])))
        ops += wrap(kv_ops(0) + kv_ops(1))
        return ops
    def body(sts):
        stok = [0]
        mq = h_ops(0) + h_ops(1) + mem_ops(2) + h_ops(2)
        nkv = [2]; nwd = [3]
        def barrier(ph):
            jneed = (a[ph+1] - 1)//4
            ci = ph - g0
            need = lambda o: (o[0] == 'kv' and o[1] <= jneed) or (o[0] == 'dma' and o[1] <= ci)
            while any(need(o) for o in mq): do(mq.pop(0))
            tok = kt[jneed]
            if 0 <= ci < 18: tok = max(tok, dt[ci])
            if ph == PUB2:
                assert len(stok) == 5, stok
                tok = max(tok, stok[-1])
            p.wait(vm=tok); p.e('s_barrier')
            if ph in (0, 4, 12, 19, 20): p.stamp(f'g{ph}')
            if ph == PUB2: publish(p, 2, sW8, 4, t0, 'PH2_pub')
            if sts: mq.append(('fn', lambda t=sts.pop(0): stok.append(p.vm(t))))
            while nkv[0] < 16 and 4*nkv[0] + 3 - KV_RING <= a[ph] - 2 and (PACE[0] == 0 or 4*nkv[0] <= a[ph] + 9):
                mq.extend(kv_ops(nkv[0])); nkv[0] += 1
            while nwd[0] < 18 and nwd[0] - NSLOT <= (max(ci - 2, -1) if PACE[0] == 0 else ci - 2):
                mq.extend(mem_ops(nwd[0])); nwd[0] += 1
        assert g0 == 1 and NP == 21
        p.e('s_load_dwordx2 s[28:29], s[0:1], 16\ns_load_dwordx2 s[32:33], s[0:1], 0\ns_load_dwordx2 s[56:57], s[0:1], 56')
        barrier(0)
        for _ in range(10): do(mq.pop(0))
        vXO, vW1, vWx1, vW2, vWx2 = 246, 247, 249, 250, 192
        sDP, sCo, sCs, sXO, sOF = 26, 27, 41, 50, 51
        L_WO1, L_WO2 = 3*SLOT, 0
        p.e(f"""
v_lshrrev_b32 v0, 4, v{vL16}
v_lshrrev_b32 v1, 5, v0
v_bfe_u32 v2, v0, 4, 1
v_bfe_u32 v3, v0, 2, 2
v_and_b32 v4, 1, v0
v_bfe_u32 v5, v0, 1, 1
v_lshlrev_b32 v4, 5, v4
v_lshl_add_u32 v4, v2, 4, v4
v_lshl_add_u32 v4, v5, 3, v4
v_lshl_add_u32 v6, v1, 3, v3
v_lshl_add_u32 v7, v6, 8, v4
v_xor_b32 v5, s{sKS}, v3
v_lshl_add_u32 v{vT}, v5, 6, v7
v_xor_b32 v{vT+1}, 64, v{vT}
v_xor_b32 v{vT+2}, 128, v{vT}
v_xor_b32 v{vT+3}, 192, v{vT}
v_lshl_add_u32 v{vTS}, v6, 6, v4
v_add_u32 v{vTS+1}, {3*SLOT}, v{vTS}
v_lshl_add_u32 v6, v1, 2, v3
v_lshl_add_u32 v{vW2}, v6, 6, v4
v_add_u32 v{vW1}, {L_WO1}, v{vW2}
v_mul_u32_u24 v6, 72, v1
v_lshrrev_b32 v5, 1, v3
v_mul_u32_u24 v5, 18, v5
v_and_b32 v7, 1, v3
v_add3_u32 v6, v6, v5, v7
v_add_u32 v6, 16, v6
v_lshl_add_u32 v{vWx2}, v6, 6, v4
v_add_u32 v{vWx1}, {L_WO1}, v{vWx2}
v_and_b32 v5, 31, v0
v_mul_u32_u24 v5, 1152, v5
v_lshl_add_u32 v{vXO}, v1, 5, v5
s_mul_i32 s{sDP}, s{sT}, 20
s_mul_i32 s54, s{sCB}, 5
s_add_u32 s{sDP}, s{sDP}, s54
s_lshl_b32 s{sDP}, s{sDP}, 13
s_add_u32 s{sDP}, s{sDP}, {WS_DP}
s_lshr_b32 s54, s{sCB}, 1
s_mul_i32 s54, s54, 576
s_add_u32 s{sCs}, s54, 256
s_and_b32 s55, s{sCB}, 1
s_mul_i32 s55, s55, 320
s_add_u32 s{sCo}, s54, s55
s_lshl_b32 s55, s{sKS}, 6
s_add_u32 s{sCo}, s{sCo}, s55
s_mul_i32 s{sXO}, s{sT}, {32*1152}
s_mul_i32 s{sOF}, s{sT}, {36*1024}
s_add_u32 s{sOF}, s{sOF}, {WS_OF}
s_waitcnt lgkmcnt(0)
s_mov_b32 s30, {576*576*2}
s_mov_b32 s31, 0x20000
s_mov_b32 s34, {2048*576*2}
s_mov_b32 s35, 0x20000
s_mov_b32 s58, {2048*576*2}
s_mov_b32 s59, 0x20000
""")
        assert L_WD == 0
        for t in range(4): p.e(f'v_add_u32 v{vT+4+t}, {3*SLOT}, v{vT+t}')
        rt = {}
        sh = lambda s: ORDER[s//4][0] == 0
        wo = [0]
        def wo_ops(base, scol):
            ops = []
            for i in range(9):
                ops.append(('s', f's_add_u32 m0, s{sW1}, {base + i*4096}\ns_add_u32 s{sSo}, s{scol}, {i*64*1152}'))
                ops.append(('fn', lambda: wo.__setitem__(0, p.vm(f'buffer_load_dwordx4 v{vDS}, s[28:31], s{sSo} offen lds'))))
            return ops
        def rd(s, t):
            if s > 71 or (t == 4 and not sh(s)): return
            ci = s // 4
            if t == 0 and s % 4 == 0:
                barrier(g0 + ci)
                if ci == 16: mq.extend(wo_ops(L_WO1, sCo))
            sl = ci % NSLOT
            reg, sl = (1, sl - 3) if sl >= 3 else (0, sl)
            for u in range(2):
                if t < 4: ad, off = vT + 4*reg + t, sl*SLOT + (s % 4)*4096 + u*1024
                else: ad, off = vTS + reg, sl*SLOT + 16384 + (s % 4)*1024 + u*256
                d = WF + 4*t + 2*u
                rt[(s, t)] = p.ds(f'ds_read_b64_tr_b16 v[{d}:{d+1}], v{ad} offset:{off}')
        def pack(t, q):
            for k in range(8): p.e(f'v_cvt_pk_bf16_f32 v{q+k}, v{ACC+16*t+2*k}, v{ACC+16*t+2*k+1}')
            if t < 4: pre = f's_xor_b32 s54, s{sKS}, {t}\ns_lshl_b32 s54, s54, 13\ns_add_u32 s54, s54, s{sDP}\ns_add_u32 s54, s54, {t*2048}'
            else: pre = f's_lshl_b32 s54, s{sKS}, 11\ns_add_u32 s54, s54, s{sDP}\ns_add_u32 s54, s54, {4*8192}'
            return [('s', pre)] + [('fn', (lambda hf=hf: p.vm(f'buffer_store_dwordx4 v[{q+4*hf}:{q+4*hf+3}], v{vL16}, s[4:7], s54 offen offset:{hf*1024} sc1'))) for hf in range(2)]
        for t in range(5): rd(0, t)
        for s in range(72):
            nt = 5 if sh(s) else 4
            if s % 4 == 0:
                hc = s//4 + NH//4 - 1
                if hc < 18: mq.extend(h_ops(hc))
            if s == 58: mq.extend(pack(4, 172))
            for t in range(nt):
                while s not in ht: do(mq.pop(0))
                p.wait(lgkm=rt[(s, t)], vm=ht[s])
                ac = ACC + 16*t
                p.e(f'v_mfma_f32_32x32x16_bf16 {vr(ac,16)}, {vr(WF+4*t,4)}, {vr(HF+4*(s % NH),4)}, {"0" if s == 0 else vr(ac,16)}')
                rd(s+1, t)
                if t == nt-1 and nt == 4: rd(s+1, 4)
                if mq:
                    if mq[0][0] == 's': do(mq.pop(0))
                    do(mq.pop(0))
        while mq: do(mq.pop(0))
        p.e('s_nop 7\ns_nop 3')
        sq = [pack(t, HF + 8*t) for t in range(1, 4)]
        for o in sq[0]: do(o)
        PACE[0] = 0
        barrier(19)
        assert nkv[0] == 16
        for o in mq + wo_ops(L_WO2, sCs) + sq[1] + sq[2]: do(o)
        del mq[:]
        kt[15] = max(kt[15], wo[0])
        p.e(f"""
v_bfe_u32 v{t0}, v{vL16}, 4, 2
v_bfe_u32 v{t1}, v{vL16}, 6, 1
v_xor_b32 v{t1}, s{sCB}, v{t1}
v_lshlrev_b32 v{t0}, 1, v{t0}
v_lshl_add_u32 v{t0}, v{t1}, 3, v{t0}
s_lshl_b32 s54, s22, 5
s_and_b32 s55, s{sQ}, 1
s_add_u32 s54, s54, s55
v_add_u32 v{t0}, s54, v{t0}
s_lshl_b32 s55, s{sW}, 2
s_add_u32 s55, s55, {WS_FL + 20}
v_lshlrev_b32 v{vP}, 7, v{t0}
v_add_u32 v{vP}, s55, v{vP}
s_lshl_b32 s54, s2, 7
s_add_u32 s55, s55, s54
v_mov_b32 v{t0}, 1
""")
        barrier(20)
        p.e(f's_waitcnt vmcnt(0)\ns_mov_b64 exec, 1\nbuffer_store_dword v{t0}, off, s[4:7], s55 sc1\ns_mov_b64 exec, -1')
        p.stamp('dpst')
        p.e(f's_and_b32 s54, s{sCB}, 1\ns_lshl_b32 s54, s54, 2\ns_add_u32 s54, s54, s{sKS}\ns_cmp_eq_u32 s54, s{sW}\ns_cbranch_scc1 FIN2')
        G1, G2, X1, X2, A1, A2, OFR = 8, 172, 188+8, 204-0, 214, 230, 24
        X1, X2 = 196, 0
        names = list(getattr(p, 'stamps', []))
        for two in (0, 1):
            if two:
                p.label('FIN2')
                if Prog.STAMPS: p.stamps = list(names)
            p.reset_counts()
            tiles = [(G1, 196, A1, vW1, vWx1, sCo, 168)] + ([(G2, 0, A2, vW2, vWx2, sCs, 204)] if two else [])
            FB2 = {168: (168, 188), 204: (204, 252)}
            for G, Xr, A, w, wx, sc, fb in tiles:
                p.e(f's_add_u32 s{sc}, s{sc}, s{sXO}')
                for hf in range(2): p.vm(f'buffer_load_dwordx4 {vr(Xr+4*hf,4)}, v{vXO}, s[32:35], s{sc} offen offset:{16*hf}')
            tk = p.vm(f'buffer_load_dword v{vPd}, v{vP}, s[4:7], 0 offen sc1')
            poll(p, vP, vPd, 1, f'POLL3_{two}', tk)
            p.stamp('dpfl')
            p.e(f's_lshl_b32 s54, s{sKS}, 13\ns_add_u32 s54, s54, s{sDP}\ns_add_u32 s55, s54, 4096')
            for i in range(1, 4):
                for hf in range(2):
                    l1 = p.vm(f'buffer_load_dwordx4 {vr(OFR+8*(i-1)+4*hf,4)}, v{vL16}, s[4:7], s{54 + i//2} offen offset:{(i&1)*2048 + hf*1024} sc1')
            if two:
                for e in range(8):
                    if e % 2 == 0: p.e(f's_add_u32 s54, s{sDP}, {(4 + 5*(e//4))*8192 + (e % 4)*2048}')
                    for hf in range(2):
                        l2 = p.vm(f'buffer_load_dwordx4 {vr(OFR+24+8*e+4*hf,4)}, v{vL16}, s[4:7], s54 offen offset:{(e&1)*2048 + hf*1024} sc1')
            p.e(f"""
s_lshr_b32 s54, s{sT}, 3
s_lshl_b32 s54, s54, 12
s_bfe_u32 s55, s{sT}, 0x20001
s_lshl_b32 s55, s55, 2
s_add_u32 s54, s54, s55
s_add_u32 s54, s54, {WS_FL + 4}
v_and_b32 v{vP}, 0x1f0, v{vL16}
v_lshlrev_b32 v{vP}, 3, v{vP}
v_add_u32 v{vP}, s54, v{vP}
s_mov_b32 s60, {hex(f2u(-LOG2E))}
""")
            def addp(G, src, first):
                for k in range(8):
                    if first: p.e(f'v_lshlrev_b32 v{G+2*k}, 16, v{src+k}\nv_and_b32 v{G+2*k+1}, 0xffff0000, v{src+k}')
                    else: p.e(f'v_lshlrev_b32 v{A1+2*k}, 16, v{src+k}\nv_and_b32 v{A1+2*k+1}, 0xffff0000, v{src+k}')
                if not first:
                    for k in range(16): p.e(f'v_add_f32 v{G+k}, v{G+k}, v{A1+k}')
            def silu(G):
                for k in range(16): p.e(f'v_mul_f32 v{A1+k}, s60, v{G+k}')
                for k in range(16): p.e(f'v_exp_f32 v{A1+k}, v{A1+k}')
                for k in range(16): p.e(f'v_add_f32 v{A1+k}, 1.0, v{A1+k}')
                for k in range(16): p.e(f'v_rcp_f32 v{A1+k}, v{A1+k}')
                for k in range(16): p.e(f'v_mul_f32 v{G+k}, v{G+k}, v{A1+k}')
            p.wait(vm=l1)
            for i in range(3): addp(G1, OFR + 8*i, False)
            silu(G1)
            if two:
                p.wait(vm=l2)
                for e in range(8): addp(G2, OFR + 24 + 8*e, e == 0)
                silu(G2)
            wt = {}
            def rdw(s):
                if s > 35: return
                for G, Xr, A, w, wx, sc, fb in tiles:
                    for u in range(2):
                        ad, off = (w, (18*s + 8*u)*64) if s < 32 else (wx, ((s-32)*144 + 36*u)*64)
                        d = FB2[fb][s & 1] + 2*u
                        wt[s] = p.ds(f'ds_read_b64_tr_b16 v[{d}:{d+1}], v{ad} offset:{off}')
            rdw(0); rdw(1)
            p.stamp('gdone')
            tk = p.vm(f'buffer_load_dword v{vPd}, v{vP}, s[4:7], 0 offen sc1')
            poll(p, vP, vPd, 1, f'POLL4_{two}', tk)
            p.stamp('ofl')
            ot = {}
            for s in range(36):
                if s % 4 == 0: p.e(f's_add_u32 s54, s{sOF}, {s*1024}')
                ot[s] = p.vm(f'buffer_load_dwordx4 {vr(OFR+4*s,4)}, v{vL16}, s[4:7], s54 offen offset:{(s%4)*1024} sc1')
            for s in range(36):
                p.wait(lgkm=wt[s], vm=ot[s])
                for G, Xr, A, w, wx, sc, fb in tiles:
                    p.e(f'v_mfma_f32_32x32x16_bf16 {vr(A,16)}, {vr(FB2[fb][s&1],4)}, {vr(OFR+4*s,4)}, {"0" if s == 0 else vr(A,16)}')
                rdw(s+2)
            for G, Xr, A, w, wx, sc, fb in tiles:
                Tv = OFR
                for k in range(8): p.e(f'v_lshlrev_b32 v{Tv+2*k}, 16, v{Xr+k}\nv_and_b32 v{Tv+2*k+1}, 0xffff0000, v{Xr+k}')
                for k in range(16): p.e(f'v_fma_f32 v{G+k}, v{G+k}, v{A+k}, v{Tv+k}')
                for k in range(8): p.e(f'v_cvt_pk_bf16_f32 v{Xr+k}, v{G+2*k}, v{G+2*k+1}')
                for hf in range(2): p.e(f'buffer_store_dwordx4 {vr(Xr+4*hf,4)}, v{vXO}, s[56:59], s{sc} offen offset:{16*hf}')
            if not two: p.e('s_branch PK_end')
    return pre, body, common

def gen_k12(at=[2] + [3]*5 + [2,3,2,3,2] + [3]*4 + [2,3,2,3] + [4,9], g0=1, force_fallback=False, SF=' sc1', k1={}, inv=False, rot=True, pace=1):
    INV[0] = inv; ROT[0] = rot; PACE[0] = pace
    a = plan(at, g0)
    p = Prog()
    p.e('s_cmp_ge_u32 s2, 256\ns_cbranch_scc1 PK_done')
    p.stamp('start'); p.stamp('rstart', True)
    out = []
    rd_ = role_down(p, a, g0, SF)
    gen_ph1(p, roles=[role_att(p, a, force_fallback, SF, out), rd_[:2]], common=rd_[2], **k1)
    p.label('PK_end')
    p.dump_stamps(1, 20, WS_ST)
    p.label('PK_done')
    p.e('s_endpgm')
    p.lines += out[0].lines
    return p

if __name__ == '__main__':
    p = gen_k12()
    pr = check_hazards(p.lines, 'k12')
    print(len(p.lines), 'lines;', len(pr), 'hazards', sum(1 for l in p.lines if l == 's_barrier'))
    for x in pr[:20]: print(x)
```

```python
import sys
from k23 import *
from pk import *
NAME = 'recurrent_scan__softmax_full_mha__glu_gated_glu__prompt'
def build(out, force_fallback=False, prefetch=True, codepf=True, sf='', k1={}, k2={}):
    ks = [
        ('k0_kernel', gen_k0n(prefetch), (256, 512, 0), 72, 72),
        ('k12_kernel', gen_k12(force_fallback=force_fallback, k1=k1, **k2), (256, 512, PK_LDS), 256, 256),
    ]
    ref = open('cdna_kernels/' + NAME + '.s.ref').read().split('\n')
    head = [l for l in ref[:11]]
    txt = '\n'.join(head) + '\n'
    for n, p, (g, b, lds), _, _ in ks:
        txt += f'; @launch kernel={n} grid=({g},1,1) block=({b},1,1) lds={lds}\n'
    txt += '.amdgcn_target "amdgcn-amd-amdhsa--gfx950"\n.text\n'
    for n, p, _, _, _ in ks:
        pr = check_hazards(p.lines, n)
        for x in pr: print('HAZARD', x)
        if n == 'k12_kernel': txt += 'CODE_BEGIN:\n'
        txt += f'.globl {n}\n.p2align 8\n.type {n},@function\n{n}:\n' + p.text()
    txt += 'CODE_END:\n'
    txt += '.section .rodata,"a"\n'
    for n, p, _, vg, ac in ks:
        txt += '.p2align 6\n' + kd(n, vg, ac)
    open(out, 'w').write(txt)
    return {n: getattr(p, 'stamps', []) for n, p, _, _, _ in ks}
VARS = [dict(k2=dict(rot=False)), dict(k2=dict(at=[2]+[3]*5+[2]*5+[3]*4+[2,3,2,3]+[4,11])), dict(k2=dict(at=[2]+[3]*18+[3,5]))]
if __name__ == '__main__':
    build('cdna_kernels/' + NAME + '.s')
    build('fb.s', force_fallback=True)
    Prog.STAMPS = True
    st = build('st.s', sf=' sc1')
    allst = {'st.s': st}
    for i, kw in enumerate(VARS): allst[f'st{i}.s'] = build(f'st{i}.s', **kw)
    import json; json.dump(allst, open('st.json', 'w'))
```

```python
from k01 import *

WS_WQ = WS_END
WS_WM = WS_WQ + 32*576*128
WS_FL = WS_WM + 32*288*128 + 4096
WS_END2 = WS_FL + 256*128
L_B0A, L_B0B, L_B1A, L_B1B = 0, 40960, 73728, 114688
PH1_LDS = 147456
SF = ' sc1'

def ln_body(p, sf=''):
    for i in range(8):
        p.e(f'v_lshlrev_b32 v{12+2*i}, 16, v{4+i}\nv_and_b32 v{13+2*i}, 0xffff0000, v{4+i}')
    def reduce(r):
        p.e(f"""
s_nop 1
v_add_f32_dpp v{r}, v{r}, v{r} quad_perm:[1,0,3,2] row_mask:0xf bank_mask:0xf
s_nop 1
v_add_f32_dpp v{r}, v{r}, v{r} quad_perm:[2,3,0,1] row_mask:0xf bank_mask:0xf
s_nop 1
v_add_f32_dpp v{r}, v{r}, v{r} row_half_mirror row_mask:0xf bank_mask:0xf
s_nop 1
v_add_f32_dpp v{r}, v{r}, v{r} row_mirror row_mask:0xf bank_mask:0xf
s_nop 1
v_readlane_b32 s60, v{r}, 0
v_readlane_b32 s61, v{r}, 16
v_readlane_b32 s62, v{r}, 32
s_nop 1
v_mov_b32 v{r}, s60
v_add_f32 v{r}, s61, v{r}
v_add_f32 v{r}, s62, v{r}
v_mul_f32 v{r}, {hex(f2u(1.0/576))}, v{r}
""")
    p.e('v_add_f32 v4, v12, v13\nv_add_f32 v5, v14, v15\nv_add_f32 v6, v16, v17\nv_add_f32 v7, v18, v19')
    p.e('v_add_f32 v8, v20, v21\nv_add_f32 v9, v22, v23\nv_add_f32 v10, v24, v25\nv_add_f32 v11, v26, v27')
    p.e('v_add_f32 v4, v4, v5\nv_add_f32 v6, v6, v7\nv_add_f32 v8, v8, v9\nv_add_f32 v10, v10, v11')
    p.e('v_add_f32 v4, v4, v6\nv_add_f32 v8, v8, v10\nv_add_f32 v4, v4, v8')
    reduce(4)
    p.e('v_mov_b32 v5, 0\nv_mov_b32 v6, 0')
    for i in range(16):
        t = 8 + (i & 3)
        p.e(f'v_sub_f32 v{t}, v{12+i}, v4\nv_fmac_f32 v{5 + (i & 1)}, v{t}, v{t}')
    p.e('v_add_f32 v5, v5, v6\nv_cndmask_b32 v5, 0, v5, vcc')
    reduce(5)
    p.e(f"""
v_cvt_pk_bf16_f32 v4, v4, v5
v_and_b32 v5, 0xffff0000, v4
v_lshlrev_b32 v4, 16, v4
v_add_f32 v5, {hex(f2u(1e-5))}, v5
v_cvt_pk_bf16_f32 v5, v5, v5
v_lshlrev_b32 v5, 16, v5
v_sqrt_f32 v5, v5
s_nop 0
v_cvt_pk_bf16_f32 v5, v5, v5
v_lshlrev_b32 v5, 16, v5
v_rcp_f32 v5, v5
""")
    for i in range(16): p.e(f'v_sub_f32 v{12+i}, v{12+i}, v4')
    for i in range(8): p.e(f'v_cvt_pk_bf16_f32 v{44+i}, v{12+2*i}, v{13+2*i}')
    for i in range(8): p.e(f'v_lshlrev_b32 v{12+2*i}, 16, v{44+i}\nv_and_b32 v{13+2*i}, 0xffff0000, v{44+i}')
    for i in range(16): p.e(f'v_mul_f32 v{12+i}, v{12+i}, v5')
    for i in range(8): p.e(f'v_cvt_pk_bf16_f32 v{44+i}, v{12+2*i}, v{13+2*i}')

L_XS = 147456

def spin(p, vaddr, vdst, srd_, need, lab):
    p.e(f"""
v_cmp_gt_u32 vcc, {need}, v{vdst}
s_cbranch_vccz {lab}_ok
s_mov_b32 s63, {1 << 20}
""")
    p.label(f'{lab}_spin')
    p.e(f"""
buffer_load_dword v{vdst}, v{vaddr}, {srd_}, 0 offen sc1
s_waitcnt vmcnt(0)
v_cmp_gt_u32 vcc, {need}, v{vdst}
s_sub_u32 s63, s63, 1
s_cbranch_scc1 {lab}_ok
s_cbranch_vccnz {lab}_spin
""")
    p.label(f'{lab}_ok')

def gen_ph0(p, setup0, setup, dma):
    GA, GB, gA, gA2, gB, gB2, dA, dB, xA, xB = 176, 180, 184, 185, 186, 187, 188, 189, 190, 191
    p.e(f"""
s_load_dwordx4 s[52:55], s[0:1], 0
s_load_dwordx4 s[56:59], s[0:1], 32
s_load_dwordx2 s[16:17], s[0:1], 48
s_load_dwordx2 s[36:37], s[0:1], 64
s_load_dwordx2 s[4:5], s[0:1], 72
v_and_b32 v1, 63, v0
v_lshrrev_b32 v2, 6, v0
s_lshl_b32 s3, s2, 3
v_readfirstlane_b32 s20, v2
v_add_u32 v3, s3, v2
v_mul_u32_u24 v3, 1152, v3
v_lshl_add_u32 v3, v1, 5, v3
v_cmp_gt_u32 vcc, 36, v1
v_mov_b32 v30, 0x7ff00000
s_and_b32 s22, s20, 3
v_cndmask_b32 v3, v30, v3, vcc
s_mul_i32 s22, s22, 18
s_lshr_b32 s23, s2, 5
s_mul_i32 s23, s23, 72
s_add_u32 s22, s22, s23
v_add_u32 v28, s22, v1
v_mul_u32_u24 v28, 9216, v28
v_cmp_gt_u32 s[26:27], 18, v1
s_and_b32 s22, s2, 7
s_mul_i32 s22, s22, 1152
s_bfe_u32 s23, s2, 0x20003
s_lshl_b32 s23, s23, 8
s_add_u32 s22, s22, s23
v_add_u32 v28, s22, v28
v_cndmask_b32 v28, v30, v28, s[26:27]
s_mov_b32 s46, {2048*576*2}
s_mov_b32 s47, 0x20000
s_mov_b32 s42, {576*4608*2}
s_mov_b32 s43, 0x20000
s_cmp_lt_u32 s20, 4
s_waitcnt lgkmcnt(0)
s_mov_b32 s44, s52
s_mov_b32 s45, s53
buffer_load_dwordx4 v[4:7], v3, s[44:47], 0 offen
buffer_load_dwordx4 v[8:11], v3, s[44:47], 0 offen offset:16
s_cselect_b32 s40, s56, s58
s_cselect_b32 s41, s57, s59
s_mov_b32 s6, {WS_SIZE}
s_mov_b32 s7, 0x20000
s_mov_b32 s18, {4608*576*2}
s_mov_b32 s19, 0x20000
s_mov_b32 s38, 256
s_mov_b32 s39, 0x20000
buffer_load_dword v62, v28, s[40:43], 0 offen
""")
    srd(p, 8, 56, 576*4608*2)
    srd(p, 12, 58, 576*4608*2)
    srd(p, 44, 54, 576*1728*2)
    p.e(f"""
v_lshrrev_b32 v32, 3, v1
v_and_b32 v33, 7, v1
v_lshlrev_b32 v31, 8, v1
v_lshl_add_u32 v31, v2, 4, v31
v_add_u32 v31, {L_XS}, v31
v_lshlrev_b32 v39, 4, v0
v_add_u32 v39, {L_XS}, v39
v_lshrrev_b32 v40, 5, v0
v_lshlrev_b32 v40, 11, v40
v_bfe_u32 v41, v0, 3, 2
v_lshl_add_u32 v40, v41, 8, v40
v_lshl_add_u32 v40, v33, 4, v40
s_lshr_b32 s22, s2, 2
s_mul_i32 s62, s22, 36864
s_and_b32 s22, s2, 2
s_lshl_b32 s22, s22, 9
s_add_u32 s62, s62, s22
s_and_b32 s22, s2, 1
s_lshl_b32 s22, s22, 7
s_add_u32 s62, s62, s22
v_add_u32 v40, s62, v40
v_add_u32 v41, {16*2048}, v40
v_lshlrev_b32 v42, 2, v1
s_lshl_b32 s22, s2, 7
s_add_u32 s22, s22, {WS_FL}
v_add_u32 v42, s22, v42
v_mov_b32 v43, 0
""")
    assert WS_XN == 0
    setup0()
    p.e('s_waitcnt vmcnt(1)')
    p.stamp('xin')
    ln_body(p)
    p.e(f"""
s_mov_b64 exec, vcc
ds_write_b128 v31, v[44:47]
ds_write_b128 v31, v[48:51] offset:128
s_mov_b64 exec, -1
s_waitcnt lgkmcnt(0)
s_barrier
ds_read_b128 v[44:47], v39
s_cmp_lg_u32 s20, 0
s_cbranch_scc1 PH0_w
ds_read_b128 v[48:51], v39 offset:8192
s_mov_b64 exec, 0xffffffff
buffer_store_dword v43, v42, s[4:7], 0 offen sc1
s_mov_b64 exec, -1
s_waitcnt lgkmcnt(0)
buffer_store_dwordx4 v[48:51], v41, s[4:7], 0 offen sc1
""")
    p.label('PH0_w')
    p.e('s_waitcnt lgkmcnt(0)')
    p.reset_counts()
    xs = p.vm('buffer_store_dwordx4 v[44:47], v40, s[4:7], 0 offen sc1')
    dma(0)
    def wq_addr(task, dA, dB, dD):
        p.e(f"""
s_lshr_b32 s60, s{task}, 2
s_and_b32 s61, s{task}, 3
s_and_b32 s62, s60, 2
s_lshr_b32 s63, s60, 1
s_and_b32 s63, s63, 4
s_or_b32 s62, s62, s63
s_lshl_b32 s61, s61, 3
v_xor_b32 v34, s62, v33
v_add_u32 v35, s61, v32
s_mul_i32 s63, s60, 3456
v_mul_u32_u24 v{dB}, 36, v35
v_add_u32 v{dB}, s63, v{dB}
v_lshrrev_b32 v36, 1, v34
v_and_b32 v37, 1, v34
v_lshlrev_b32 v38, 4, v37
v_sub_u32 v37, 2, v37
v_cmp_eq_u32 vcc, 3, v36
v_cmp_eq_u32 s[56:57], 6, v34
s_lshl_b32 s63, s60, 7
v_cndmask_b32 v36, v36, v37, vcc
v_cndmask_b32 v38, v38, 32, vcc
v_mul_u32_u24 v36, 1152, v36
v_add3_u32 v{dA}, v{dB}, v36, v38
v_add_u32 v{dB}, 32, v{dB}
v_cndmask_b32 v{dB}, v30, v{dB}, s[56:57]
v_mul_u32_u24 v{dD}, {576*128}, v35
v_lshl_add_u32 v{dD}, v33, 4, v{dD}
v_add_u32 v{dD}, s63, v{dD}
v_add_u32 v{dD}, {WS_WQ}, v{dD}
""")
    p.e('s_lshl_b32 s48, s2, 3\ns_add_u32 s48, s48, s20')
    wq_addr(48, gA, gA2, dA)
    p.e(f"""
s_mov_b64 s[58:59], s[56:57]
s_lshr_b32 s62, s2, 5
s_lshl_b32 s62, s62, 5
v_mov_b32 v43, 1
v_mov_b32 v42, s62
""")
    p.wait(vm=xs)
    p.e("""
s_barrier
s_cmp_lg_u32 s20, 0
s_cbranch_scc1 PH0_a
s_mov_b64 exec, 1
buffer_atomic_add v43, off, s[36:39], s62 sc1
s_mov_b64 exec, -1
""")
    p.label('PH0_a')
    p.stamp('arr')
    dma(1)
    p.vm(f'buffer_load_dwordx4 {vr(GA,4)}, v{gA}, s[44:47], 0 offen')
    p.vm(f'buffer_load_dword v{xA}, v{gA2}, s[44:47], 0 offen')
    p.e('s_cmp_ge_u32 s2, 32\ns_cbranch_scc1 PH0_m\ns_add_u32 s48, s48, 2048')
    wq_addr(48, gB, gB2, dB)
    p.e(f'buffer_load_dwordx4 {vr(GB,4)}, v{gB}, s[44:47], 0 offen\nbuffer_load_dword v{xB}, v{gB2}, s[44:47], 0 offen\ns_branch PH0_j')
    p.label('PH0_m')
    p.e(f"""
s_mov_b64 s[56:57], 0
s_sub_u32 s48, s48, 256
s_lshr_b32 s60, s48, 2
s_and_b32 s61, s48, 3
s_and_b32 s62, s60, 2
s_lshr_b32 s63, s60, 1
s_and_b32 s63, s63, 4
s_or_b32 s62, s62, s63
s_lshl_b32 s61, s61, 3
v_xor_b32 v34, s62, v33
v_add_u32 v35, s61, v32
v_lshrrev_b32 v36, 2, v35
v_mul_u32_u24 v36, 1152, v36
v_and_b32 v37, 3, v35
v_lshl_add_u32 v36, v37, 5, v36
v_and_b32 v37, 1, v34
v_lshl_add_u32 v36, v37, 4, v36
v_lshrrev_b32 v37, 2, v34
v_mul_u32_u24 v37, {288*9216}, v37
s_mul_i32 s63, s60, 9216
s_add_u32 s63, s63, 1024
v_add3_u32 v{gB}, v36, v37, s63
v_and_b32 v37, 2, v34
v_cmp_eq_u32 vcc, 0, v37
v_mul_u32_u24 v{dB}, {288*128}, v35
v_lshl_add_u32 v{dB}, v33, 4, v{dB}
s_lshl_b32 s63, s60, 7
s_add_u32 s63, s63, {WS_WM}
v_add_u32 v{dB}, s63, v{dB}
s_cmp_lt_u32 s48, 1152
s_cselect_b32 s63, 0, 0x7ff00000
v_or_b32 v{dB}, s63, v{dB}
v_or_b32 v{gB}, s63, v{gB}
s_mov_b64 exec, vcc
""")
    p.vm(f'buffer_load_dwordx4 {vr(GB,4)}, v{gB}, s[8:11], 0 offen')
    p.e('s_not_b64 exec, exec')
    gt = p.vm(f'buffer_load_dwordx4 {vr(GB,4)}, v{gB}, s[12:15], 0 offen')
    p.e('s_mov_b64 exec, -1')
    p.label('PH0_j')
    dma(2)
    setup()
    def fin():
        p.wait(vm=gt)
        p.e(f'v_cndmask_b32 v{GA+2}, v{GA+2}, v{xA}, s[58:59]\nv_cndmask_b32 v{GB+2}, v{GB+2}, v{xB}, s[56:57]')
        p.vm(f'buffer_store_dwordx4 {vr(GA,4)}, v{dA}, s[4:7], 0 offen sc1')
        return p.vm(f'buffer_store_dwordx4 {vr(GB,4)}, v{dB}, s[4:7], 0 offen sc1')
    return fin

def gen_ph1(p, XD=4, cF=6, wait2=False, patC=True, SF=' sc1', roles=None, common=None, touch=True, PRE=[[], [0, 1], [2, 3]], PB=3, xf=' sc1'):
    X_ = 0
    P_, Q_, S_, F_ = 144, 176, 208, 224
    TB = 240
    T_ = 244
    vL16, vDF, vF = 248, 249, 250
    R_ = 251
    def X(tt, kp): return vr(X_ + 4*(2*kp + tt), 4)
    sW, sC, sR, sQ = 20, 21, 22, 23
    sCol, sColM, sW1, sSo = 25, 26, 27, 30
    sXN, sH0, sHM, sQF, sKV, sT = 31, 32, 33, 34, 35, 28
    sWQ, sWM = 40, 41
    sNL, sCQ = 50, 51
    L = T_+1
    units = [('G0', 0, 5), ('G0', 5, 9), ('U0', 0, 5), ('U0', 5, 9), ('QKV', 0, 5), ('QKV', 5, 9), ('M', 0, 5), ('G1', 0, 4), ('G1', 4, 9), ('U1', 0, 4), ('U1', 4, 9)]
    ubase = [L_B0A, L_B0B, L_B1A, L_B1B, L_B0A, L_B0B, L_B1A, L_B1B, L_B0A, L_B0B, L_B1A]
    xtok = {}; dtok = {}; stok = [0]
    def V(t, c=4): return ('v', t, c)
    def do_op(op):
        k = op[0]
        if k in ('s', 'v'): p.e(op[1])
        elif k == 'dma': dtok[op[1]] = p.vm(op[2])
        elif k == 'x': xtok[op[1]] = p.vm(op[2])
        elif k == 'st': stok[0] = p.vm(op[1])
        elif k == 'fn': op[1]()
    def dma_unit(n):
        g, i0, i1 = units[n]; base = ubase[n]
        ops = []
        for i in range(i0, i1):
            li = i - i0
            if g[0] in 'GU':
                sr = 8 if g[0] == 'G' else 12
                add = 128 if g[1] == '1' else 0
                ops.append(('s', f's_add_u32 m0, s{sW1}, {base + li*8192}\ns_add_u32 s{sSo}, s{sCol}, {add + i*64*9216}', 8))
                ops.append(('dma', n, f'buffer_load_dwordx4 v{vDF}, s[{sr}:{sr+3}], s{sSo} offen lds'))
            else:
                ops.append(('s', f's_add_u32 m0, s{sW1}, {base + li*8192}\ns_add_u32 s{sSo}, s{sWQ if g == "QKV" else sWM}, {i*8192}', 8))
                ops.append(('dma', n, f'buffer_load_dwordx4 v{vL16}, s[4:7], s{sSo} offen sc1 lds'))
        return ops
    def xops(kp0, kp1):
        ops = []
        for kp in range(kp0, kp1):
            if kp % 2 == 0: ops.append(('s', f's_add_u32 s60, s{sXN}, {WS_XN + kp*2048}', 4))
            for tt in range(2):
                ops.append(('x', (tt, kp), f'buffer_load_dwordx4 {X(tt,kp)}, v{vL16}, s[4:7], s60 offen offset:{(kp%2)*2048 + tt*1024}{xf}'))
        return ops
    def setup0():
        p.e(f"""
v_and_b32 v{L}, 63, v0
v_lshlrev_b32 v{vL16}, 4, v{L}
s_and_b32 s{sQ}, s2, 7
s_lshr_b32 s3, s2, 3
s_and_b32 s24, s3, 3
s_lshr_b32 s{sR}, s3, 2
s_lshl_b32 s{sC}, s{sQ}, 2
s_add_u32 s{sC}, s{sC}, s24
s_mul_i32 s{sCol}, s{sQ}, 1152
s_lshl_b32 s3, s24, 5
s_add_u32 s{sColM}, s{sCol}, s3
s_add_u32 s{sColM}, s{sColM}, 1024
s_lshl_b32 s3, s24, 8
s_add_u32 s{sCol}, s{sCol}, s3
s_lshl_b32 s{sW1}, s{sW}, 10
s_lshl_b32 s{sT}, s{sR}, 3
s_add_u32 s{sT}, s{sT}, s{sW}
s_mul_i32 s{sXN}, s{sT}, {36*1024}
v_lshrrev_b32 v{T_+2}, 3, v{L}
v_and_b32 v{T_+3}, 7, v{L}
v_and_b32 v{T_}, 2, v{T_+2}
v_xor_b32 v{T_+3}, v{T_+3}, v{T_}
s_and_b32 s3, s{sW}, 1
s_lshl_b32 s3, s3, 2
v_xor_b32 v{T_+3}, s3, v{T_+3}
s_lshl_b32 s3, s{sW}, 3
v_add_u32 v{T_+2}, s3, v{T_+2}
v_mul_u32_u24 v{T_+2}, 9216, v{T_+2}
v_lshl_add_u32 v{vDF}, v{T_+3}, 4, v{T_+2}
""")
    def setup():

        p.e(f"""
v_lshrrev_b32 v{T_}, 4, v{L}
v_bfe_u32 v{T_+2}, v{L}, 2, 2
v_lshl_add_u32 v{T_+3}, v{T_}, 3, v{T_+2}
v_lshlrev_b32 v{vF}, 7, v{T_+3}
v_lshrrev_b32 v{T_+2}, 1, v{T_+2}
v_lshl_add_u32 v{vF}, v{T_+2}, 5, v{vF}
v_and_b32 v{T_}, 1, v{T_}
v_lshl_add_u32 v{vF}, v{T_}, 6, v{vF}
v_and_b32 v{T_}, 3, v{L}
v_lshl_add_u32 v{vF}, v{T_}, 3, v{vF}
s_mul_i32 s{sWQ}, s{sC}, {576*128}
s_add_u32 s{sWQ}, s{sWQ}, s{sW1}
s_add_u32 s{sWQ}, s{sWQ}, {WS_WQ}
s_mul_i32 s{sWM}, s{sC}, {288*128}
s_add_u32 s{sWM}, s{sWM}, s{sW1}
s_add_u32 s{sWM}, s{sWM}, {WS_WM}
s_mul_i32 s{sH0}, s{sT}, {288*1024}
s_lshl_b32 s3, s{sColM}, 5
s_add_u32 s{sHM}, s{sH0}, s3
s_add_u32 s{sHM}, s{sHM}, {WS_H}
s_lshl_b32 s3, s{sCol}, 5
s_add_u32 s{sH0}, s{sH0}, s3
s_add_u32 s{sH0}, s{sH0}, {WS_H}
s_lshl_b32 s3, s{sC}, 6
s_add_u32 s3, s3, s{sT}
s_lshl_b32 s{sQF}, s3, 10
s_add_u32 s{sQF}, s{sQF}, {WS_QF}
s_mul_i32 s{sKV}, s3, 3072
s_add_u32 s{sKV}, s{sKV}, {WS_KV}
s_mov_b32 s{sNL}, {hex(f2u(-LOG2E))}
s_mov_b32 s{sCQ}, {hex(f2u(CQ))}
""")
        p.e(f"""
v_and_b32 v{R_+1}, {0x270}, v{vL16}
v_and_b32 v{T_}, 0x80, v{vL16}
v_lshl_add_u32 v{R_+1}, v{T_}, 1, v{R_+1}
v_and_b32 v{T_}, 0x100, v{vL16}
v_lshrrev_b32 v{T_}, 1, v{T_}
v_add_u32 v{R_+1}, v{R_+1}, v{T_}
v_and_b32 v{R_+2}, 0xf0, v{vL16}
v_and_b32 v{T_}, 0x300, v{vL16}
v_lshl_add_u32 v{R_+2}, v{T_}, 1, v{R_+2}
v_lshrrev_b32 v{T_}, 3, v{T_}
v_add_u32 v{T_}, v{T_}, v{vL16}
v_and_b32 v{T_}, 0x70, v{T_}
v_and_b32 v{T_+1}, 0xf8f, v{R_+2}
v_or_b32 v{T_+1}, v{T_+1}, v{T_}
v_and_b32 v{T_+2}, 0x80, v{vL16}
v_cmp_eq_u32 vcc, 0, v{T_+2}
v_and_b32 v{T_+2}, 0xf0, v{vL16}
v_mov_b32 v{R_+4}, 0
v_cndmask_b32 v{R_}, v{T_+1}, v{R_+2}, vcc
v_and_b32 v{T_+1}, 0xb0, v{T_+2}
v_cmp_eq_u32 vcc, 0x20, v{T_+1}
v_and_b32 v{T_+1}, 0x60, v{T_+2}
v_mov_b32 v{R_+3}, 0
v_cndmask_b32 v{R_+4}, v{R_+4}, 1.0, vcc
v_cmp_eq_u32 vcc, 0, v{T_+1}
v_and_b32 v{T_+1}, 0xe0, v{T_+2}
v_mov_b32 v{T_+3}, s{sCQ}
v_cndmask_b32 v{R_+3}, v{R_+3}, 1.0, vcc
v_cmp_eq_u32 vcc, 0x40, v{T_+1}
s_nop 1
v_cndmask_b32 v{R_+3}, v{R_+3}, v{T_+3}, vcc
""")
    def dma(k):
        for n in PRE[k]:
            for o in dma_unit(n): do_op(o)
    fin = gen_ph0(p, setup0, setup, dma)
    p.e(f's_add_u32 s61, s{sH0}, 4096')
    itok = [0]
    p.stamp('pre')
    p.e(f's_cmp_lg_u32 s{sW}, 0\ns_cbranch_scc1 POLLA_ok\nbuffer_load_dword v43, v42, s[36:39], 0 offen sc1\ns_waitcnt vmcnt(0)')
    spin(p, 42, 43, 's[36:39]', 32, 'POLLA')
    accs = {'G0': P_, 'U0': Q_, 'QKV': P_, 'M': Q_, 'G1': P_, 'U1': Q_}
    pairs = []
    for n, (g, i0, i1) in enumerate(units):
        acc = accs[g]
        kps = range(9) if g == 'M' else range(2*i0, 2*i1)
        for kp in kps:
            lk = kp - kps[0]
            for t in range(4):
                rd = [(TB + t, lk*4096 + u*512) for u in range(2)]
                if g == 'M': pairs.append(dict(n=n, g=g, kp=kp + 9*(t >> 1), acc=acc + 8*(t & 1), swap=False, rd=rd))
                else: pairs.append(dict(n=n, g=g, kp=kp, acc=acc + 8*t, swap=(g == 'QKV' and t >= 2), rd=rd))
    def base_ops(n):
        return f'v_add_u32 v{TB}, {ubase[n]}, v{vF}\nv_xor_b32 v{TB+1}, 32, v{TB}\nv_xor_b32 v{TB+2}, 64, v{TB}\nv_xor_b32 v{TB+3}, 96, v{TB}'
    def epi_G(acc):
        ops = []
        for b in range(8):
            r = acc + 4*b
            ops += [V(f'v_mul_f32 v{r+k}, s{sNL}, v{r+k}') for k in range(4)]
            ops += [V(f'v_exp_f32 v{r+k}, v{r+k}', 8) for k in range(4)]
            ops += [V(f'v_add_f32 v{r+k}, 1.0, v{r+k}') for k in range(4)]
            ops += [V(f'v_cvt_pk_bf16_f32 v{S_ + 2*b + k}, v{r+2*k}, v{r+2*k+1}') for k in range(2)]
        return ops
    def swapst(q, addr, so, off, nop=''):
        return [V(f'{nop}v_permlane16_swap_b32 v{q}, v{q+2}\nv_permlane16_swap_b32 v{q+1}, v{q+3}', 8),
                ('st', f'buffer_store_dwordx4 v[{q}:{q+3}], v{addr}, s[4:7], s{so} offen offset:{off}{SF}')]
    def epi_U(acc, so):
        ops = []; pend = []
        for b in range(8):
            r = acc + 4*b; sr = S_ + 2*b; t = T_
            ops += [V(f'v_lshlrev_b32 v{t}, 16, v{sr}'), V(f'v_and_b32 v{t+1}, 0xffff0000, v{sr}'),
                    V(f'v_lshlrev_b32 v{t+2}, 16, v{sr+1}'), V(f'v_and_b32 v{t+3}, 0xffff0000, v{sr+1}')]
            ops += pend; pend = []
            ops += [V(f'v_rcp_f32 v{t+k}, v{t+k}', 8) for k in range(4)]
            ops += [V(f'v_mul_f32 v{r+k}, v{r+k}, v{t+k}') for k in range(4)]
            ops += [V(f'v_cvt_pk_bf16_f32 v{sr+k}, v{r+2*k}, v{r+2*k+1}') for k in range(2)]
            if b & 1: pend = swapst(S_ + 4*(b >> 1), vL16, so, (b >> 1)*1024, 's_nop 1\n' if b == 7 else '')
        return ops + pend
    def epi_QKV(acc):
        cv = lambda a, b: [V(f'v_cvt_pk_bf16_f32 v{S_+k}, v{acc+2*k}, v{acc+2*k+1}') for k in range(a, b)]
        ops = cv(4, 12)
        ops.append(('st', f'buffer_store_dwordx4 v[{S_+8}:{S_+11}], v{R_+2}, s[4:7], s{sKV} offen offset:1024{SF}'))
        ops += [V(f'v_fma_f32 v{acc+24+k}, v{acc+24+k}, v{R_+3}, v{R_+4}') for k in range(8)]
        ops += cv(12, 16) + [V(f'v_mul_f32 v{acc+k}, s{sCQ}, v{acc+k}') for k in range(4)]
        ops += swapst(S_+4, R_+1, sKV, 0)
        ops += [V(f'v_mul_f32 v{acc+k}, s{sCQ}, v{acc+k}') for k in range(4, 8)] + cv(0, 4)
        late = [('st', f'buffer_store_dwordx4 v[{S_+12}:{S_+15}], v{R_}, s[4:7], s{sKV} offen offset:1280{SF}')], swapst(S_, vL16, sQF, 0)
        return ops, late
    def epi_G2(acc):
        ops = []
        for b in range(8):
            r = acc + 4*b
            ops += [V(f'v_mul_f32 v{r+k}, s{sNL}, v{r+k}') for k in range(4)]
            ops += [V(f'v_exp_f32 v{r+k}, v{r+k}', 8) for k in range(4)]
            ops += [V(f'v_add_f32 v{r+k}, 1.0, v{r+k}') for k in range(4)]
            ops += [V(f'v_rcp_f32 v{r+k}, v{r+k}', 8) for k in range(4)]
        return ops
    def epi_U2():
        ops = [V(f'v_mul_f32 v{Q_+k}, v{Q_+k}, v{P_+k}') for k in range(32)]
        ops += [V(f'v_cvt_pk_bf16_f32 v{Q_+k}, v{Q_+2*k}, v{Q_+2*k+1}') for k in range(16)]
        sts = []
        for t in range(4):
            a, b = swapst(Q_ + 4*t, vL16, 61, t*1024)
            ops.append(a); sts.append(b[1])
        return ops, sts
    def epi_M(acc):
        ops = [V(f'v_mul_f32 v{acc+k}, s{sNL}, v{acc+k}') for k in range(8)]
        ops += [V(f'v_exp_f32 v{acc+k}, v{acc+k}', 8) for k in range(8)]
        ops += [V(f'v_add_f32 v{acc+k}, 1.0, v{acc+k}') for k in range(8)]
        ops += [V(f'v_rcp_f32 v{acc+k}, v{acc+k}', 8) for k in range(8)]
        ops += [V(f'v_mul_f32 v{acc+k}, v{acc+k}, v{acc+8+k}') for k in range(8)]
        ops += [V(f'v_cvt_pk_bf16_f32 v{T_+k}, v{acc+2*k}, v{acc+2*k+1}') for k in range(4)]
        ops += swapst(T_, vL16, sHM, 0, 's_nop 1\n')
        return ops
    eqkv, late = epi_QKV(P_)
    em = epi_M(Q_)
    idle = [V('', 8)]*16
    epi_q = {'G0': [], 'U0': epi_G(P_), 'QKV': epi_U(Q_, sH0), 'M': eqkv, 'G1': em[:4] + late[0] + em[4:22] + late[1] + em[22:] + idle, 'U1': epi_G2(P_)}
    mem_after = {0: [('fn', lambda: itok.__setitem__(0, fin()))] + sum([dma_unit(n) for n in range(4) if n not in sum(PRE, [])], [])}
    for n in range(1, 8): mem_after[n] = dma_unit(n+3)
    mem_after[PB] = sum([mem_after.pop(n) for n in range(1, PB+1)], [])
    if roles: mem_after[9] = common()
    if roles and touch:
        pre = f'''s_lshr_b32 s62, s2, 3
s_lshl_b32 s62, s62, 3
s_add_u32 s62, s62, s{sW}
s_mul_i32 s62, s62, {41*128}
s_lshr_b32 s63, s{sQ}, 1
s_mul_i32 s63, s63, {1152*1152}
s_add_u32 s62, s62, s63
v_lshlrev_b32 v{T_}, 3, v{vL16}'''
        tl = lambda i: ('fn', lambda: (p.e(f's_mov_b64 exec, 0x3fff'), dtok.__setitem__('touch', p.vm(f'buffer_load_dword v{T_+1}, v{T_}, s[16:19], s62 offen offset:{i*14*128}')), p.e('s_mov_b64 exec, -1')))
        mem_after[2] = mem_after.get(2, []) + [('s', pre, 4), tl(0), tl(1), tl(2)]
    xq = xops(XD, 18)
    ta = [8]
    N = len(pairs)
    import copy
    st = dict(rtok={}, mq=[], cur=None, seen=set(), eq=[], rate=0, credit=0.0, gi=0, stok=0)
    def issue_read(P, u):
        if P >= N: return
        pr = pairs[P]; mq = st['mq']
        if u == 0 and (P == 0 or pairs[P-1]['n'] != pr['n']):
            n = pr['n']
            while n not in dtok or any(o[0] == 'dma' and o[1] == n for o in mq): do_op(mq.pop(0))
            p.e(base_ops(n))
            tok = dtok[n]
            if n == 4: tok = max(tok, dtok.get('touch', 0))
            if n == 1: tok = max(tok, itok[0])
            if roles and n == 9: tok = max(tok, stok[0])
            p.wait(vm=tok, lgkm=p.lgkm_issued)
            if n == PB:
                p.e(f's_cmp_lg_u32 s{sW}, 0\ns_cbranch_scc1 POLLB_ok\nv_and_b32 v{T_}, 0xf0, v{vL16}\nbuffer_load_dword v{T_+1}, v{T_}, s[36:39], 0 offen sc1\ns_waitcnt vmcnt(0)')
                spin(p, T_, T_+1, 's[36:39]', 32, 'POLLB')
            p.e('s_barrier')
            if n == 0:
                p.stamp('b0')
                for o in xops(0, XD): do_op(o)
            if n == 1:
                p.e(f's_cmp_lg_u32 s{sW}, 0\ns_cbranch_scc1 PH1_b\nv_mov_b32 v{T_}, 1\ns_lshl_b32 s62, s{sR}, 5\ns_mov_b64 exec, 1\n'
                    f'buffer_atomic_add v{T_}, off, s[36:39], s62 offset:16 sc1\ns_mov_b64 exec, -1')
                p.label('PH1_b')
            if n in (1, 2, 4): p.stamp(f'B{n}')
            if roles and n == 9: publish(p, 1, sW, 0, T_, 'PH1_pub')
            mq.extend(mem_after.get(n, []))
        a, off = pr['rd'][u]
        d = F_ + 4*(P % 4) + 2*u
        st['rtok'][P] = p.ds(f'ds_read_b64_tr_b16 v[{d}:{d+1}], v{a} offset:{off}')
    def run(P0, P1, xgap=None):
        rtok, mq, seen = st['rtok'], st['mq'], st['seen']
        for P in range(P0, P1):
            pr = pairs[P]
            if pr['g'] != st['cur']:
                st['cur'] = pr['g']
                ng = sum(1 for q in pairs if q['g'] == pr['g'])
                st['eq'] = list(epi_q[pr['g']])
                nb = sum(o[2] for o in st['eq'] if o[0] == 'v') / 8.0
                st['rate'] = nb / (ng - 2) * 1.01
                st['credit'] = 0.0; st['gi'] = 0
            eq = st['eq']
            for tt in range(2):
                xid = (tt, pr['kp'])
                if wait2: lg = rtok[min(P+1, N-1)] if (tt == 0 and P % 2 == 0) else None
                else: lg = rtok[P] if tt == 0 else None
                p.wait(lgkm=lg, vm=xtok[xid])
                fa = vr(F_ + 4*(P % 4), 4)
                a, b = (X(*xid), fa) if pr['swap'] else (fa, X(*xid))
                d = vr(pr['acc'] + 4*tt, 4)
                key = (pr['g'], d)
                p.e(f'v_mfma_f32_16x16x32_bf16 {d}, {a}, {b}, {d if key in seen else "0"}')
                seen.add(key)
                if patC and st['rate'] > 0.5:
                    if tt == 0: issue_read(P+3, 0); issue_read(P+3, 1)
                else: issue_read(P+3, tt)
                G = 2*P + tt
                if xq and G % 4 == 0:
                    while xq[0][0] == 's': do_op(xq.pop(0))
                    do_op(xq.pop(0))
                elif mq and G >= ta[0]:
                    while mq and mq[0][0] == 's': do_op(mq.pop(0))
                    if mq: do_op(mq.pop(0))
                    ta[0] = G + (xgap or (cF if not xq else 10))
                if st['gi'] >= 2 and tt == 1:
                    st['credit'] += st['rate']
                    while eq and eq[0][0] == 'st': do_op(eq.pop(0))
                    while eq and st['credit'] >= 0.999:
                        st['credit'] -= 1.0; c = 0
                        while eq and eq[0][0] == 'v' and c < 8:
                            o = eq.pop(0); do_op(o); c += o[2]
            st['gi'] += 1
            if P + 1 == N or pairs[P+1]['g'] != st['cur']:
                for o in eq: do_op(o)
                del eq[:]
    def tail():
        while st['mq']: do_op(st['mq'].pop(0))
        p.e('s_nop 7')
        ops, sts = epi_U2()
        for o in ops: do_op(o)
        return sts
    if not roles: p.stamp('setup')
    for P in range(3):
        issue_read(P, 0); issue_read(P, 1)
    if not roles:
        run(0, N)
        for t in tail(): p.vm(t)
        return sW
    PM = min(i for i, q in enumerate(pairs) if q['n'] == 10)
    run(0, PM)
    assert not st['mq']
    p.e(f's_cmp_ge_u32 s{sW}, 4\ns_cbranch_scc1 PH_role1')
    save = (copy.deepcopy(st), p.lgkm_issued, p.lgkm_done, p.vm_issued, p.vm_done, ta[0], list(getattr(p, 'stamps', [])))
    for ri, (pre, body) in enumerate(roles):
        if ri == 1:
            p.label('PH_role1')
            st.clear(); st.update(save[0])
            p.lgkm_issued, p.lgkm_done, p.vm_issued, p.vm_done, ta[0] = save[1:6]
            if Prog.STAMPS: p.stamps = save[6]
        st['mq'].extend(pre())
        run(PM, N, xgap=3)
        body(tail())
    return sW

def publish(p, val, sW, wave, vt, lab):
    p.e(f"""
s_cmp_lg_u32 s{sW}, {wave}
s_cbranch_scc1 {lab}
s_lshl_b32 s62, s2, 7
s_add_u32 s62, s62, {WS_FL}
v_mov_b32 v{vt}, {val}
s_mov_b64 exec, 1
buffer_store_dword v{vt}, off, s[4:7], s62 sc1
s_mov_b64 exec, -1
""")
    p.label(lab)
```

```python
from ph1 import *

KV_RING = 16
L_KV = 114688
NSLOT = 5
SLOT = 20480
L_WD = 0
PK_LDS = 163840
vL16 = 248
SPIN_MAX = 1 << 20
PUB2 = 5
INV = [True]
ROT = [True]
PACE = [1]

def plan(at, g0):
    a = [0]
    for n in at: a.append(a[-1] + n)
    assert a[-1] == 64 and g0 + 18 <= len(at), a
    return a

def lines_ops(txt, per=2):
    ls = [l for l in txt.strip().split('\n') if l.strip()]
    return [('v', '\n'.join(ls[i:i+per]), 4) for i in range(0, len(ls), per)]

def poll(p, vaddr, vdst, stage, lab, tok):
    p.wait(vm=tok)
    p.e(f"""
v_cmp_gt_u32 vcc, {stage}, v{vdst}
s_cbranch_vccz {lab}_ok
s_mov_b32 s63, {SPIN_MAX}
""")
    p.label(f'{lab}_spin')
    p.e(f"""
s_sleep 2
buffer_load_dword v{vdst}, v{vaddr}, s[4:7], 0 offen sc1
s_waitcnt vmcnt(0)
v_cmp_gt_u32 vcc, {stage}, v{vdst}
s_sub_u32 s63, s63, 1
s_cbranch_scc1 {lab}_ok
s_cbranch_vccnz {lab}_spin
""")
    p.label(f'{lab}_ok')
    if INV[0]: p.e('buffer_inv sc1')

def role_att(p, a, force_fallback, SF, out):
    S0, S1, O0, O1, P0, P1 = 8, 24, 40, 56, 72, 80
    K_, V1, V0a, V0b = 88, 92, 96, 100
    KX = 104
    C_ = 108
    Q0, Q1, QX0, QX1 = 208, 212, 216, 218
    vK, vV, vX = 220, 221, 222
    t0, t1, t2, t3, t4, t5 = 223, 251, 252, 253, 254, 255
    sW, sH, sR = 20, 21, 22
    sT, sG = 36, 37
    qt = [0]
    def pre():
        ops = lines_ops(f"""
s_lshl_b32 s{sT}, s{sR}, 3
s_lshl_b32 s38, s{sW}, 1
s_add_u32 s{sT}, s{sT}, s38
s_mul_i32 s{sG}, s{sH}, {64*3072}
s_add_u32 s{sG}, s{sG}, {WS_KV - L_KV}
s_lshl_b32 s38, s{sH}, 6
s_add_u32 s38, s38, s{sT}
s_lshl_b32 s39, s38, 10
s_add_u32 s39, s39, {WS_QF}
s_mul_i32 s38, s38, 3072
s_add_u32 s38, s38, {WS_KV}
v_bfe_u32 v{t1}, v{vL16}, 9, 1
v_bfe_u32 v{t2}, v{vL16}, 8, 1
v_bfe_u32 v{t3}, v{vL16}, 6, 1
v_bfe_u32 v{t4}, v{vL16}, 7, 1
v_bfe_u32 v{t5}, v{vL16}, 4, 2
v_lshlrev_b32 v{t5}, 1, v{t5}
v_lshl_add_u32 v{t5}, v{t3}, 9, v{t5}
v_lshl_add_u32 v{t5}, v{t1}, 4, v{t5}
v_lshl_add_u32 v{t0}, v{t2}, 3, v{t5}
v_lshl_add_u32 v{t0}, v{t4}, 10, v{t0}
v_add_u32 v{t0}, {1024 + 20*16}, v{t0}
""", 3)
        def q():
            p.vm(f'buffer_load_dwordx4 v[{Q0}:{Q0+3}], v{vL16}, s[4:7], s39 offen sc1')
            p.vm(f'buffer_load_ushort v{QX0}, v{t0}, s[4:7], s38 offen sc1')
            p.vm(f'buffer_load_dwordx4 v[{Q1}:{Q1+3}], v{vL16}, s[4:7], s39 offen offset:1024 sc1')
            qt[0] = p.vm(f'buffer_load_ushort v{QX1}, v{t0}, s[4:7], s38 offen offset:3072 sc1')
        ops.append(('fn', q))
        ops += lines_ops(f"""
v_lshl_add_u32 v{vX}, v{t4}, 3, v{t5}
v_lshl_add_u32 v{vX}, v{t2}, 10, v{vX}
v_lshl_add_u32 v{vX}, v{t3}, 5, v{vX}
v_lshl_add_u32 v{vX}, v{t2}, 6, v{vX}
v_add_u32 v{vX}, {L_KV + 1024 + 24*16}, v{vX}
v_bfe_u32 v{t2}, v{vL16}, 4, 5
v_cmp_eq_u32 vcc, 22, v{t2}
v_min_u32 v{t3}, 19, v{t2}
v_add_u32 v{vK}, {L_KV}, v{vL16}
v_cndmask_b32 v{t2}, v{t3}, v{t2}, vcc
v_lshlrev_b32 v{t2}, 4, v{t2}
v_lshl_add_u32 v{vV}, v{t1}, 9, v{t2}
v_add_u32 v{vV}, {L_KV}, v{vV}
v_mov_b32 v{QX0+1}, 0
v_mov_b32 v{QX1+1}, 0
""", 2)
        return ops
    def body(sts):
        stok = [0]
        p.e(f'v_mov_b32 v{KX+1}, 0')
        V0 = lambda i: V0a if i % 2 == 0 else V0b
        def rd(i, part):
            if i > 63: return
            if part == 'k' and i in a:
                ph = a.index(i)
                if ph == 0: p.wait(vm=qt[0])
                if ph == PUB2: p.wait(vm=stok[0])
                p.e('s_barrier')
                if sts: stok[0] = p.vm(sts.pop(0))
                if ph in (0, 4, 19): p.stamp(f'a{i}')
            off = (i % KV_RING)*3072
            if part == 'x': p.ds(f'ds_read_u16 v{KX}, v{vX} offset:{off}')
            elif part == 'k': p.ds(f'ds_read_b128 {vr(K_,4)}, v{vK} offset:{off}')
            elif part == 'v0': p.ds(f'ds_read_b128 {vr(V0(i),4)}, v{vV} offset:{off+1024}')
            else: p.ds(f'ds_read_b128 {vr(V1,4)}, v{vV} offset:{off+2048}')
        def qk1(S, Q): p.e(f'v_mfma_f32_32x32x16_bf16 {vr(S,16)}, {vr(K_,4)}, {vr(Q,4)}, 0')
        def qk2(S, QX): p.e(f'v_mfma_f32_32x32x8bf16_1k {vr(S,16)}, {vr(KX,2)}, {vr(QX,2)}, {vr(S,16)}')
        def pv(O, Vr, P, first=False): p.e(f'v_mfma_f32_32x32x16_bf16 {vr(O,16)}, {vr(Vr,4)}, {vr(P,4)}, {"0" if first else vr(O,16)}')
        def ex(S, x, y):
            for k in range(x, y): p.e(f'v_exp_f32 v{S+k}, v{S+k}')
        def cv(P, S, u):
            for k in range(4*u, 4*u+4): p.e(f'v_cvt_pk_bf16_f32 v{P+k}, v{S+2*k}, v{S+2*k+1}')
        rd(0, 'k'); rd(0, 'x'); rd(0, 'v0')
        p.wait(vm=qt[0], lgkm=p.lgkm_issued)
        qk1(S0, Q0); qk2(S0, QX0)
        p.e('s_nop 7\ns_nop 1')
        for i in range(64):
            qk1(S1, Q1); rd(i+1, 'k'); rd(i+1, 'v0')
            ex(S0, 0, 4)
            if i > 0: pv(O1, V1, P1+4)
            rd(i, 'v1')
            ex(S0, 4, 8); cv(P0, S0, 0)
            qk2(S1, QX1); rd(i+1, 'x')
            ex(S0, 8, 12)
            pv(O0, V0(i), P0, i == 0)
            ex(S0, 12, 16); cv(P0, S0, 1)
            p.wait(lgkm=p.lgkm_issued)
            if i < 63: qk1(S0, Q0)
            ex(S1, 0, 4)
            pv(O0, V1, P0+4)
            ex(S1, 4, 8); cv(P1, S1, 0)
            if i < 63: qk2(S0, QX0)
            ex(S1, 8, 12)
            pv(O1, V0(i), P1, i == 0)
            ex(S1, 12, 16); cv(P1, S1, 1)
        p.e('s_nop 1')
        pv(O1, V1, P1+4)
        p.e(f"""
s_mul_i32 s42, s{sT}, {36*1024}
s_lshl_b32 s43, s{sH}, 10
s_add_u32 s43, s43, s42
s_add_u32 s43, s43, {WS_OF}
s_lshr_b32 s44, s{sH}, 3
s_lshl_b32 s44, s44, 10
s_add_u32 s44, s44, s42
s_bfe_u32 s45, s{sH}, 0x10002
s_lshl_b32 s45, s45, 9
s_add_u32 s44, s44, s45
s_and_b32 s45, s{sH}, 3
s_lshl_b32 s45, s45, 2
s_add_u32 s44, s44, s45
s_add_u32 s44, s44, {WS_OF + 32*1024}
s_add_u32 s45, s43, {36*1024}
s_add_u32 s46, s44, {36*1024}
v_mov_b32 v1, {hex(f2u(2.0**-64))}
v_mov_b32 v2, {hex(f2u(2.0**64))}
v_cmp_nge_f32 vcc, v{O0+10}, v1
v_cmp_nle_f32 s[48:49], v{O0+10}, v2
s_or_b64 vcc, vcc, s[48:49]
v_cmp_nge_f32 s[48:49], v{O1+10}, v1
s_or_b64 vcc, vcc, s[48:49]
v_cmp_nle_f32 s[48:49], v{O1+10}, v2
s_or_b64 vcc, vcc, s[48:49]
""")
        if force_fallback: p.e('s_branch ATT_fallback')
        p.e('s_cbranch_vccnz ATT_fallback')
        p.label('ATT_finish')
        for nm in ('dpfl', 'gdone', 'ofl'): p.stamp(nm)
        p.e(f'v_rcp_f32 v1, v{O0+10}\nv_rcp_f32 v2, v{O1+10}\ns_nop 0')
        for O, P, r in ((O0, P0, 1), (O1, P1, 2)):
            for k in range(10): p.e(f'v_mul_f32 v{O+k}, v{O+k}, v{r}')
            for k in range(5): p.e(f'v_cvt_pk_bf16_f32 v{P+k}, v{O+2*k}, v{O+2*k+1}')
        p.e(f"""
buffer_store_dwordx4 v[{P0}:{P0+3}], v{vL16}, s[4:7], s43 offen{SF}
buffer_store_dwordx4 v[{P1}:{P1+3}], v{vL16}, s[4:7], s45 offen{SF}
s_mov_b64 exec, 0xffffffff
buffer_store_dword v{P0+4}, v{vL16}, s[4:7], s44 offen{SF}
buffer_store_dword v{P1+4}, v{vL16}, s[4:7], s46 offen{SF}
s_lshl_b32 s42, s2, 7
s_lshl_b32 s43, s{sW}, 2
s_add_u32 s42, s42, s43
s_add_u32 s42, s42, {WS_FL + 4}
v_mov_b32 v1, 1
s_mov_b64 exec, 1
s_waitcnt vmcnt(0)
buffer_store_dword v1, off, s[4:7], s42 sc1
s_mov_b64 exec, -1
s_branch PK_end
""")
        f = Prog()
        f.label('ATT_fallback')
        for t, (O, Q, QX) in enumerate(((O0, Q0, QX0), (O1, Q1, QX1))):
            f.e(f'v_mov_b32 v1, 0xff800000\ns_mov_b32 s38, s{sG}\ns_mov_b32 s39, 64')
            f.label(f'ATT_fb1_{t}')
            f.e(f"""
buffer_load_dwordx4 {vr(K_,4)}, v{vK}, s[4:7], s38 offen sc1
buffer_load_ushort v{KX}, v{vX}, s[4:7], s38 offen sc1
s_waitcnt vmcnt(0)
v_mfma_f32_32x32x16_bf16 {vr(S0,16)}, {vr(K_,4)}, {vr(Q,4)}, 0
v_mfma_f32_32x32x8bf16_1k {vr(S0,16)}, {vr(KX,2)}, {vr(QX,2)}, {vr(S0,16)}
s_nop 7
s_nop 7
""")
            for k in range(8): f.e(f'v_max3_f32 v1, v1, v{S0+2*k}, v{S0+2*k+1}')
            f.e(f"""
s_add_u32 s38, s38, 3072
s_sub_u32 s39, s39, 1
s_cmp_lg_u32 s39, 0
s_cbranch_scc1 ATT_fb1_{t}
v_mov_b32 v2, v1
s_nop 1
v_permlane32_swap_b32 v1, v2
s_nop 1
v_max_f32 v1, v1, v2
""")
            for k in range(16): f.e(f'v_sub_f32 v{C_+k}, 0, v1\nv_mov_b32 v{O+k}, 0')
            f.e(f's_mov_b32 s38, s{sG}\ns_mov_b32 s39, 64')
            f.label(f'ATT_fb2_{t}')
            f.e(f"""
buffer_load_dwordx4 {vr(K_,4)}, v{vK}, s[4:7], s38 offen sc1
buffer_load_ushort v{KX}, v{vX}, s[4:7], s38 offen sc1
buffer_load_dwordx4 {vr(V0a,4)}, v{vV}, s[4:7], s38 offen offset:1024 sc1
buffer_load_dwordx4 {vr(V1,4)}, v{vV}, s[4:7], s38 offen offset:2048 sc1
s_waitcnt vmcnt(0)
v_mfma_f32_32x32x16_bf16 {vr(S0,16)}, {vr(K_,4)}, {vr(Q,4)}, {vr(C_,16)}
v_mfma_f32_32x32x8bf16_1k {vr(S0,16)}, {vr(KX,2)}, {vr(QX,2)}, {vr(S0,16)}
s_nop 7
s_nop 7
""")
            for k in range(16): f.e(f'v_exp_f32 v{S0+k}, v{S0+k}')
            f.e('s_nop 0')
            for k in range(8): f.e(f'v_cvt_pk_bf16_f32 v{P0+k}, v{S0+2*k}, v{S0+2*k+1}')
            f.e(f"""
s_nop 1
v_mfma_f32_32x32x16_bf16 {vr(O,16)}, {vr(V0a,4)}, {vr(P0,4)}, {vr(O,16)}
v_mfma_f32_32x32x16_bf16 {vr(O,16)}, {vr(V1,4)}, {vr(P0+4,4)}, {vr(O,16)}
s_add_u32 s38, s38, 3072
s_sub_u32 s39, s39, 1
s_cmp_lg_u32 s39, 0
s_cbranch_scc1 ATT_fb2_{t}
s_nop 7
s_nop 7
""")
        f.e('s_branch ATT_finish')
        out.append(f)
    return pre, body

ORDER = [(0, l) for l in (0, 2, 4, 6, 8)] + [(1, l) for l in (0, 2, 4, 6, 8)] + [(0, l) for l in (1, 3, 5, 7)] + [(1, l) for l in (1, 3, 5, 7)]

def role_down(p, a, g0, SF):
    NP = len(a) - 1
    ACC = 8
    WF = 88
    HF = 108; NH = 16
    vP, vPd = 212, 213
    t0, t1, t2 = 210, 211, 209
    vT, vTS = 196, 204
    LF = '' if INV[0] else ' sc1'
    vD, vDS = 251, 255
    sW8, sC, sQ, sCB = 20, 21, 23, 24
    sW, sT, sKS = 36, 37, 38
    sWA, sWB, sHA, sHB, sSh, sW4, sW1, sSo, sKV, sW3, sHo = 39, 42, 43, 44, 45, 46, 47, 48, 49, 52, 53
    sR2 = 40
    sLN = 8
    LREG = {0: 8, 2: 9, 4: 10, 6: 11, 8: 12, 1: 13, 3: 14, 5: 15, 7: 25}
    LROT = {0: 4, 2: 6, 4: 8, 6: 0, 8: 2, 1: 5, 3: 7, 5: 1, 7: 3} if ROT[0] else {l: l for l in range(9)}
    dt = {}; ht = {}; kt = {}; pt = [0]
    def do(o):
        if o[0] in ('s', 'v'): p.e(o[1])
        elif o[0] == 'fn': o[1]()
        else: {'dma': dt, 'h': ht, 'kv': kt}[o[0]][o[1]] = p.vm(o[2])
    def kv_ops(j):
        ops = [('s', f's_add_u32 m0, s{sW3}, {L_KV + (4*j % KV_RING)*3072}\ns_add_u32 s{sSo}, s{sR2}, {j}\ns_and_b32 s{sSo}, s{sSo}, 15\n'
                     f's_mul_i32 s{sSo}, s{sSo}, 12288\ns_add_u32 s{sSo}, s{sSo}, s{sKV}')]
        return ops + [('kv', j, f'buffer_load_dwordx4 v{vL16}, s[4:7], s{sSo} offen offset:{1024*i}{LF} lds') for i in range(3)]
    def mem_ops(ci):
        sl = L_WD + (ci % NSLOT)*SLOT
        b, l = ORDER[ci]
        ops = [('s', f's_add_u32 m0, s{sW4}, {sl}\ns_mul_i32 s{sSo}, s{LREG[l]}, {64*1152}\ns_add_u32 s{sSo}, s{sSo}, s{sWB if b else sWA}')]
        for j in range(4):
            ops.append(('dma', ci, f'buffer_load_dwordx4 v{vD+j}, s[16:19], s{sSo} offen offset:{1024*j} lds'))
        if b == 0:
            ops.append(('s', f's_add_u32 m0, s{sW1}, {sl + 16384}\ns_mul_i32 s{sSo}, s{LREG[l]}, {64*1152}\ns_add_u32 s{sSo}, s{sSo}, s{sSh}'))
            ops.append(('dma', ci, f'buffer_load_dwordx4 v{vDS}, s[16:19], s{sSo} offen lds'))
        return ops
    def h_ops(ci):
        b, l = ORDER[ci]
        ops = []
        if ci == 10:
            ops += [('fn', lambda: pt.__setitem__(0, p.vm(f'buffer_load_dword v{vPd}, v{vP}, s[4:7], 0 offen sc1'))),
                    ('fn', lambda: None), ('fn', lambda: None), ('fn', lambda: None),
                    ('fn', lambda: poll(p, vP, vPd, 2, 'POLL2', pt[0]))]
        ops.append(('s', f's_lshl_b32 s{sHo}, s{LREG[l]}, 12\ns_add_u32 s{sHo}, s{sHo}, s{sHB if b else sHA}'))
        for j in range(4):
            s = 4*ci + j; d = HF + 4*(s % NH)
            ops.append(('h', s, f'buffer_load_dwordx4 v[{d}:{d+3}], v{vL16}, s[4:7], s{sHo} offen offset:{1024*j}{LF}'))
        return ops
    wrap = lambda ops: [o if o[0] in ('s', 'v', 'fn') else ('fn', (lambda o=o: do(o))) for o in ops]
    def common():
        ops = lines_ops(f"""
s_and_b32 s{sW}, s{sW8}, 3
s_lshr_b32 s{sKS}, s{sQ}, 1
s_and_b32 s55, s{sCB}, 1
s_lshl_b32 s56, s{sKS}, 1
s_add_u32 s57, s56, s55
s_xor_b32 s58, s57, 1
s_lshr_b32 s59, s{sCB}, 1
s_mul_i32 s59, s59, 576
s_mul_i32 s55, s55, 320
s_add_u32 s55, s55, s59
s_mul_i32 s{sWA}, s57, {576*1152}
s_add_u32 s{sSh}, s{sWA}, s59
s_add_u32 s{sSh}, s{sSh}, 256
s_add_u32 s{sWA}, s{sWA}, s55
s_mul_i32 s{sWB}, s58, {576*1152}
s_add_u32 s{sWB}, s{sWB}, s55
s_lshl_b32 s{sW4}, s{sW}, 12
s_lshl_b32 s{sW1}, s{sW}, 10
s_lshl_b32 s55, s{sW}, 4
s_lshl_b32 s{sR2}, s22, {1 if ROT[0] else 8}
""", 10) + [('v', f's_cmp_ge_u32 s{sCB}, 2\n' + '\n'.join(f's_cselect_b32 s{LREG[l]}, {LROT[l]}, {l}' for l in range(9)) +
                     f'\ns_cmp_ge_u32 s{sW8}, 4\ns_cselect_b32 s59, s{LREG[2]}, s{LREG[0]}\ns_cselect_b32 s56, {SLOT}, 0\ns_mul_i32 s59, s59, {64*1152}', 4)] + lines_ops(f"""
v_lshrrev_b32 v{t0}, 8, v{vL16}
v_bfe_u32 v{t1}, v{vL16}, 4, 4
v_lshlrev_b32 v{t2}, 2, v{t0}
v_xor_b32 v{t1}, v{t1}, v{t2}
v_add_u32 v{t0}, s55, v{t0}
v_mul_u32_u24 v{t0}, 1152, v{t0}
v_lshl_add_u32 v{vD}, v{t1}, 4, v{t0}
v_add_u32 v{vD+1}, {4*1152-1024}, v{vD}
v_add_u32 v{vD+2}, {2*(4*1152-1024)}, v{vD}
v_add_u32 v{vD+3}, {3*(4*1152-1024)}, v{vD}
v_lshrrev_b32 v{t0}, 6, v{vL16}
v_add_u32 v{t0}, s55, v{t0}
v_mul_u32_u24 v{t0}, 1152, v{t0}
v_and_b32 v{t1}, 0x30, v{vL16}
v_add_u32 v{vDS}, v{t1}, v{t0}
""", 10)
        assert ORDER[0] == (0, 0) and ORDER[1] == (0, 2) and L_WD == 0
        d = [('s', f's_add_u32 m0, s{sW4}, s56\ns_add_u32 s{sSo}, s{sWA}, s59')]
        d += [('dma', 1, f'buffer_load_dwordx4 v{vD+j}, s[16:19], s{sSo} offen offset:{1024*j} lds') for j in range(4)]
        d += [('s', f's_add_u32 s56, s56, 16384\ns_add_u32 m0, s{sW1}, s56\ns_add_u32 s{sSo}, s{sSh}, s59'),
              ('dma', 1, f'buffer_load_dwordx4 v{vDS}, s[16:19], s{sSo} offen lds')]
        dt[0] = 0
        return ops + wrap(d)
    def pre():
        ops = lines_ops(f"""
s_and_b32 s54, s{sQ}, 1
s_lshl_b32 s54, s54, 3
s_add_u32 s54, s54, s22
v_bfe_u32 v{t0}, v{vL16}, 4, 3
v_lshlrev_b32 v{vP}, 5, v{t0}
s_lshl_b32 s55, s{sCB}, 3
s_add_u32 s55, s55, s{sQ}
v_add_u32 v{vP}, s55, v{vP}
v_and_b32 v{t1}, 3, v{t0}
v_lshrrev_b32 v{t0}, 2, v{t0}
v_lshl_add_u32 v{t0}, v{t1}, 3, v{t0}
s_lshr_b32 s55, s54, 1
s_lshl_b32 s55, s55, 5
s_lshl_b32 s56, s{sKS}, 1
s_add_u32 s55, s55, s56
v_add_u32 v{t0}, s55, v{t0}
v_and_b32 v{t1}, 0x80, v{vL16}
v_cmp_eq_u32 vcc, 0, v{t1}
s_mul_i32 s{sKV}, s{sC}, {64*3072}
s_mul_i32 s{sW3}, s{sW}, 3072
v_cndmask_b32 v{vP}, v{t0}, v{vP}, vcc
v_lshlrev_b32 v{vP}, 7, v{vP}
v_add_u32 v{vP}, {WS_FL}, v{vP}
""", 6)
        ops.append(('fn', lambda: pt.__setitem__(0, p.vm(f'buffer_load_dword v{vPd}, v{vP}, s[4:7], 0 offen sc1'))))
        ops += lines_ops(f"""
s_add_u32 s{sKV}, s{sKV}, s{sW3}
s_add_u32 s{sKV}, s{sKV}, {WS_KV}
s_lshl_b32 s{sT}, s54, 2
s_add_u32 s{sT}, s{sT}, s{sW}
s_mul_i32 s56, s{sT}, {288*1024}
s_add_u32 s56, s56, {WS_H}
s_mul_i32 s{sHA}, s57, {36*1024}
s_add_u32 s{sHA}, s{sHA}, s56
s_mul_i32 s{sHB}, s58, {36*1024}
s_add_u32 s{sHB}, s{sHB}, s56
""", 2)
        ops += [('fn', lambda: None)]*3
        ops.append(('fn', lambda: poll(p, vP, vPd, 1, 'POLL1', pt[0])))
        ops += wrap(kv_ops(0) + kv_ops(1))
        return ops
    def body(sts):
        stok = [0]
        mq = h_ops(0) + h_ops(1) + mem_ops(2) + h_ops(2)
        nkv = [2]; nwd = [3]
        def barrier(ph):
            jneed = (a[ph+1] - 1)//4
            ci = ph - g0
            need = lambda o: (o[0] == 'kv' and o[1] <= jneed) or (o[0] == 'dma' and o[1] <= ci)
            while any(need(o) for o in mq): do(mq.pop(0))
            tok = kt[jneed]
            if 0 <= ci < 18: tok = max(tok, dt[ci])
            if ph == PUB2:
                assert len(stok) == 5, stok
                tok = max(tok, stok[-1])
            p.wait(vm=tok); p.e('s_barrier')
            if ph in (0, 4, 19): p.stamp(f'g{ph}')
            if ph == PUB2: publish(p, 2, sW8, 4, t0, 'PH2_pub')
            if sts: mq.append(('fn', lambda t=sts.pop(0): stok.append(p.vm(t))))
            while nkv[0] < 16 and 4*nkv[0] + 3 - KV_RING <= a[ph] - 2 and (PACE[0] == 0 or 4*nkv[0] <= a[ph] + 9):
                mq.extend(kv_ops(nkv[0])); nkv[0] += 1
            while nwd[0] < 18 and nwd[0] - NSLOT <= (max(ci - 2, -1) if PACE[0] == 0 else ci - 2):
                mq.extend(mem_ops(nwd[0])); nwd[0] += 1
        assert g0 == 1 and NP == 21
        p.e('s_load_dwordx2 s[28:29], s[0:1], 16\ns_load_dwordx2 s[32:33], s[0:1], 0\ns_load_dwordx2 s[56:57], s[0:1], 56')
        barrier(0)
        for _ in range(10): do(mq.pop(0))
        vXO, vW1, vWx1, vW2, vWx2 = 246, 247, 249, 250, 192
        sDP, sCo, sCs, sXO, sOF = 26, 27, 41, 50, 51
        L_WO1, L_WO2 = 3*SLOT, 0
        p.e(f"""
v_lshrrev_b32 v0, 4, v{vL16}
v_lshrrev_b32 v1, 5, v0
v_bfe_u32 v2, v0, 4, 1
v_bfe_u32 v3, v0, 2, 2
v_and_b32 v4, 1, v0
v_bfe_u32 v5, v0, 1, 1
v_lshlrev_b32 v4, 5, v4
v_lshl_add_u32 v4, v2, 4, v4
v_lshl_add_u32 v4, v5, 3, v4
v_lshl_add_u32 v6, v1, 3, v3
v_lshl_add_u32 v7, v6, 8, v4
v_xor_b32 v5, s{sKS}, v3
v_lshl_add_u32 v{vT}, v5, 6, v7
v_xor_b32 v{vT+1}, 64, v{vT}
v_xor_b32 v{vT+2}, 128, v{vT}
v_xor_b32 v{vT+3}, 192, v{vT}
v_lshl_add_u32 v{vTS}, v6, 6, v4
v_add_u32 v{vTS+1}, {3*SLOT}, v{vTS}
v_lshl_add_u32 v6, v1, 2, v3
v_lshl_add_u32 v{vW2}, v6, 6, v4
v_add_u32 v{vW1}, {L_WO1}, v{vW2}
v_mul_u32_u24 v6, 72, v1
v_lshrrev_b32 v5, 1, v3
v_mul_u32_u24 v5, 18, v5
v_and_b32 v7, 1, v3
v_add3_u32 v6, v6, v5, v7
v_add_u32 v6, 16, v6
v_lshl_add_u32 v{vWx2}, v6, 6, v4
v_add_u32 v{vWx1}, {L_WO1}, v{vWx2}
v_and_b32 v5, 31, v0
v_mul_u32_u24 v5, 1152, v5
v_lshl_add_u32 v{vXO}, v1, 5, v5
s_mul_i32 s{sDP}, s{sT}, 20
s_mul_i32 s54, s{sCB}, 5
s_add_u32 s{sDP}, s{sDP}, s54
s_lshl_b32 s{sDP}, s{sDP}, 13
s_add_u32 s{sDP}, s{sDP}, {WS_DP}
s_lshr_b32 s54, s{sCB}, 1
s_mul_i32 s54, s54, 576
s_add_u32 s{sCs}, s54, 256
s_and_b32 s55, s{sCB}, 1
s_mul_i32 s55, s55, 320
s_add_u32 s{sCo}, s54, s55
s_lshl_b32 s55, s{sKS}, 6
s_add_u32 s{sCo}, s{sCo}, s55
s_mul_i32 s{sXO}, s{sT}, {32*1152}
s_mul_i32 s{sOF}, s{sT}, {36*1024}
s_add_u32 s{sOF}, s{sOF}, {WS_OF}
s_waitcnt lgkmcnt(0)
s_mov_b32 s30, {576*576*2}
s_mov_b32 s31, 0x20000
s_mov_b32 s34, {2048*576*2}
s_mov_b32 s35, 0x20000
s_mov_b32 s58, {2048*576*2}
s_mov_b32 s59, 0x20000
""")
        assert L_WD == 0
        for t in range(4): p.e(f'v_add_u32 v{vT+4+t}, {3*SLOT}, v{vT+t}')
        rt = {}
        sh = lambda s: ORDER[s//4][0] == 0
        wo = [0]
        def wo_ops(base, scol):
            ops = []
            for i in range(9):
                ops.append(('s', f's_add_u32 m0, s{sW1}, {base + i*4096}\ns_add_u32 s{sSo}, s{scol}, {i*64*1152}'))
                ops.append(('fn', lambda: wo.__setitem__(0, p.vm(f'buffer_load_dwordx4 v{vDS}, s[28:31], s{sSo} offen lds'))))
            return ops
        def rd(s, t):
            if s > 71 or (t == 4 and not sh(s)): return
            ci = s // 4
            if t == 0 and s % 4 == 0:
                barrier(g0 + ci)
                if ci == 16: mq.extend(wo_ops(L_WO1, sCo))
            sl = ci % NSLOT
            reg, sl = (1, sl - 3) if sl >= 3 else (0, sl)
            for u in range(2):
                if t < 4: ad, off = vT + 4*reg + t, sl*SLOT + (s % 4)*4096 + u*1024
                else: ad, off = vTS + reg, sl*SLOT + 16384 + (s % 4)*1024 + u*256
                d = WF + 4*t + 2*u
                rt[(s, t)] = p.ds(f'ds_read_b64_tr_b16 v[{d}:{d+1}], v{ad} offset:{off}')
        def pack(t, q):
            for k in range(8): p.e(f'v_cvt_pk_bf16_f32 v{q+k}, v{ACC+16*t+2*k}, v{ACC+16*t+2*k+1}')
            if t < 4: pre = f's_xor_b32 s54, s{sKS}, {t}\ns_lshl_b32 s54, s54, 13\ns_add_u32 s54, s54, s{sDP}\ns_add_u32 s54, s54, {t*2048}'
            else: pre = f's_lshl_b32 s54, s{sKS}, 11\ns_add_u32 s54, s54, s{sDP}\ns_add_u32 s54, s54, {4*8192}'
            return [('s', pre)] + [('fn', (lambda hf=hf: p.vm(f'buffer_store_dwordx4 v[{q+4*hf}:{q+4*hf+3}], v{vL16}, s[4:7], s54 offen offset:{hf*1024} sc1'))) for hf in range(2)]
        for t in range(5): rd(0, t)
        for s in range(72):
            nt = 5 if sh(s) else 4
            if s % 4 == 0:
                hc = s//4 + NH//4 - 1
                if hc < 18: mq.extend(h_ops(hc))
            if s == 58: mq.extend(pack(4, 172))
            for t in range(nt):
                while s not in ht: do(mq.pop(0))
                p.wait(lgkm=rt[(s, t)], vm=ht[s])
                ac = ACC + 16*t
                p.e(f'v_mfma_f32_32x32x16_bf16 {vr(ac,16)}, {vr(WF+4*t,4)}, {vr(HF+4*(s % NH),4)}, {"0" if s == 0 else vr(ac,16)}')
                rd(s+1, t)
                if t == nt-1 and nt == 4: rd(s+1, 4)
                if mq:
                    if mq[0][0] == 's': do(mq.pop(0))
                    do(mq.pop(0))
        while mq: do(mq.pop(0))
        p.e('s_nop 7\ns_nop 3')
        sq = [pack(t, HF + 8*t) for t in range(1, 4)]
        for o in sq[0]: do(o)
        PACE[0] = 0
        barrier(19)
        assert nkv[0] == 16
        for o in mq + wo_ops(L_WO2, sCs) + sq[1] + sq[2]: do(o)
        del mq[:]
        kt[15] = max(kt[15], wo[0])
        p.e(f"""
v_bfe_u32 v{t0}, v{vL16}, 4, 2
v_bfe_u32 v{t1}, v{vL16}, 6, 1
v_xor_b32 v{t1}, s{sCB}, v{t1}
v_lshlrev_b32 v{t0}, 1, v{t0}
v_lshl_add_u32 v{t0}, v{t1}, 3, v{t0}
s_lshl_b32 s54, s22, 5
s_and_b32 s55, s{sQ}, 1
s_add_u32 s54, s54, s55
v_add_u32 v{t0}, s54, v{t0}
s_lshl_b32 s55, s{sW}, 2
s_add_u32 s55, s55, {WS_FL + 20}
v_lshlrev_b32 v{vP}, 7, v{t0}
v_add_u32 v{vP}, s55, v{vP}
s_lshl_b32 s54, s2, 7
s_add_u32 s55, s55, s54
v_mov_b32 v{t0}, 1
""")
        barrier(20)
        p.e(f's_waitcnt vmcnt(0)\ns_mov_b64 exec, 1\nbuffer_store_dword v{t0}, off, s[4:7], s55 sc1\ns_mov_b64 exec, -1')
        p.e(f's_and_b32 s54, s{sCB}, 1\ns_lshl_b32 s54, s54, 2\ns_add_u32 s54, s54, s{sKS}\ns_cmp_eq_u32 s54, s{sW}\ns_cbranch_scc1 FIN2')
        G1, G2, X1, X2, A1, A2, OFR = 8, 172, 188+8, 204-0, 214, 230, 24
        X1, X2 = 196, 0
        names = list(getattr(p, 'stamps', []))
        for two in (0, 1):
            if two:
                p.label('FIN2')
                if Prog.STAMPS: p.stamps = list(names)
            p.reset_counts()
            tiles = [(G1, 196, A1, vW1, vWx1, sCo, 168)] + ([(G2, 0, A2, vW2, vWx2, sCs, 204)] if two else [])
            FB2 = {168: (168, 188), 204: (204, 252)}
            for G, Xr, A, w, wx, sc, fb in tiles:
                p.e(f's_add_u32 s{sc}, s{sc}, s{sXO}')
                for hf in range(2): p.vm(f'buffer_load_dwordx4 {vr(Xr+4*hf,4)}, v{vXO}, s[32:35], s{sc} offen offset:{16*hf}')
            tk = p.vm(f'buffer_load_dword v{vPd}, v{vP}, s[4:7], 0 offen sc1')
            poll(p, vP, vPd, 1, f'POLL3_{two}', tk)
            p.stamp('dpfl')
            p.e(f's_lshl_b32 s54, s{sKS}, 13\ns_add_u32 s54, s54, s{sDP}\ns_add_u32 s55, s54, 4096')
            for i in range(1, 4):
                for hf in range(2):
                    l1 = p.vm(f'buffer_load_dwordx4 {vr(OFR+8*(i-1)+4*hf,4)}, v{vL16}, s[4:7], s{54 + i//2} offen offset:{(i&1)*2048 + hf*1024} sc1')
            if two:
                for e in range(8):
                    if e % 2 == 0: p.e(f's_add_u32 s54, s{sDP}, {(4 + 5*(e//4))*8192 + (e % 4)*2048}')
                    for hf in range(2):
                        l2 = p.vm(f'buffer_load_dwordx4 {vr(OFR+24+8*e+4*hf,4)}, v{vL16}, s[4:7], s54 offen offset:{(e&1)*2048 + hf*1024} sc1')
            p.e(f"""
s_lshr_b32 s54, s{sT}, 3
s_lshl_b32 s54, s54, 12
s_bfe_u32 s55, s{sT}, 0x20001
s_lshl_b32 s55, s55, 2
s_add_u32 s54, s54, s55
s_add_u32 s54, s54, {WS_FL + 4}
v_and_b32 v{vP}, 0x1f0, v{vL16}
v_lshlrev_b32 v{vP}, 3, v{vP}
v_add_u32 v{vP}, s54, v{vP}
s_mov_b32 s60, {hex(f2u(-LOG2E))}
""")
            def addp(G, src, first):
                for k in range(8):
                    if first: p.e(f'v_lshlrev_b32 v{G+2*k}, 16, v{src+k}\nv_and_b32 v{G+2*k+1}, 0xffff0000, v{src+k}')
                    else: p.e(f'v_lshlrev_b32 v{A1+2*k}, 16, v{src+k}\nv_and_b32 v{A1+2*k+1}, 0xffff0000, v{src+k}')
                if not first:
                    for k in range(16): p.e(f'v_add_f32 v{G+k}, v{G+k}, v{A1+k}')
            def silu(G):
                for k in range(16): p.e(f'v_mul_f32 v{A1+k}, s60, v{G+k}')
                for k in range(16): p.e(f'v_exp_f32 v{A1+k}, v{A1+k}')
                for k in range(16): p.e(f'v_add_f32 v{A1+k}, 1.0, v{A1+k}')
                for k in range(16): p.e(f'v_rcp_f32 v{A1+k}, v{A1+k}')
                for k in range(16): p.e(f'v_mul_f32 v{G+k}, v{G+k}, v{A1+k}')
            p.wait(vm=l1)
            for i in range(3): addp(G1, OFR + 8*i, False)
            silu(G1)
            if two:
                p.wait(vm=l2)
                for e in range(8): addp(G2, OFR + 24 + 8*e, e == 0)
                silu(G2)
            wt = {}
            def rdw(s):
                if s > 35: return
                for G, Xr, A, w, wx, sc, fb in tiles:
                    for u in range(2):
                        ad, off = (w, (18*s + 8*u)*64) if s < 32 else (wx, ((s-32)*144 + 36*u)*64)
                        d = FB2[fb][s & 1] + 2*u
                        wt[s] = p.ds(f'ds_read_b64_tr_b16 v[{d}:{d+1}], v{ad} offset:{off}')
            rdw(0); rdw(1)
            p.stamp('gdone')
            tk = p.vm(f'buffer_load_dword v{vPd}, v{vP}, s[4:7], 0 offen sc1')
            poll(p, vP, vPd, 1, f'POLL4_{two}', tk)
            p.stamp('ofl')
            ot = {}
            for s in range(36):
                if s % 4 == 0: p.e(f's_add_u32 s54, s{sOF}, {s*1024}')
                ot[s] = p.vm(f'buffer_load_dwordx4 {vr(OFR+4*s,4)}, v{vL16}, s[4:7], s54 offen offset:{(s%4)*1024} sc1')
            for s in range(36):
                p.wait(lgkm=wt[s], vm=ot[s])
                for G, Xr, A, w, wx, sc, fb in tiles:
                    p.e(f'v_mfma_f32_32x32x16_bf16 {vr(A,16)}, {vr(FB2[fb][s&1],4)}, {vr(OFR+4*s,4)}, {"0" if s == 0 else vr(A,16)}')
                rdw(s+2)
            for G, Xr, A, w, wx, sc, fb in tiles:
                Tv = OFR
                for k in range(8): p.e(f'v_lshlrev_b32 v{Tv+2*k}, 16, v{Xr+k}\nv_and_b32 v{Tv+2*k+1}, 0xffff0000, v{Xr+k}')
                for k in range(16): p.e(f'v_fma_f32 v{G+k}, v{G+k}, v{A+k}, v{Tv+k}')
                for k in range(8): p.e(f'v_cvt_pk_bf16_f32 v{Xr+k}, v{G+2*k}, v{G+2*k+1}')
                for hf in range(2): p.e(f'buffer_store_dwordx4 {vr(Xr+4*hf,4)}, v{vXO}, s[56:59], s{sc} offen offset:{16*hf}')
            if not two: p.e('s_branch PK_end')
    return pre, body, common

def gen_k12(at=[2] + [3]*5 + [2,3,2,3,2] + [3]*4 + [2,3,2,3] + [4,9], g0=1, force_fallback=False, SF=' sc1', k1={}, inv=False, rot=True, pace=1):
    INV[0] = inv; ROT[0] = rot; PACE[0] = pace
    a = plan(at, g0)
    p = Prog()
    p.e('s_cmp_ge_u32 s2, 256\ns_cbranch_scc1 PK_done')
    p.stamp('start'); p.stamp('rstart', True)
    out = []
    rd_ = role_down(p, a, g0, SF)
    gen_ph1(p, roles=[role_att(p, a, force_fallback, SF, out), rd_[:2]], common=rd_[2], **k1)
    p.label('PK_end')
    p.dump_stamps(0, 20, WS_ST)
    p.label('PK_done')
    p.e('s_endpgm')
    p.lines += out[0].lines
    return p

if __name__ == '__main__':
    p = gen_k12()
    pr = check_hazards(p.lines, 'k12')
    print(len(p.lines), 'lines;', len(pr), 'hazards', sum(1 for l in p.lines if l == 's_barrier'))
    for x in pr[:20]: print(x)
```

```python
import sys, json
from pk import *
NAME = 'recurrent_scan__softmax_full_mha__glu_gated_glu__prompt'
def build(out, force_fallback=False, k1={}, k2={}, aslist=False):
    n = NAME + '_kernel'
    p = gen_k12(force_fallback=force_fallback, k1=k1, **k2)
    ref = open('cdna_kernels/' + NAME + '.s.ref').read().split('\n')
    txt = '\n'.join(ref[:11]) + '\n'
    txt += f'; @launch {"kernel=" + n + " " if aslist else ""}grid=(256,1,1) block=(512,1,1) lds={PK_LDS}\n'
    txt += '.amdgcn_target "amdgcn-amd-amdhsa--gfx950"\n.text\n'
    for x in check_hazards(p.lines, n): print('HAZARD', x)
    txt += f'.globl {n}\n.p2align 8\n.type {n},@function\n{n}:\n' + p.text()
    txt += 'CODE_END:\n.section .rodata,"a"\n.p2align 6\n' + kd(n, 256, 256)
    open(out, 'w').write(txt)
    return {n: getattr(p, 'stamps', [])}
VARS = [dict(k2=dict(att=(('x0k1',(4,8,4)),('x0k1',(4,8,4)),0))), dict(k2=dict(att=(('01xk',(3,3,5)),('x0k1',(4,8,4)),54))), dict(k2=dict(rot=False, kvp=(1,1.3)))]
ONLY = ['g0', 'g2', 'g4', 'g8', 'g12', 'g14', 'rg19', 'rdpfl', 'rgdone', 'rofl']
if __name__ == '__main__':
    build('cdna_kernels/' + NAME + '.s')
    build('main.s', aslist=True)
    build('fb.s', force_fallback=True, aslist=True)
    for i, kw in enumerate(VARS): build(f'v{i}.s', **kw)
    Prog.STAMPS = True
    Prog.ONLY = ONLY
    allst = {'st.s': build('st.s', aslist=True)}
    for i, kw in enumerate(VARS): allst[f'st{i}.s'] = build(f'st{i}.s', aslist=True, **kw)
    json.dump(allst, open('st.json', 'w'))
```

```python
from k01 import *

WS_WQ = WS_END
WS_WM = WS_WQ + 32*576*128
WS_FL = WS_WM + 32*288*128 + 4096
WS_END2 = WS_FL + 256*128
L_B0A, L_B0B, L_B1A, L_B1B = 0, 40960, 73728, 114688
PH1_LDS = 147456
SF = ' sc1'

def ln_body(p, sf=''):
    for i in range(8):
        p.e(f'v_lshlrev_b32 v{12+2*i}, 16, v{4+i}\nv_and_b32 v{13+2*i}, 0xffff0000, v{4+i}')
    def reduce(r):
        p.e(f"""
s_nop 1
v_add_f32_dpp v{r}, v{r}, v{r} quad_perm:[1,0,3,2] row_mask:0xf bank_mask:0xf
s_nop 1
v_add_f32_dpp v{r}, v{r}, v{r} quad_perm:[2,3,0,1] row_mask:0xf bank_mask:0xf
s_nop 1
v_add_f32_dpp v{r}, v{r}, v{r} row_half_mirror row_mask:0xf bank_mask:0xf
s_nop 1
v_add_f32_dpp v{r}, v{r}, v{r} row_mirror row_mask:0xf bank_mask:0xf
s_nop 1
v_readlane_b32 s60, v{r}, 0
v_readlane_b32 s61, v{r}, 16
v_readlane_b32 s62, v{r}, 32
s_nop 1
v_mov_b32 v{r}, s60
v_add_f32 v{r}, s61, v{r}
v_add_f32 v{r}, s62, v{r}
v_mul_f32 v{r}, {hex(f2u(1.0/576))}, v{r}
""")
    p.e('v_add_f32 v4, v12, v13\nv_add_f32 v5, v14, v15\nv_add_f32 v6, v16, v17\nv_add_f32 v7, v18, v19')
    p.e('v_add_f32 v8, v20, v21\nv_add_f32 v9, v22, v23\nv_add_f32 v10, v24, v25\nv_add_f32 v11, v26, v27')
    p.e('v_add_f32 v4, v4, v5\nv_add_f32 v6, v6, v7\nv_add_f32 v8, v8, v9\nv_add_f32 v10, v10, v11')
    p.e('v_add_f32 v4, v4, v6\nv_add_f32 v8, v8, v10\nv_add_f32 v4, v4, v8')
    reduce(4)
    p.e('v_mov_b32 v5, 0\nv_mov_b32 v6, 0')
    for i in range(16):
        t = 8 + (i & 3)
        p.e(f'v_sub_f32 v{t}, v{12+i}, v4\nv_fmac_f32 v{5 + (i & 1)}, v{t}, v{t}')
    p.e('v_add_f32 v5, v5, v6\nv_cndmask_b32 v5, 0, v5, vcc')
    reduce(5)
    p.e(f"""
v_cvt_pk_bf16_f32 v4, v4, v5
v_and_b32 v5, 0xffff0000, v4
v_lshlrev_b32 v4, 16, v4
v_add_f32 v5, {hex(f2u(1e-5))}, v5
v_cvt_pk_bf16_f32 v5, v5, v5
v_lshlrev_b32 v5, 16, v5
v_sqrt_f32 v5, v5
s_nop 0
v_cvt_pk_bf16_f32 v5, v5, v5
v_lshlrev_b32 v5, 16, v5
v_rcp_f32 v5, v5
""")
    for i in range(16): p.e(f'v_sub_f32 v{12+i}, v{12+i}, v4')
    for i in range(8): p.e(f'v_cvt_pk_bf16_f32 v{44+i}, v{12+2*i}, v{13+2*i}')
    for i in range(8): p.e(f'v_lshlrev_b32 v{12+2*i}, 16, v{44+i}\nv_and_b32 v{13+2*i}, 0xffff0000, v{44+i}')
    for i in range(16): p.e(f'v_mul_f32 v{12+i}, v{12+i}, v5')
    for i in range(8): p.e(f'v_cvt_pk_bf16_f32 v{44+i}, v{12+2*i}, v{13+2*i}')

L_XS = 147456

def spin(p, vaddr, vdst, srd_, need, lab):
    p.e(f"""
v_cmp_gt_u32 vcc, {need}, v{vdst}
s_cbranch_vccz {lab}_ok
s_mov_b32 s63, {1 << 20}
""")
    p.label(f'{lab}_spin')
    p.e(f"""
buffer_load_dword v{vdst}, v{vaddr}, {srd_}, 0 offen sc1
s_waitcnt vmcnt(0)
v_cmp_gt_u32 vcc, {need}, v{vdst}
s_sub_u32 s63, s63, 1
s_cbranch_scc1 {lab}_ok
s_cbranch_vccnz {lab}_spin
""")
    p.label(f'{lab}_ok')

def gen_ph0(p, setup0, setup, dma):
    GA, GB, gA, gA2, gB, gB2, dA, dB, xA, xB = 208, 212, 70, 71, 72, 73, 216, 217, 218, 219
    p.e(f"""
s_load_dwordx4 s[52:55], s[0:1], 0
s_load_dwordx4 s[56:59], s[0:1], 32
s_load_dwordx2 s[16:17], s[0:1], 48
s_load_dwordx2 s[36:37], s[0:1], 64
s_load_dwordx2 s[4:5], s[0:1], 72
v_and_b32 v1, 63, v0
v_lshrrev_b32 v2, 6, v0
s_lshl_b32 s3, s2, 3
v_readfirstlane_b32 s20, v2
v_add_u32 v3, s3, v2
v_mul_u32_u24 v3, 1152, v3
v_lshl_add_u32 v3, v1, 5, v3
v_cmp_gt_u32 vcc, 36, v1
v_mov_b32 v30, 0x7ff00000
s_and_b32 s22, s20, 3
v_cndmask_b32 v3, v30, v3, vcc
s_mul_i32 s22, s22, 18
s_lshr_b32 s23, s2, 5
s_mul_i32 s23, s23, 72
s_add_u32 s22, s22, s23
v_add_u32 v28, s22, v1
v_mul_u32_u24 v28, 9216, v28
v_cmp_gt_u32 s[26:27], 18, v1
s_and_b32 s22, s2, 7
s_mul_i32 s22, s22, 1152
s_bfe_u32 s23, s2, 0x20003
s_lshl_b32 s23, s23, 8
s_add_u32 s22, s22, s23
v_add_u32 v28, s22, v28
v_cndmask_b32 v28, v30, v28, s[26:27]
s_mov_b32 s46, {2048*576*2}
s_mov_b32 s47, 0x20000
s_mov_b32 s42, {576*4608*2}
s_mov_b32 s43, 0x20000
s_cmp_lt_u32 s20, 4
s_waitcnt lgkmcnt(0)
s_mov_b32 s44, s52
s_mov_b32 s45, s53
buffer_load_dwordx4 v[4:7], v3, s[44:47], 0 offen
buffer_load_dwordx4 v[8:11], v3, s[44:47], 0 offen offset:16
s_cselect_b32 s40, s56, s58
s_cselect_b32 s41, s57, s59
s_mov_b32 s6, {WS_SIZE}
s_mov_b32 s7, 0x20000
s_mov_b32 s18, {4608*576*2}
s_mov_b32 s19, 0x20000
s_mov_b32 s38, 256
s_mov_b32 s39, 0x20000
buffer_load_dword v62, v28, s[40:43], 0 offen
""")
    srd(p, 8, 56, 576*4608*2)
    srd(p, 12, 58, 576*4608*2)
    srd(p, 44, 54, 576*1728*2)
    p.e(f"""
v_lshrrev_b32 v32, 3, v1
v_and_b32 v33, 7, v1
v_lshlrev_b32 v31, 8, v1
v_lshl_add_u32 v31, v2, 4, v31
v_add_u32 v31, {L_XS}, v31
v_lshlrev_b32 v39, 4, v0
v_add_u32 v39, {L_XS}, v39
v_lshrrev_b32 v40, 5, v0
v_lshlrev_b32 v40, 11, v40
v_bfe_u32 v41, v0, 3, 2
v_lshl_add_u32 v40, v41, 8, v40
v_lshl_add_u32 v40, v33, 4, v40
s_lshr_b32 s22, s2, 2
s_mul_i32 s62, s22, 36864
s_and_b32 s22, s2, 2
s_lshl_b32 s22, s22, 9
s_add_u32 s62, s62, s22
s_and_b32 s22, s2, 1
s_lshl_b32 s22, s22, 7
s_add_u32 s62, s62, s22
v_add_u32 v40, s62, v40
v_add_u32 v41, {16*2048}, v40
v_lshlrev_b32 v42, 2, v1
s_lshl_b32 s22, s2, 7
s_add_u32 s22, s22, {WS_FL}
v_add_u32 v42, s22, v42
v_mov_b32 v43, 0
""")
    assert WS_XN == 0
    setup0()
    p.e('s_waitcnt vmcnt(1)')
    ln_body(p)
    p.e(f"""
s_mov_b64 exec, vcc
ds_write_b128 v31, v[44:47]
ds_write_b128 v31, v[48:51] offset:128
s_mov_b64 exec, -1
s_waitcnt lgkmcnt(0)
s_barrier
ds_read_b128 v[44:47], v39
s_cmp_lg_u32 s20, 0
s_cbranch_scc1 PH0_w
ds_read_b128 v[48:51], v39 offset:8192
s_mov_b64 exec, 0xffffffff
buffer_store_dword v43, v42, s[4:7], 0 offen sc1
s_mov_b64 exec, -1
s_waitcnt lgkmcnt(0)
buffer_store_dwordx4 v[48:51], v41, s[4:7], 0 offen sc1
""")
    p.label('PH0_w')
    p.e('s_waitcnt lgkmcnt(0)')
    p.reset_counts()
    xs = p.vm('buffer_store_dwordx4 v[44:47], v40, s[4:7], 0 offen sc1')
    dma(0)
    def wq_addr(task, dA, dB, dD):
        p.e(f"""
s_lshr_b32 s60, s{task}, 2
s_and_b32 s61, s{task}, 3
s_and_b32 s62, s60, 2
s_lshr_b32 s63, s60, 1
s_and_b32 s63, s63, 4
s_or_b32 s62, s62, s63
s_lshl_b32 s61, s61, 3
v_xor_b32 v34, s62, v33
v_add_u32 v35, s61, v32
s_mul_i32 s63, s60, 3456
v_mul_u32_u24 v{dB}, 36, v35
v_add_u32 v{dB}, s63, v{dB}
v_lshrrev_b32 v36, 1, v34
v_and_b32 v37, 1, v34
v_lshlrev_b32 v38, 4, v37
v_sub_u32 v37, 2, v37
v_cmp_eq_u32 vcc, 3, v36
v_cmp_eq_u32 s[56:57], 6, v34
s_lshl_b32 s63, s60, 7
v_cndmask_b32 v36, v36, v37, vcc
v_cndmask_b32 v38, v38, 32, vcc
v_mul_u32_u24 v36, 1152, v36
v_add3_u32 v{dA}, v{dB}, v36, v38
v_add_u32 v{dB}, 32, v{dB}
v_cndmask_b32 v{dB}, v30, v{dB}, s[56:57]
v_mul_u32_u24 v{dD}, {576*128}, v35
v_lshl_add_u32 v{dD}, v33, 4, v{dD}
v_add_u32 v{dD}, s63, v{dD}
v_add_u32 v{dD}, {WS_WQ}, v{dD}
""")
    p.e('s_lshl_b32 s48, s2, 3\ns_add_u32 s48, s48, s20')
    wq_addr(48, gA, gA2, dA)
    p.e(f"""
s_mov_b64 s[58:59], s[56:57]
s_lshr_b32 s62, s2, 5
s_lshl_b32 s62, s62, 5
v_mov_b32 v43, 1
v_mov_b32 v42, s62
""")
    p.wait(vm=xs)
    p.e("""
s_barrier
s_cmp_lg_u32 s20, 0
s_cbranch_scc1 PH0_a
s_mov_b64 exec, 1
buffer_atomic_add v43, off, s[36:39], s62 sc1
s_mov_b64 exec, -1
""")
    p.label('PH0_a')
    p.stamp('arr')
    dma(1)
    p.vm(f'buffer_load_dwordx4 {vr(GA,4)}, v{gA}, s[44:47], 0 offen')
    p.vm(f'buffer_load_dword v{xA}, v{gA2}, s[44:47], 0 offen')
    p.e('s_cmp_ge_u32 s2, 32\ns_cbranch_scc1 PH0_m\ns_add_u32 s48, s48, 2048')
    wq_addr(48, gB, gB2, dB)
    p.e(f'buffer_load_dwordx4 {vr(GB,4)}, v{gB}, s[44:47], 0 offen\nbuffer_load_dword v{xB}, v{gB2}, s[44:47], 0 offen\ns_branch PH0_j')
    p.label('PH0_m')
    p.e(f"""
s_mov_b64 s[56:57], 0
s_sub_u32 s48, s48, 256
s_lshr_b32 s60, s48, 2
s_and_b32 s61, s48, 3
s_and_b32 s62, s60, 2
s_lshr_b32 s63, s60, 1
s_and_b32 s63, s63, 4
s_or_b32 s62, s62, s63
s_lshl_b32 s61, s61, 3
v_xor_b32 v34, s62, v33
v_add_u32 v35, s61, v32
v_lshrrev_b32 v36, 2, v35
v_mul_u32_u24 v36, 1152, v36
v_and_b32 v37, 3, v35
v_lshl_add_u32 v36, v37, 5, v36
v_and_b32 v37, 1, v34
v_lshl_add_u32 v36, v37, 4, v36
v_lshrrev_b32 v37, 2, v34
v_mul_u32_u24 v37, {288*9216}, v37
s_mul_i32 s63, s60, 9216
s_add_u32 s63, s63, 1024
v_add3_u32 v{gB}, v36, v37, s63
v_and_b32 v37, 2, v34
v_cmp_eq_u32 vcc, 0, v37
v_mul_u32_u24 v{dB}, {288*128}, v35
v_lshl_add_u32 v{dB}, v33, 4, v{dB}
s_lshl_b32 s63, s60, 7
s_add_u32 s63, s63, {WS_WM}
v_add_u32 v{dB}, s63, v{dB}
s_cmp_lt_u32 s48, 1152
s_cselect_b32 s63, 0, 0x7ff00000
v_or_b32 v{dB}, s63, v{dB}
v_or_b32 v{gB}, s63, v{gB}
s_mov_b64 exec, vcc
""")
    p.vm(f'buffer_load_dwordx4 {vr(GB,4)}, v{gB}, s[8:11], 0 offen')
    p.e('s_not_b64 exec, exec')
    gt = p.vm(f'buffer_load_dwordx4 {vr(GB,4)}, v{gB}, s[12:15], 0 offen')
    p.e('s_mov_b64 exec, -1')
    p.label('PH0_j')
    dma(2)
    setup()
    def fin():
        p.wait(vm=gt)
        p.e(f'v_cndmask_b32 v{GA+2}, v{GA+2}, v{xA}, s[58:59]\nv_cndmask_b32 v{GB+2}, v{GB+2}, v{xB}, s[56:57]')
        p.vm(f'buffer_store_dwordx4 {vr(GA,4)}, v{dA}, s[4:7], 0 offen sc1')
        return p.vm(f'buffer_store_dwordx4 {vr(GB,4)}, v{dB}, s[4:7], 0 offen sc1')
    return fin

def gen_ph1(p, XD=2, cF=6, wait2=False, patC=True, SF=' sc1', roles=None, common=None, touch=True, PRE=[[], [0, 2], [1, 3]], XG=5, ARRB=36, R1=1.1, SP=5, R2=1.7, prog=4, abl='', TU=-4, EP=0, TQ=(84, 150, 14), GAP={7: 14, 8: 14, 9: 12, 10: 12}, XB=(), PR={0:2,12:1,24:0,37:3,55:2,73:1,91:0}, xf=' sc1', poison=True, ct=7):
    X_ = 0
    P_, Q_, S_, F_ = 144, 176, 208, 224
    TB = 240
    T_ = 244
    vL16, vDF, vF = 248, 249, 250
    R_ = 251
    def X(tt, kp): return vr(X_ + 4*(2*kp + tt), 4)
    sW, sC, sR, sQ = 20, 21, 22, 23
    sCol, sColM, sW1, sSo = 25, 26, 27, 30
    sXN, sH0, sHM, sQF, sKV, sT = 31, 32, 33, 34, 35, 28
    sWQ, sWM = 40, 41
    sNL, sCQ = 50, 51
    L = T_+1
    units = [('G0', 0, 5), ('G0', 5, 9), ('U0', 0, 5), ('U0', 5, 9), ('M', 0, 5), ('QKV', 0, 5), ('QKV', 5, 9), ('G1', 0, 4), ('G1', 4, 9), ('U1', 0, 4), ('U1', 4, 9)]
    ubase = [L_B0A, L_B0B, L_B1A, L_B1B, L_B0A, L_B1A, L_B0B, L_B1B, L_B0A, L_B0B, L_B1A]
    xtok = {}; dtok = {}; stok = [0]
    def V(t, c=4): return ('v', t, c)
    def do_op(op):
        k = op[0]
        if k in ('s', 'v'): p.e(op[1])
        elif k == 'dma' and 'd' in abl and op[1] >= 7: dtok[op[1]] = 0
        elif k == 'st' and 's' in abl: pass
        elif k == 'dma': dtok[op[1]] = p.vm(op[2])
        elif k == 'x': xtok[op[1]] = p.vm(op[2])
        elif k == 'st': stok[0] = p.vm(op[1])
        elif k == 'fn': op[1]()
    def dma_unit(n):
        g, i0, i1 = units[n]; base = ubase[n]
        ops = []
        for i in range(i0, i1):
            li = i - i0
            if g[0] in 'GU':
                sr = 8 if g[0] == 'G' else 12
                add = 128 if g[1] == '1' else 0
                ops.append(('s', f's_add_u32 m0, s{sW1}, {base + li*8192}\ns_add_u32 s{sSo}, s{sCol}, {add + i*64*9216}', 8))
                ops.append(('dma', n, f'buffer_load_dwordx4 v{vDF}, s[{sr}:{sr+3}], s{sSo} offen lds'))
            else:
                ops.append(('s', f's_add_u32 m0, s{sW1}, {base + li*8192}\ns_add_u32 s{sSo}, s{sWQ if g == "QKV" else sWM}, {i*8192}', 8))
                ops.append(('dma', n, f'buffer_load_dwordx4 v{vL16}, s[4:7], s{sSo} offen sc1 lds'))
        return ops
    def xops(kp0, kp1):
        ops = []
        for kp in range(kp0, kp1):
            if kp % 2 == 0: ops.append(('s', f's_add_u32 s60, s{sXN}, {WS_XN + kp*2048}', 4))
            for tt in range(2):
                ops.append(('x', (tt, kp), f'buffer_load_dwordx4 {X(tt,kp)}, v{vL16}, s[4:7], s60 offen offset:{(kp%2)*2048 + tt*1024}{xf}'))
        return ops
    def setup0():
        p.e(f"""
v_and_b32 v{L}, 63, v0
v_lshlrev_b32 v{vL16}, 4, v{L}
s_and_b32 s{sQ}, s2, 7
s_lshr_b32 s3, s2, 3
s_and_b32 s24, s3, 3
s_lshr_b32 s{sR}, s3, 2
s_lshl_b32 s{sC}, s{sQ}, 2
s_add_u32 s{sC}, s{sC}, s24
s_mul_i32 s{sCol}, s{sQ}, 1152
s_lshl_b32 s3, s24, 5
s_add_u32 s{sColM}, s{sCol}, s3
s_add_u32 s{sColM}, s{sColM}, 1024
s_lshl_b32 s3, s24, 8
s_add_u32 s{sCol}, s{sCol}, s3
s_lshl_b32 s{sW1}, s{sW}, 10
s_lshl_b32 s{sT}, s{sR}, 3
s_add_u32 s{sT}, s{sT}, s{sW}
s_mul_i32 s{sXN}, s{sT}, {36*1024}
v_lshrrev_b32 v{T_+2}, 3, v{L}
v_and_b32 v{T_+3}, 7, v{L}
v_and_b32 v{T_}, 2, v{T_+2}
v_xor_b32 v{T_+3}, v{T_+3}, v{T_}
s_and_b32 s3, s{sW}, 1
s_lshl_b32 s3, s3, 2
v_xor_b32 v{T_+3}, s3, v{T_+3}
s_lshl_b32 s3, s{sW}, 3
v_add_u32 v{T_+2}, s3, v{T_+2}
v_mul_u32_u24 v{T_+2}, 9216, v{T_+2}
v_lshl_add_u32 v{vDF}, v{T_+3}, 4, v{T_+2}
""")
    def setup():

        p.e(f"""
v_lshrrev_b32 v{T_}, 4, v{L}
v_bfe_u32 v{T_+2}, v{L}, 2, 2
v_lshl_add_u32 v{T_+3}, v{T_}, 3, v{T_+2}
v_lshlrev_b32 v{vF}, 7, v{T_+3}
v_lshrrev_b32 v{T_+2}, 1, v{T_+2}
v_lshl_add_u32 v{vF}, v{T_+2}, 5, v{vF}
v_and_b32 v{T_}, 1, v{T_}
v_lshl_add_u32 v{vF}, v{T_}, 6, v{vF}
v_and_b32 v{T_}, 3, v{L}
v_lshl_add_u32 v{vF}, v{T_}, 3, v{vF}
s_mul_i32 s{sWQ}, s{sC}, {576*128}
s_add_u32 s{sWQ}, s{sWQ}, s{sW1}
s_add_u32 s{sWQ}, s{sWQ}, {WS_WQ}
s_mul_i32 s{sWM}, s{sC}, {288*128}
s_add_u32 s{sWM}, s{sWM}, s{sW1}
s_add_u32 s{sWM}, s{sWM}, {WS_WM}
s_mul_i32 s{sH0}, s{sT}, {288*1024}
s_lshl_b32 s3, s{sColM}, 5
s_add_u32 s{sHM}, s{sH0}, s3
s_add_u32 s{sHM}, s{sHM}, {WS_H}
s_lshl_b32 s3, s{sCol}, 5
s_add_u32 s{sH0}, s{sH0}, s3
s_add_u32 s{sH0}, s{sH0}, {WS_H}
s_lshl_b32 s3, s{sC}, 6
s_add_u32 s3, s3, s{sT}
s_lshl_b32 s{sQF}, s3, 10
s_add_u32 s{sQF}, s{sQF}, {WS_QF}
s_mul_i32 s{sKV}, s3, 3072
s_add_u32 s{sKV}, s{sKV}, {WS_KV}
s_mov_b32 s{sNL}, {hex(f2u(-LOG2E))}
s_mov_b32 s{sCQ}, {hex(f2u(CQ))}
""")
    def dma(k):
        for n in PRE[k]:
            for o in dma_unit(n): do_op(o)
    fin = gen_ph0(p, setup0, setup, dma)
    p.e(f's_add_u32 s61, s{sH0}, 4096')
    itok = [0]
    if ct & 1: code_touch(p, 100, 101, sW, 8)
    lo = lambda t: (P_ if t < 2 else Q_) + 8*(t & 1)
    hi = lambda t: lo(t) + 16
    accf = {'G0': lambda t: P_ + 8*t, 'U0': lambda t: Q_ + 8*t, 'M': lambda t: S_ + 8*(t & 1), 'QKV': lo, 'G1': hi, 'U1': lo}
    pairs = []
    def addp(n, kp, tb):
        g, i0, i1 = units[n]
        for t in range(4):
            pairs.append(dict(n=n, g=g, kp=kp + (9*(t >> 1) if g == 'M' else 0), acc=accf[g](t), swap=(g == 'QKV' and t >= 2), tb=tb,
                              rd=[(tb + t, (kp - 2*i0)*4096 + u*512) for u in range(2)]))
    for kp in range(10): addp(0, kp, TB); addp(2, kp, T_)
    for n in (1, 3, 4, 5, 6, 7, 8, 9, 10):
        g, i0, i1 = units[n]
        for kp in (range(9) if g == 'M' else range(2*i0, 2*i1)): addp(n, kp, TB)
    N = len(pairs)
    first = {}
    for i, q in enumerate(pairs): first.setdefault(q['n'], i)
    def base_ops(n, tb):
        return f'v_add_u32 v{tb}, {ubase[n]}, v{vF}\nv_xor_b32 v{tb+1}, 32, v{tb}\nv_xor_b32 v{tb+2}, 64, v{tb}\nv_xor_b32 v{tb+3}, 96, v{tb}'
    def swapst(q, addr, so, off, nop=''):
        return [V(f'{nop}v_permlane16_swap_b32 v{q}, v{q+2}\nv_permlane16_swap_b32 v{q+1}, v{q+3}', 8),
                ('st', f'buffer_store_dwordx4 v[{q}:{q+3}], v{addr}, s[4:7], s{so} offen offset:{off}{SF}')]
    def sig(r):
        ops = []
        for b in (r, r+4):
            ops += [V(f'v_mul_f32 v{b+k}, s{sNL}, v{b+k}') for k in range(4)]
            ops += [V(f'v_exp_f32 v{b+k}, v{b+k}', 8) for k in range(4)]
            ops += [V(f'v_add_f32 v{b+k}, 1.0, v{b+k}') for k in range(4)]
            ops += [V(f'v_rcp_f32 v{b+k}, v{b+k}', 8) for k in range(4)]
        return ops
    def fino(rg, ru, so, off):
        ops = [V(f'v_mul_f32 v{ru+k}, v{ru+k}, v{rg+k}') for k in range(8)]
        ops += [V(f'v_cvt_pk_bf16_f32 v{T_+k}, v{ru+2*k}, v{ru+2*k+1}') for k in range(4)]
        return ops + swapst(T_, vL16, so, off, 's_nop 1\n')
    def epi_QKV():
        cst = [V(t) for t in f"""v_and_b32 v{R_+1}, {0x270}, v{vL16}
v_and_b32 v{T_}, 0x80, v{vL16}
v_lshl_add_u32 v{R_+1}, v{T_}, 1, v{R_+1}
v_and_b32 v{T_}, 0x100, v{vL16}
v_lshrrev_b32 v{T_}, 1, v{T_}
v_add_u32 v{R_+1}, v{R_+1}, v{T_}
v_and_b32 v{R_+2}, 0xf0, v{vL16}
v_and_b32 v{T_}, 0x300, v{vL16}
v_lshl_add_u32 v{R_+2}, v{T_}, 1, v{R_+2}
v_lshrrev_b32 v{T_}, 3, v{T_}
v_add_u32 v{T_}, v{T_}, v{vL16}
v_and_b32 v{T_}, 0x70, v{T_}
v_and_b32 v{T_+1}, 0xf8f, v{R_+2}
v_or_b32 v{T_+1}, v{T_+1}, v{T_}
v_and_b32 v{T_+2}, 0x80, v{vL16}
v_cmp_eq_u32 vcc, 0, v{T_+2}
v_and_b32 v{T_+2}, 0xf0, v{vL16}
v_mov_b32 v{R_+4}, 0
v_cndmask_b32 v{R_}, v{T_+1}, v{R_+2}, vcc
v_and_b32 v{T_+1}, 0xb0, v{T_+2}
v_cmp_eq_u32 vcc, 0x20, v{T_+1}
v_and_b32 v{T_+1}, 0x60, v{T_+2}
v_mov_b32 v{R_+3}, 0
v_cndmask_b32 v{R_+4}, v{R_+4}, 1.0, vcc
v_cmp_eq_u32 vcc, 0, v{T_+1}
v_and_b32 v{T_+1}, 0xe0, v{T_+2}
v_mov_b32 v{T_+3}, s{sCQ}
v_cndmask_b32 v{R_+3}, v{R_+3}, 1.0, vcc
v_cmp_eq_u32 vcc, 0x40, v{T_+1}
s_nop 1
v_cndmask_b32 v{R_+3}, v{R_+3}, v{T_+3}, vcc""".split('\n')]
        cv = lambda t: [V(f'v_cvt_pk_bf16_f32 v{S_+4*t+k}, v{lo(t)+2*k}, v{lo(t)+2*k+1}') for k in range(4)]
        sp = [V('', 8)]*SP
        ops = cst[:9] + cv(1) + cv(2)
        ops.append(('st', f'buffer_store_dwordx4 v[{S_+8}:{S_+11}], v{R_+2}, s[4:7], s{sKV} offen offset:1024{SF}'))
        ops += cst[9:]
        ops += swapst(S_+4, R_+1, sKV, 0)
        ops += [V(f'v_fma_f32 v{lo(3)+k}, v{lo(3)+k}, v{R_+3}, v{R_+4}') for k in range(8)] + cv(3) + [V(f'v_mul_f32 v{lo(0)+k}, s{sCQ}, v{lo(0)+k}') for k in range(8)]
        ops.append(('st', f'buffer_store_dwordx4 v[{S_+12}:{S_+15}], v{R_}, s[4:7], s{sKV} offen offset:1280{SF}'))
        ops += cv(0) + sp + sp[:3] + swapst(S_, vL16, sQF, 0)
        return ops
    def epi_U2():
        ops = [V(f'v_mul_f32 v{P_+k}, v{P_+k}, v{P_+16+k}') for k in range(16)]
        ops += [V(f'v_mul_f32 v{Q_+16+k}, v{Q_+k}, v{Q_+16+k}') for k in range(16)]
        ops += [V(f'v_cvt_pk_bf16_f32 v{Q_+k}, v{P_+2*k}, v{P_+2*k+1}') for k in range(8)]
        ops += [V(f'v_cvt_pk_bf16_f32 v{Q_+8+k}, v{Q_+16+2*k}, v{Q_+16+2*k+1}') for k in range(8)]
        sts = []
        for t in range(4):
            a, b = swapst(Q_ + 4*t, vL16, 61, t*1024)
            ops.append(a); sts.append(b[1])
        return ops, sts
    gate = lambda n: [('gate', first[n] + 2)]
    done = lambda n: [('done', first[n])]
    fh = lambda t: fino(P_ + 8*t, Q_ + 8*t, sH0, t*1024)
    EQ = (gate(3) + sig(P_) + sig(P_+8)[:12] + gate(4) + fh(0) + sig(P_+8)[12:] + fh(1) + done(5) + sig(P_+16) + fh(2) + sig(P_+24) + fh(3) + done(7)
          + gate(5) + sig(S_) + fino(S_, S_+8, sHM, 0) + gate(7) + epi_QKV() + done(9) + gate(9) + sum([sig(hi(t)) for t in range(4)], []))
    rates = {3: R1, 4: R1, 5: R1, 6: R1, 7: 1.0, 8: 1.0, 9: R2, 10: R2}
    Z = S_ + 12
    tq = []
    def pois():
        p.e(f"""s_lshl_b32 s62, s{sC}, 10
s_add_u32 s62, s62, s{sXN}
s_add_u32 s62, s62, {WS_OF}
s_lshl_b32 s63, s{sC}, 7
s_add_u32 s63, s63, s{sXN}
s_add_u32 s63, s63, {WS_OF + 32768}
v_mov_b32 v{Z}, -1
v_mov_b32 v{Z+1}, -1
v_mov_b32 v{Z+2}, -1
v_mov_b32 v{Z+3}, -1""")
        p.vm(f'buffer_store_dwordx4 v[{Z}:{Z+3}], v{vL16}, s[4:7], s62 offen sc1')
        p.e('s_mov_b64 exec, 0xff')
        p.vm(f'buffer_store_dwordx4 v[{Z}:{Z+3}], v{vL16}, s[4:7], s63 offen sc1')
        p.e('s_mov_b64 exec, -1')
    BAR = {0: ([0, 2], []), 3: ([], [4, 5, 6]), 4: ([4], [7]), 5: ([5, 6], [8]), 7: ([7, 8], [9, 10]), 9: ([9, 10], [])}
    extra = {0: ([('fn', pois)] if poison else []) + [('fn', lambda: itok.__setitem__(0, fin()))], 9: common()}
    if ct & 2: extra[7] = [('fn', lambda: code_touch(p, vDF, vDF, sW, 8))]
    if touch:
        pre = f"""s_lshr_b32 s62, s2, 3
s_lshl_b32 s62, s62, 3
s_add_u32 s62, s62, s{sW}
s_mul_i32 s62, s62, {41*128}
s_lshr_b32 s63, s{sQ}, 1
s_mul_i32 s63, s63, {1152*1152}
s_add_u32 s62, s62, s63
v_lshlrev_b32 v{R_}, 3, v{vL16}"""
        tl = lambda i: ('fn', lambda: (p.e(f's_mov_b64 exec, 0x3fff'), dtok.__setitem__('touch', p.vm(f'buffer_load_dword v{R_+1}, v{R_}, s[16:19], s62 offen offset:{i*14*128}')), p.e('s_mov_b64 exec, -1')))
        pre2 = f"""s_mul_i32 s62, s{sT}, {9*9216}
s_add_u32 s62, s62, s{sCol}
v_mul_u32_u24 v{R_}, {9216//16}, v{vL16}"""
        t2 = lambda sr: ('fn', lambda: (p.e(f's_mov_b64 exec, 0x1ff'), dtok.__setitem__('touch', p.vm(f'buffer_load_dword v{R_+1}, v{R_}, s[{sr}:{sr+3}], s62 offen offset:128')), p.e('s_mov_b64 exec, -1')))
        early = []
        allt = [('s', pre2, 4), t2(8), t2(12), ('s', pre, 4), tl(0), tl(1), tl(2)]
        if TU >= 0: extra[TU] = extra.get(TU, []) + allt
        t7 = lambda i: ('fn', lambda: (p.e(f's_mov_b64 exec, 0x7f'), dtok.__setitem__('touch', p.vm(f'buffer_load_dword v{R_+1}, v{R_}, s[16:19], s29 offen offset:{i*7*128 % 3584}')), p.e('s_mov_b64 exec, -1')))
        if TU == -4:
            if TQ[0]: tq += [(TQ[0], [('s', pre2, 4), t2(8)]), (TQ[0] + TQ[2], [('s', pre2, 4), t2(12)])]
            for i in range(6):
                tq.append((TQ[1] + i*TQ[2], ([('s', pre + '\ns_mov_b32 s29, s62', 4)] if i == 0 else [('s', 's_add_u32 s29, s29, 3584', 4)] if i == 4 else []) + [t7(i)]))
    xq = xops(XD, 18)
    ta = [8]
    import copy
    st = dict(rtok={}, mq=[], seen=set(), eq=EQ, credit=0.0, xt=0)
    def boundary(n):
        mq = st['mq']
        if n in BAR:
            need, go = BAR[n]
            while any(o[0] == 'dma' and o[1] in need for o in mq): do_op(mq.pop(0))
            tok = max([dtok[m] for m in need] + [0])
            if n == 7: tok = max(tok, dtok.get('touch', 0))
            if n == 9: tok = max(tok, stok[0])
            if n == 3:
                if EP:
                    p.wait(vm=dtok['pb'])
                    p.e(f's_cmp_lg_u32 s{sW}, 0\ns_cbranch_scc1 POLLB_ok')
                else: p.e(f's_cmp_lg_u32 s{sW}, 0\ns_cbranch_scc1 POLLB_ok\nv_and_b32 v{Z+2}, 0xf0, v{vL16}\nbuffer_load_dword v{Z+3}, v{Z+2}, s[36:39], 0 offen sc1\ns_waitcnt vmcnt(0)')
                spin(p, Z+2, Z+3, 's[36:39]', 32, 'POLLB')
            p.wait(vm=tok, lgkm=p.lgkm_issued)
            p.e('s_barrier')
            p.stamp(f'B{n}')
            if n == 0:
                for o in xops(0, XD): do_op(o)
                p.e(base_ops(2, T_))
            if n == 9: publish(p, 1, sW, 0, T_, 'PH1_pub')
            for m in go:
                mq.extend(dma_unit(m))
                if m == 4 and touch: mq.extend(early)
        if n != 2: p.e(base_ops(n, TB))
        mq.extend(extra.get(n, []))
    def issue_read(P, u):
        if P >= N: return
        a, off = pairs[P]['rd'][u]
        d = F_ + 4*(P % 4) + 2*u
        st['rtok'][P] = p.ds(f'ds_read_b64_tr_b16 v[{d}:{d+1}], v{a} offset:{off}')
    def run(P0, P1, xgap=None):
        rtok, mq, seen, eq = st['rtok'], st['mq'], st['seen'], st['eq']
        for P in range(P0, P1):
            pr = pairs[P]
            assert not any(o[0] == 'done' and o[1] <= P for o in eq), (P, pr)
            rate = rates.get(pr['n'], 0)
            p.stamp(f'P{P}')
            bnd = P + 3 < N and first[pairs[P+3]['n']] == P + 3
            if P == ARRB:
                assert itok[0] > max(dtok[1], dtok[3])
                p.wait(vm=itok[0])
                p.e(f's_barrier\ns_cmp_lg_u32 s{sW}, 0\ns_cbranch_scc1 PH1_b\nv_mov_b32 v{Z}, 1\ns_lshl_b32 s62, s{sR}, 5\ns_mov_b64 exec, 1\n'
                    f'buffer_atomic_add v{Z}, off, s[36:39], s62 offset:16 sc1\ns_mov_b64 exec, -1')
                p.label('PH1_b')
            if P in XB: p.e('s_barrier')
            if EP and P == EP:
                p.e(f's_cmp_lg_u32 s{sW}, 0\ns_cbranch_scc1 POLLB_pre\nv_and_b32 v{Z+2}, 0xf0, v{vL16}')
                dtok['pb'] = p.vm_opt(f'buffer_load_dword v{Z+3}, v{Z+2}, s[36:39], 0 offen sc1')
                p.label('POLLB_pre')
                if TU == -3: mq.extend(allt)
            if P in PR: p.e(f's_setprio {PR[P]}')
            if prog and P > first[3] - 3:
                nb = min([first[n] - 3 for n in BAR if first[n] - 3 > P] + [N]); pb = max([first[n] - 3 for n in BAR if first[n] - 3 <= P] + [0])
                lv = lambda x: (x - pb)*prog // (nb - pb)
                if P == pb + 1 or (P > pb + 1 and lv(P) != lv(P-1)): p.e(f's_setprio {prog - 1 - lv(P)}')
            def mf(tt):
                xid = (tt, pr['kp'])
                p.wait(lgkm=rtok[P], vm=xtok[xid])
                fa = vr(F_ + 4*(P % 4), 4)
                a, b = (X(*xid), fa) if pr['swap'] else (fa, X(*xid))
                d = vr(pr['acc'] + 4*tt, 4)
                key = (pr['g'], d)
                p.e(f'v_mfma_f32_16x16x32_bf16 {d}, {a}, {b}, {d if key in seen else "0"}')
                seen.add(key)
            post = []
            G = 2*P
            st['credit'] = min(st['credit'] + rate, 2.9)
            while eq and (eq[0][0] == 'done' or (eq[0][0] == 'gate' and P >= eq[0][1])): eq.pop(0)
            if eq and eq[0][0] == 'gate': st['credit'] = 0
            if xq and G >= st['xt']:
                while xq[0][0] == 's': post.append(xq.pop(0))
                post.append(xq.pop(0)); st['xt'] += XG
            elif eq and eq[0][0] == 'st': post.append(eq.pop(0)); st['lst'] = P
            elif mq and G >= ta[0] and not bnd:
                while mq and mq[0][0] == 's': post.append(mq.pop(0))
                if mq: post.append(mq.pop(0))
                o = post[-1]
                ta[0] = G + (xgap or (GAP.get(o[1], cF) if o[0] == 'dma' else cF))
            elif tq and P >= tq[0][0] and not bnd:
                post += tq.pop(0)[1]
            else:
                for _ in range(2):
                    if st['credit'] >= 0.999 and eq and eq[0][0] == 'v':
                        st['credit'] -= 1.0; c = 0
                        while eq and eq[0][0] == 'v' and c < 8:
                            o = eq.pop(0); c += o[2]
                            if o[1] and 'e' not in abl: post.append(o)
            mf(0)
            if not bnd:
                issue_read(P+3, 0)
                if post: issue_read(P+3, 1)
            mf(1)
            if bnd: boundary(pairs[P+3]['n']); issue_read(P+3, 0); issue_read(P+3, 1)
            elif not post: issue_read(P+3, 1)
            if P + 1 < N:
                nx = (1, pairs[P+1]['kp'])
                while nx not in xtok and not any(o[0] == 'x' and o[1] == nx for o in post): do_op(xq.pop(0))
                p.wait(lgkm=rtok[P+1], vm=xtok.get(nx))
            for o in post: do_op(o)
    def tail():
        while st['mq']: do_op(st['mq'].pop(0))
        for o in st['eq']: do_op(o)
        if prog: p.e('s_setprio 0')
        p.stamp('tail')
        p.e('s_nop 7')
        ops, sts = epi_U2()
        for o in ops: do_op(o)
        return sts
    if touch and TU == -1:
        for o in allt: do_op(o)
    if touch and TU == -2:
        p.e(f'''s_sub_u32 s63, s{sW}, 1
s_cmp_gt_u32 s63, 2
s_cbranch_scc1 PH1_nt
s_lshr_b32 s62, s2, 3
s_mul_i32 s62, s62, 3
s_add_u32 s62, s62, s63
s_mul_i32 s62, s62, {108*128}
s_lshr_b32 s60, s{sQ}, 1
s_mul_i32 s60, s60, {1152*1152}
s_add_u32 s62, s62, s60
v_lshlrev_b32 v{R_}, 3, v{vL16}
s_mul_i32 s60, s{sR}, 3
s_add_u32 s60, s60, s63
s_mul_i32 s60, s60, {24*9216}
s_add_u32 s60, s60, s{sCol}
v_mul_u32_u24 v{R_+2}, {9216//16}, v{vL16}
s_mov_b64 exec, 0xffffff
buffer_load_dword v{R_+1}, v{R_+2}, s[8:11], s60 offen offset:128
buffer_load_dword v{R_+1}, v{R_+2}, s[12:15], s60 offen offset:128
s_mov_b32 exec_lo, -1
s_mov_b32 exec_hi, 0x3fffff
buffer_load_dword v{R_+1}, v{R_}, s[16:19], s62 offen
s_add_u32 s62, s62, {54*128}
buffer_load_dword v{R_+1}, v{R_}, s[16:19], s62 offen
s_mov_b64 exec, -1''')
        p.label('PH1_nt')
    p.e(f's_cmp_lg_u32 s{sW}, 0\ns_cbranch_scc1 POLLA_ok\nbuffer_load_dword v43, v42, s[36:39], 0 offen sc1\ns_waitcnt vmcnt(0)')
    spin(p, 42, 43, 's[36:39]', 32, 'POLLA')
    if touch and TU == -2: p.vm_issued += 0
    boundary(0)
    for P in range(3):
        issue_read(P, 0); issue_read(P, 1)
    PM = first[10]
    run(0, PM)
    assert not st['mq']
    p.e(f's_cmp_ge_u32 s{sW}, 4\ns_cbranch_scc1 PH_role1')
    save = (copy.deepcopy(st), p.lgkm_issued, p.lgkm_done, p.vm_issued, p.vm_done, ta[0], list(getattr(p, 'stamps', [])))
    for ri, (pre, body) in enumerate(roles):
        if ri == 1:
            p.label('PH_role1')
            st.clear(); st.update(save[0])
            p.lgkm_issued, p.lgkm_done, p.vm_issued, p.vm_done, ta[0] = save[1:6]
            if Prog.STAMPS: p.stamps = save[6]
        st['mq'].extend(pre())
        run(PM, N, xgap=4)
        body(tail())
    return sW

_ct = [0]
def code_touch(p, vtmp, vdst, swave, nw, vL16=248):
    _ct[0] += 1
    per = 24 // nw
    p.e(f'''s_getpc_b64 s[96:97]
CT_pc{_ct[0]}:
s_sub_u32 s96, s96, CT_pc{_ct[0]}-CODE_BEGIN
s_subb_u32 s97, s97, 0
s_mov_b32 s98, CODE_END-CODE_BEGIN
s_mov_b32 s99, 0x20000
s_lshr_b32 s62, s2, 3
s_mul_i32 s62, s62, {nw}
s_add_u32 s62, s62, s{swave}
s_mul_i32 s62, s62, {per*128}
v_lshlrev_b32 v{vtmp}, 3, v{vL16}
v_add_u32 v{vtmp}, s62, v{vtmp}
s_mov_b64 exec, {(1 << per) - 1}''')
    p.vm(f'buffer_load_dword v{vdst}, v{vtmp}, s[96:99], 0 offen')
    p.e('s_mov_b64 exec, -1')

def publish(p, val, sW, wave, vt, lab):
    p.e(f"""
s_cmp_lg_u32 s{sW}, {wave}
s_cbranch_scc1 {lab}
s_lshl_b32 s62, s2, 7
s_add_u32 s62, s62, {WS_FL}
v_mov_b32 v{vt}, {val}
s_mov_b64 exec, 1
buffer_store_dword v{vt}, off, s[4:7], s62 sc1
s_mov_b64 exec, -1
""")
    p.label(lab)
```

```python
from ph1 import *

KV_RING = 20
L_KV = 102400
NSLOT = 5
SLOT = 20480
L_WD = 0
PK_LDS = 163840
vL16 = 248
SPIN_MAX = 1 << 20
PUB2 = 5
PUBK = [6]
INV = [True]
TAG = [True]
ROT = [True]
PACE = [1]
WOT = [True]
ATT = [None, None, 0]
EB = [True]
CT = [7]
KVLA = [9]
ODEPTH = [14]

L_SY = L_KV + 4*3072 + 2048 + 20*16
NKV0 = 4
KVAT = {}
KVCOV = {}
def kv_plan(c0, slope):
    KVAT.clear(); KVCOV.clear()
    for j in range(2, 16):
        KVAT[j] = -1 if j < NKV0 else 0 if j < 5 else min(17, max(1, int(round(c0 + slope*(j - 5)))))
        KVCOV[j] = min(KVAT[j] + 2, 18)

def lds_check(p, vr2, needA, needG, vaddr, lab):
    cmp_ = ''
    if needA: cmp_ += f'v_cmp_gt_u32 vcc, {needA}, v{vr2}\n'
    if needG: cmp_ += f'v_cmp_gt_u32 {"s[62:63]" if needA else "vcc"}, {needG}, v{vr2+1}\n'
    if needA and needG: cmp_ += 's_or_b64 vcc, vcc, s[62:63]\n'
    p.e(cmp_ + f's_cbranch_vccz {lab}_ok')
    p.label(f'{lab}_spin')
    p.e(f'ds_read2_b32 v[{vr2}:{vr2+1}], v{vaddr} offset1:4\ns_waitcnt lgkmcnt(0)\n' + cmp_ + f's_cbranch_vccnz {lab}_spin')
    p.label(f'{lab}_ok')

def plan(at, g0):
    a = [0]
    for n in at: a.append(a[-1] + n)
    assert a[-1] == 64 and g0 + 18 <= len(at), a
    return a

def lines_ops(txt, per=2):
    ls = [l for l in txt.strip().split('\n') if l.strip()]
    return [('v', '\n'.join(ls[i:i+per]), 4) for i in range(0, len(ls), per)]

def poll(p, vaddr, vdst, stage, lab, tok):
    p.wait(vm=tok)
    p.e(f"""
v_cmp_gt_u32 vcc, {stage}, v{vdst}
s_cbranch_vccz {lab}_ok
s_mov_b32 s63, {SPIN_MAX}
""")
    p.label(f'{lab}_spin')
    p.e(f"""
s_sleep 2
buffer_load_dword v{vdst}, v{vaddr}, s[4:7], 0 offen sc1
s_waitcnt vmcnt(0)
v_cmp_gt_u32 vcc, {stage}, v{vdst}
s_sub_u32 s63, s63, 1
s_cbranch_scc1 {lab}_ok
s_cbranch_vccnz {lab}_spin
""")
    p.label(f'{lab}_ok')
    if INV[0]: p.e('buffer_inv sc1')

def role_att(p, a, force_fallback, SF, out):
    S0, S1, O0, O1, P0, P1 = 8, 24, 40, 56, 72, 80
    K_, V1, V0a = 88, 96, 104
    KX = 112
    C_ = 116
    Q0, Q1, QX0, QX1 = 208, 212, 216, 218
    vK, vV, vX = 220, 221, 222
    t0, t1, t2, t3, t4, t5 = 223, 251, 252, 253, 254, 255
    sW, sH, sR = 20, 21, 22
    sT, sG = 36, 37
    qt = [0]
    def pre():
        ops = lines_ops(f"""
s_lshl_b32 s{sT}, s{sR}, 3
s_lshl_b32 s38, s{sW}, 1
s_add_u32 s{sT}, s{sT}, s38
s_mul_i32 s{sG}, s{sH}, {64*3072}
s_add_u32 s{sG}, s{sG}, {WS_KV - L_KV}
s_lshl_b32 s38, s{sH}, 6
s_add_u32 s38, s38, s{sT}
s_lshl_b32 s39, s38, 10
s_add_u32 s39, s39, {WS_QF}
s_mul_i32 s38, s38, 3072
s_add_u32 s38, s38, {WS_KV}
v_bfe_u32 v{t1}, v{vL16}, 9, 1
v_bfe_u32 v{t2}, v{vL16}, 8, 1
v_bfe_u32 v{t3}, v{vL16}, 6, 1
v_bfe_u32 v{t4}, v{vL16}, 7, 1
v_bfe_u32 v{t5}, v{vL16}, 4, 2
v_lshlrev_b32 v{t5}, 1, v{t5}
v_lshl_add_u32 v{t5}, v{t3}, 9, v{t5}
v_lshl_add_u32 v{t5}, v{t1}, 4, v{t5}
v_lshl_add_u32 v{t0}, v{t2}, 3, v{t5}
v_lshl_add_u32 v{t0}, v{t4}, 10, v{t0}
v_add_u32 v{t0}, {1024 + 20*16}, v{t0}
""", 3)
        def q():
            p.vm(f'buffer_load_dwordx4 v[{Q0}:{Q0+3}], v{vL16}, s[4:7], s39 offen sc1')
            p.vm(f'buffer_load_ushort v{QX0}, v{t0}, s[4:7], s38 offen sc1')
            p.vm(f'buffer_load_dwordx4 v[{Q1}:{Q1+3}], v{vL16}, s[4:7], s39 offen offset:1024 sc1')
            qt[0] = p.vm(f'buffer_load_ushort v{QX1}, v{t0}, s[4:7], s38 offen offset:3072 sc1')
        ops.append(('fn', q))
        ops += lines_ops(f"""
v_lshl_add_u32 v{vX}, v{t4}, 3, v{t5}
v_lshl_add_u32 v{vX}, v{t2}, 10, v{vX}
v_lshl_add_u32 v{vX}, v{t3}, 5, v{vX}
v_lshl_add_u32 v{vX}, v{t2}, 6, v{vX}
v_add_u32 v{vX}, {L_KV + 1024 + 24*16}, v{vX}
v_bfe_u32 v{t2}, v{vL16}, 4, 5
v_cmp_eq_u32 vcc, 22, v{t2}
v_min_u32 v{t3}, 19, v{t2}
v_add_u32 v{vK}, {L_KV}, v{vL16}
v_cndmask_b32 v{t2}, v{t3}, v{t2}, vcc
v_lshlrev_b32 v{t2}, 4, v{t2}
v_lshl_add_u32 v{vV}, v{t1}, 9, v{t2}
v_add_u32 v{vV}, {L_KV}, v{vV}
v_mov_b32 v{QX0+1}, 0
v_mov_b32 v{QX1+1}, 0
""", 2)
        return ops
    def body(sts):
        stok = [0]
        p.e(f'v_mov_b32 v{KX+1}, 0\nv_mov_b32 v{KX+3}, 0')
        Kb = lambda j: K_ + 4*(j & 1)
        Xb = lambda j: KX + 2*(j & 1)
        Vb = lambda j, u: (V1 if u else V0a) + 4*(j & 1)
        def rd(i, part):
            if i > 63: return
            if part == 'k':
                if i == 0:
                    p.wait(vm=qt[0])
                    p.e('s_barrier')
                    p.stamp('g0')
                if i % 3 == 2 and sts: stok[0] = p.vm(sts.pop(0))
                if i % 4 == 0 and i >= 8: lds_check(p, vSy, 0, KVCOV[i//4], vSa, f'ATT_c{i}')
                if i % 4 == 1 and 5 <= i <= 45:
                    if i == 17: p.wait(vm=stok[0])
                    p.e('s_mov_b64 exec, 1'); p.ds(f'ds_add_u32 v{vSw}, v{vOne}'); p.e('s_mov_b64 exec, -1')
                if i % 8 == 0 and i: p.stamp(f'g{i//8*2}')
            off = ((i + 4) % KV_RING)*3072
            if part == 'x': p.ds(f'ds_read_u16 v{Xb(i)}, v{vX} offset:{off}')
            elif part == 'k': p.ds(f'ds_read_b128 {vr(Kb(i),4)}, v{vK} offset:{off}')
            elif part == 'v0': p.ds(f'ds_read_b128 {vr(Vb(i,0),4)}, v{vV} offset:{off+1024}')
            else: p.ds(f'ds_read_b128 {vr(Vb(i,1),4)}, v{vV} offset:{off+2048}')
        def qk2(S, QX, j): p.e(f'v_mfma_f32_32x32x8bf16_1k {vr(S,16)}, {vr(Xb(j),2)}, {vr(QX,2)}, 0')
        def qk1(S, Q, j): p.e(f'v_mfma_f32_32x32x16_bf16 {vr(S,16)}, {vr(Kb(j),4)}, {vr(Q,4)}, {vr(S,16)}')
        def pv(O, j, u, P): p.e(f'v_mfma_f32_32x32x16_bf16 {vr(O,16)}, {vr(Vb(j,u),4)}, {vr(P+4*u,4)}, {"0" if (j == 0 and u == 0) else vr(O,16)}')
        vSy, vSa, vSw, vOne = 132, 134, 135, 136
        p.e(f'v_bfe_u32 v{vSa}, v{vL16}, 4, 2\nv_lshlrev_b32 v{vSa}, 2, v{vSa}\nv_add_u32 v{vSa}, {L_SY}, v{vSa}\n'
            f's_lshl_b32 s42, s{sW}, 2\ns_add_u32 s42, s42, {L_SY}\nv_mov_b32 v{vSw}, s42\nv_mov_b32 v{vOne}, 1')
        rd(0, 'k'); rd(0, 'x'); rd(1, 'k'); rd(1, 'x'); rd(0, 'v0')
        p.wait(lgkm=p.lgkm_issued - 3)
        qk2(S0, QX0, 0); qk1(S0, Q0, 0)
        p.e('s_nop 7\ns_nop 3')
        for i in range(64):
            order, gaps = ATT[0] if i < ATT[2] else ATT[1]
            for h in range(2):
                S, P, So, Po, Oo, Q, QX = (S0, P0, S1, P1, O1, Q1, QX1) if h == 0 else (S1, P1, S0, P0, O0, Q0, QX0)
                jv, jk = (i - 1, i) if h == 0 else (i, i + 1)
                Vq = [f'v_exp_f32 v{S+k}, v{S+k}' for k in range(8)] + [f'v_cvt_pk_bf16_f32 v{P+k}, v{S+2*k}, v{S+2*k+1}' for k in range(4)]
                Vq += [f'v_exp_f32 v{S+k}, v{S+k}' for k in range(8, 16)] + [f'v_cvt_pk_bf16_f32 v{P+k}, v{S+2*k}, v{S+2*k+1}' for k in range(4, 8)]
                sy = (lambda: p.ds(f'ds_read2_b32 v[{vSy}:{vSy+1}], v{vSa} offset1:4')) if (i % 4 == 2 and 6 <= i < 60) else (lambda: None)
                sh = [lambda: rd(i, 'v1'), sy, lambda: p.wait(lgkm=p.lgkm_issued)] if h == 0 else [lambda: rd(i+2, 'k'), lambda: rd(i+2, 'x'), lambda: rd(i+1, 'v0')]
                for mi, m in enumerate(order):
                    if m == 'x':
                        if jk < 64: qk2(So, QX, jk)
                    else:
                        if m == 'k':
                            if jk < 64: qk1(So, Q, jk)
                        elif jv >= 0: pv(Oo, jv, int(m), Po)
                        sh.pop(0)()
                    for _ in range(gaps[mi] if mi < 3 else 99):
                        if Vq: p.e(Vq.pop(0))
        pv(O1, 63, 0, P1)
        p.e('s_nop 0')
        pv(O1, 63, 1, P1)
        p.e(f"""
s_mul_i32 s42, s{sT}, {36*1024}
s_lshl_b32 s43, s{sH}, 10
s_add_u32 s43, s43, s42
s_add_u32 s43, s43, {WS_OF}
s_lshl_b32 s44, s{sH}, 7
s_add_u32 s44, s44, s42
s_add_u32 s44, s44, {WS_OF + 32*1024}
s_add_u32 s45, s43, {36*1024}
v_bfe_u32 v3, v{vL16}, 9, 1
v_mul_u32_u24 v3, {36*1024}, v3
v_bfe_u32 v4, v{vL16}, 4, 5
v_lshl_add_u32 v3, v4, 2, v3
v_mov_b32 v1, {hex(f2u(2.0**-64))}
v_mov_b32 v2, {hex(f2u(2.0**64))}
v_cmp_nge_f32 vcc, v{O0+10}, v1
v_cmp_nle_f32 s[48:49], v{O0+10}, v2
s_or_b64 vcc, vcc, s[48:49]
v_cmp_nge_f32 s[48:49], v{O1+10}, v1
s_or_b64 vcc, vcc, s[48:49]
v_cmp_nle_f32 s[48:49], v{O1+10}, v2
s_or_b64 vcc, vcc, s[48:49]
""")
        if force_fallback: p.e('s_branch ATT_fallback')
        p.e('s_cbranch_vccnz ATT_fallback')
        p.label('ATT_finish')
        for nm in ('rg19', 'rdpfl', 'rgdone', 'rofl'): p.stamp(nm, True)
        p.e(f'v_rcp_f32 v1, v{O0+10}\nv_rcp_f32 v2, v{O1+10}\ns_nop 0')
        for O, P, r in ((O0, P0, 1), (O1, P1, 2)):
            for k in range(10): p.e(f'v_mul_f32 v{O+k}, v{O+k}, v{r}')
            for k in range(5): p.e(f'v_cvt_pk_bf16_f32 v{P+k}, v{O+2*k}, v{O+2*k+1}')
        p.e(f's_nop 1\nv_permlane32_swap_b32 v{P0+4}, v{P1+4}')
        if TAG[0]:
            for r in list(range(P0, P0+5)) + list(range(P1, P1+4)): p.e(f'v_min_u32 v{r}, -2, v{r}')
        p.e(f"""
buffer_store_dwordx4 v[{P0}:{P0+3}], v{vL16}, s[4:7], s43 offen sc1
buffer_store_dwordx4 v[{P1}:{P1+3}], v{vL16}, s[4:7], s45 offen sc1
buffer_store_dword v{P0+4}, v3, s[4:7], s44 offen sc1
""")
        if not TAG[0]: p.e(f"""
s_lshl_b32 s42, s2, 7
s_lshl_b32 s43, s{sW}, 2
s_add_u32 s42, s42, s43
s_add_u32 s42, s42, {WS_FL + 4}
v_mov_b32 v1, 1
s_mov_b64 exec, 1
s_waitcnt vmcnt(0)
buffer_store_dword v1, off, s[4:7], s42 sc1
s_mov_b64 exec, -1
""")
        if EB[0]: p.e('s_barrier')
        p.e('s_branch PK_end')
        f = Prog()
        f.label('ATT_fallback')
        for t, (O, Q, QX) in enumerate(((O0, Q0, QX0), (O1, Q1, QX1))):
            f.e(f'v_mov_b32 v1, 0xff800000\ns_mov_b32 s38, s{sG}\ns_mov_b32 s39, 64')
            f.label(f'ATT_fb1_{t}')
            f.e(f"""
buffer_load_dwordx4 {vr(K_,4)}, v{vK}, s[4:7], s38 offen sc1
buffer_load_ushort v{KX}, v{vX}, s[4:7], s38 offen sc1
s_waitcnt vmcnt(0)
v_mfma_f32_32x32x16_bf16 {vr(S0,16)}, {vr(K_,4)}, {vr(Q,4)}, 0
v_mfma_f32_32x32x8bf16_1k {vr(S0,16)}, {vr(KX,2)}, {vr(QX,2)}, {vr(S0,16)}
s_nop 7
s_nop 7
""")
            for k in range(8): f.e(f'v_max3_f32 v1, v1, v{S0+2*k}, v{S0+2*k+1}')
            f.e(f"""
s_add_u32 s38, s38, 3072
s_sub_u32 s39, s39, 1
s_cmp_lg_u32 s39, 0
s_cbranch_scc1 ATT_fb1_{t}
v_mov_b32 v2, v1
s_nop 1
v_permlane32_swap_b32 v1, v2
s_nop 1
v_max_f32 v1, v1, v2
""")
            for k in range(16): f.e(f'v_sub_f32 v{C_+k}, 0, v1\nv_mov_b32 v{O+k}, 0')
            f.e(f's_mov_b32 s38, s{sG}\ns_mov_b32 s39, 64')
            f.label(f'ATT_fb2_{t}')
            f.e(f"""
buffer_load_dwordx4 {vr(K_,4)}, v{vK}, s[4:7], s38 offen sc1
buffer_load_ushort v{KX}, v{vX}, s[4:7], s38 offen sc1
buffer_load_dwordx4 {vr(V0a,4)}, v{vV}, s[4:7], s38 offen offset:1024 sc1
buffer_load_dwordx4 {vr(V1,4)}, v{vV}, s[4:7], s38 offen offset:2048 sc1
s_waitcnt vmcnt(0)
v_mfma_f32_32x32x16_bf16 {vr(S0,16)}, {vr(K_,4)}, {vr(Q,4)}, {vr(C_,16)}
v_mfma_f32_32x32x8bf16_1k {vr(S0,16)}, {vr(KX,2)}, {vr(QX,2)}, {vr(S0,16)}
s_nop 7
s_nop 7
""")
            for k in range(16): f.e(f'v_exp_f32 v{S0+k}, v{S0+k}')
            f.e('s_nop 0')
            for k in range(8): f.e(f'v_cvt_pk_bf16_f32 v{P0+k}, v{S0+2*k}, v{S0+2*k+1}')
            f.e(f"""
s_nop 1
v_mfma_f32_32x32x16_bf16 {vr(O,16)}, {vr(V0a,4)}, {vr(P0,4)}, {vr(O,16)}
v_mfma_f32_32x32x16_bf16 {vr(O,16)}, {vr(V1,4)}, {vr(P0+4,4)}, {vr(O,16)}
s_add_u32 s38, s38, 3072
s_sub_u32 s39, s39, 1
s_cmp_lg_u32 s39, 0
s_cbranch_scc1 ATT_fb2_{t}
s_nop 7
s_nop 7
""")
        f.e('s_branch ATT_finish')
        out.append(f)
    return pre, body

ORDER = [(0, l) for l in (0, 2, 4, 6, 8)] + [(1, l) for l in (0, 2, 4, 6, 8)] + [(0, l) for l in (1, 3, 5, 7)] + [(1, l) for l in (1, 3, 5, 7)]

def WBASE(ci):
    return {14: 86016, 15: 0, 16: 16384, 17: 32768}.get(ci, (ci % NSLOT)*SLOT)

def role_down(p, a, g0, SF):
    NP = len(a) - 1
    ACC = 8
    WF = 88
    HF = 108; NH = 16
    vP, vPd = 212, 213
    t0, t1, t2 = 210, 211, 209
    vT, vTS = 196, 204
    LF = '' if INV[0] else ' sc1'
    vD, vDS = 251, 255
    sW8, sC, sQ, sCB = 20, 21, 23, 24
    sW, sT, sKS = 36, 37, 38
    sWA, sWB, sHA, sHB, sSh, sW4, sW1, sSo, sKV, sW3, sHo = 39, 42, 43, 44, 45, 46, 47, 48, 49, 52, 53
    sR2 = 40
    sLN = 8
    LREG = {0: 8, 2: 9, 4: 10, 6: 11, 8: 12, 1: 13, 3: 14, 5: 15, 7: 25}
    LROT = {0: 4, 2: 6, 4: 8, 6: 0, 8: 2, 1: 5, 3: 7, 5: 1, 7: 3} if ROT[0] else {l: l for l in range(9)}
    dt = {}; ht = {}; kt = {}; pt = [0]
    hp = [False]
    def do(o):
        n0 = len(p.lines)
        do_(o)
        if hp[0] and any(l.startswith('v_') for l in p.lines[n0:]):
            p.lines.insert(n0, 's_setprio 2'); p.e('s_setprio 0')
    def do_(o):
        if o[0] in ('s', 'v'): p.e(o[1])
        elif o[0] == 'fn': o[1]()
        else: {'dma': dt, 'h': ht, 'kv': kt}[o[0]][o[1]] = p.vm(o[2])
    def kv_ops(j):
        ops = [('s', f's_add_u32 m0, s{sW3}, {L_KV + ((4*j + 4) % KV_RING)*3072}\ns_add_u32 s{sSo}, s{sR2}, {j}\ns_and_b32 s{sSo}, s{sSo}, 15\n'
                     f's_mul_i32 s{sSo}, s{sSo}, 12288\ns_add_u32 s{sSo}, s{sSo}, s{sKV}')]
        ops += [('kv', j, f'buffer_load_dwordx4 v{vL16}, s[4:7], s{sSo} offen offset:{1024*i}{LF} lds') for i in range(3)]
        if j % 5 == 0: ops[-1] = ('kv', j, f's_mov_b32 exec_lo, {hex(0xffffffff ^ (3 << 20))}\n' + ops[-1][2] + '\ns_mov_b32 exec_lo, -1')
        return ops
    def mem_ops(ci):
        sl = WBASE(ci)
        b, l = ORDER[ci]
        ops = [('s', f's_add_u32 m0, s{sW4}, {sl}\ns_mul_i32 s{sSo}, s{LREG[l]}, {64*1152}\ns_add_u32 s{sSo}, s{sSo}, s{sWB if b else sWA}')]
        for j in range(4):
            ops.append(('dma', ci, f'buffer_load_dwordx4 v{vD+j}, s[16:19], s{sSo} offen offset:{1024*j} lds'))
        if b == 0:
            ops.append(('s', f's_add_u32 m0, s{sW1}, {sl + 16384}\ns_mul_i32 s{sSo}, s{LREG[l]}, {64*1152}\ns_add_u32 s{sSo}, s{sSo}, s{sSh}'))
            ops.append(('dma', ci, f'buffer_load_dwordx4 v{vDS}, s[16:19], s{sSo} offen lds'))
        return ops
    def h_ops(ci):
        b, l = ORDER[ci]
        ops = []
        if ci == 10:
            ops += [('fn', lambda: pt.__setitem__(0, p.vm(f'buffer_load_dword v{vPd}, v{vP}, s[4:7], 0 offen sc1'))),
                    ('fn', lambda: None), ('fn', lambda: None), ('fn', lambda: None),
                    ('fn', lambda: poll(p, vP, vPd, 2, 'POLL2', pt[0]))]
        ops.append(('s', f's_lshl_b32 s{sHo}, s{LREG[l]}, 12\ns_add_u32 s{sHo}, s{sHo}, s{sHB if b else sHA}'))
        for j in range(4):
            s = 4*ci + j; d = HF + 4*(s % NH)
            ops.append(('h', s, f'buffer_load_dwordx4 v[{d}:{d+3}], v{vL16}, s[4:7], s{sHo} offen offset:{1024*j}{LF}'))
        return ops
    wrap = lambda ops: [o if o[0] in ('s', 'v', 'fn') else ('fn', (lambda o=o: do(o))) for o in ops]
    def common():
        ops = lines_ops(f"""
s_and_b32 s{sW}, s{sW8}, 3
s_lshr_b32 s{sKS}, s{sQ}, 1
s_and_b32 s55, s{sCB}, 1
s_lshl_b32 s56, s{sKS}, 1
s_add_u32 s57, s56, s55
s_xor_b32 s58, s57, 1
s_lshr_b32 s59, s{sCB}, 1
s_mul_i32 s59, s59, 576
s_mul_i32 s55, s55, 320
s_add_u32 s55, s55, s59
s_mul_i32 s{sWA}, s57, {576*1152}
s_add_u32 s{sSh}, s{sWA}, s59
s_add_u32 s{sSh}, s{sSh}, 256
s_add_u32 s{sWA}, s{sWA}, s55
s_mul_i32 s{sWB}, s58, {576*1152}
s_add_u32 s{sWB}, s{sWB}, s55
s_lshl_b32 s{sW4}, s{sW}, 12
s_lshl_b32 s{sW1}, s{sW}, 10
s_lshl_b32 s55, s{sW}, 4
s_lshl_b32 s{sR2}, s22, {1 if ROT[0] else 8}
""", 10) + [('v', f's_cmp_ge_u32 s{sCB}, 2\n' + '\n'.join(f's_cselect_b32 s{LREG[l]}, {LROT[l]}, {l}' for l in range(9)) +
                     f'\ns_cmp_ge_u32 s{sW8}, 4\ns_cselect_b32 s59, s{LREG[2]}, s{LREG[0]}\ns_cselect_b32 s56, {SLOT}, 0\ns_mul_i32 s59, s59, {64*1152}', 4)] + lines_ops(f"""
v_lshrrev_b32 v{t0}, 8, v{vL16}
v_bfe_u32 v{t1}, v{vL16}, 4, 4
v_lshlrev_b32 v{t2}, 2, v{t0}
v_xor_b32 v{t1}, v{t1}, v{t2}
v_add_u32 v{t0}, s55, v{t0}
v_mul_u32_u24 v{t0}, 1152, v{t0}
v_lshl_add_u32 v{vD}, v{t1}, 4, v{t0}
v_add_u32 v{vD+1}, {4*1152-1024}, v{vD}
v_add_u32 v{vD+2}, {2*(4*1152-1024)}, v{vD}
v_add_u32 v{vD+3}, {3*(4*1152-1024)}, v{vD}
v_lshrrev_b32 v{t0}, 6, v{vL16}
v_add_u32 v{t0}, s55, v{t0}
v_mul_u32_u24 v{t0}, 1152, v{t0}
v_and_b32 v{t1}, 0x30, v{vL16}
v_add_u32 v{vDS}, v{t1}, v{t0}
""", 10)
        assert ORDER[0] == (0, 0) and ORDER[1] == (0, 2) and L_WD == 0
        d = [('s', f's_add_u32 m0, s{sW4}, s56\ns_add_u32 s{sSo}, s{sWA}, s59')]
        d += [('dma', 1, f'buffer_load_dwordx4 v{vD+j}, s[16:19], s{sSo} offen offset:{1024*j} lds') for j in range(4)]
        d += [('s', f's_add_u32 s56, s56, 16384\ns_add_u32 m0, s{sW1}, s56\ns_add_u32 s{sSo}, s{sSh}, s59'),
              ('dma', 1, f'buffer_load_dwordx4 v{vDS}, s[16:19], s{sSo} offen lds')]
        dt[0] = 0
        return ops + wrap(d)
    def pre():
        ops = lines_ops(f"""
s_and_b32 s54, s{sQ}, 1
s_lshl_b32 s54, s54, 3
s_add_u32 s54, s54, s22
v_bfe_u32 v{t0}, v{vL16}, 4, 3
v_lshlrev_b32 v{vP}, 5, v{t0}
s_lshl_b32 s55, s{sCB}, 3
s_add_u32 s55, s55, s{sQ}
v_add_u32 v{vP}, s55, v{vP}
v_and_b32 v{t1}, 3, v{t0}
v_lshrrev_b32 v{t0}, 2, v{t0}
v_lshl_add_u32 v{t0}, v{t1}, 3, v{t0}
s_lshr_b32 s55, s54, 1
s_lshl_b32 s55, s55, 5
s_lshl_b32 s56, s{sKS}, 1
s_add_u32 s55, s55, s56
v_add_u32 v{t0}, s55, v{t0}
v_and_b32 v{t1}, 0x80, v{vL16}
v_cmp_eq_u32 vcc, 0, v{t1}
s_mul_i32 s{sKV}, s{sC}, {64*3072}
s_mul_i32 s{sW3}, s{sW}, 3072
v_cndmask_b32 v{vP}, v{t0}, v{vP}, vcc
v_lshlrev_b32 v{vP}, 7, v{vP}
v_add_u32 v{vP}, {WS_FL}, v{vP}
""", 6)
        ops.append(('fn', lambda: pt.__setitem__(0, p.vm(f'buffer_load_dword v{vPd}, v{vP}, s[4:7], 0 offen sc1'))))
        ops += lines_ops(f"""
s_add_u32 s{sKV}, s{sKV}, s{sW3}
s_add_u32 s{sKV}, s{sKV}, {WS_KV}
s_lshl_b32 s{sT}, s54, 2
s_add_u32 s{sT}, s{sT}, s{sW}
s_mul_i32 s56, s{sT}, {288*1024}
s_add_u32 s56, s56, {WS_H}
s_mul_i32 s{sHA}, s57, {36*1024}
s_add_u32 s{sHA}, s{sHA}, s56
s_mul_i32 s{sHB}, s58, {36*1024}
s_add_u32 s{sHB}, s{sHB}, s56
""", 2)
        ops += [('fn', lambda: None)]*3
        ops.append(('fn', lambda: poll(p, vP, vPd, 1, 'POLL1', pt[0])))
        ops += wrap(sum([kv_ops(j) for j in range(NKV0)], []))
        def zero():
            p.e(f'v_bfe_u32 v{t0}, v{vL16}, 4, 3\nv_lshlrev_b32 v{t0}, 2, v{t0}\nv_add_u32 v{t0}, {L_SY}, v{t0}\nv_mov_b32 v{t1}, 0\ns_mov_b64 exec, 0xff')
            p.ds(f'ds_write_b32 v{t0}, v{t1}'); p.e('s_mov_b64 exec, -1')
        ops.append(('fn', zero))
        return ops
    def body(sts):
        stok = [0]
        mq = h_ops(0) + h_ops(1) + mem_ops(2) + h_ops(2)
        nwd = [3]; hp[0] = True
        vSy, vSa, vSw, vOne = 240, 242, 243, 244
        syt = [0]
        def arrive(k):
            cn = {14: 16, 15: 17}.get(k, min(k, 17))
            js = [j for j in KVCOV if KVCOV[j] == k]
            need = lambda o: (o[0] == 'kv' and o[1] in js) or (o[0] == 'dma' and o[1] <= cn)
            while any(need(o) for o in mq): do(mq.pop(0))
            tok = max([dt[cn]] + [kt[j] for j in js])
            if k == PUB2:
                assert len(stok) == 5, stok
                tok = max(tok, stok[-1])
            p.wait(vm=tok)
            p.e('s_mov_b64 exec, 1'); p.ds(f'ds_add_u32 v{vSw}, v{vOne}'); p.e('s_mov_b64 exec, -1')
        def needs(k):
            js = [j for j in KVAT if KVAT[j] == k]
            return max([j - 4 for j in js if j >= 5] + [4 if k == PUBK[0] else 0]), (k if (k <= 15 or k == 18) else 0)
        def boundary(k):
            nA, nG = needs(k)
            if k and (nA or nG):
                p.wait(lgkm=syt[0])
                p.e('s_setprio 2')
                lds_check(p, vSy, nA, nG, vSa, f'GM_c{k}')
                p.e('s_setprio 0')
            if k % 2 == 0 and 0 < k < 16: p.stamp(f'g{k}')
            if k == PUBK[0]:
                assert k >= PUB2
                p.e('s_setprio 2'); publish(p, 2, sW8, 4, t0, 'PH2_pub'); p.e('s_setprio 0')
            if sts: mq.append(('fn', lambda t=sts.pop(0): stok.append(p.vm(t))))
            for j in sorted(KVAT):
                if KVAT[j] == k: mq.extend(kv_ops(j))
            while nwd[0] < 18 and nwd[0] - NSLOT <= k - 2:
                mq.extend(mem_ops(nwd[0])); nwd[0] += 1
        p.e('s_load_dwordx2 s[28:29], s[0:1], 16\ns_load_dwordx2 s[32:33], s[0:1], 0\ns_load_dwordx2 s[56:57], s[0:1], 56')
        p.wait(vm=kt[1], lgkm=p.lgkm_issued)
        p.e('s_barrier')
        p.stamp('g0')
        p.e('s_setprio 2')
        p.e(f'v_bfe_u32 v{vSa}, v{vL16}, 4, 2\nv_lshlrev_b32 v{vSa}, 2, v{vSa}\nv_add_u32 v{vSa}, {L_SY}, v{vSa}\n'
            f's_lshl_b32 s54, s{sW8}, 2\ns_add_u32 s54, s54, {L_SY}\nv_mov_b32 v{vSw}, s54\nv_mov_b32 v{vOne}, 1')
        for _ in range(10): do(mq.pop(0))
        vXO, vW1, vWx1, vW2, vWx2 = 246, 247, 249, 250, 192
        sDP, sCo, sCs, sXO, sOF = 26, 27, 41, 50, 51
        L_WO1, L_WO2 = 49152, 0
        p.e(f"""
v_lshrrev_b32 v0, 4, v{vL16}
v_lshrrev_b32 v1, 5, v0
v_bfe_u32 v2, v0, 4, 1
v_bfe_u32 v3, v0, 2, 2
v_and_b32 v4, 1, v0
v_bfe_u32 v5, v0, 1, 1
v_lshlrev_b32 v4, 5, v4
v_lshl_add_u32 v4, v2, 4, v4
v_lshl_add_u32 v4, v5, 3, v4
v_lshl_add_u32 v6, v1, 3, v3
v_lshl_add_u32 v7, v6, 8, v4
v_xor_b32 v5, s{sKS}, v3
v_lshl_add_u32 v{vT}, v5, 6, v7
v_xor_b32 v{vT+1}, 64, v{vT}
v_xor_b32 v{vT+2}, 128, v{vT}
v_xor_b32 v{vT+3}, 192, v{vT}
v_lshl_add_u32 v{vTS}, v6, 6, v4
v_add_u32 v{vTS+1}, {3*SLOT}, v{vTS}
v_lshl_add_u32 v6, v1, 2, v3
v_lshl_add_u32 v{vW2}, v6, 6, v4
v_add_u32 v{vW1}, {L_WO1}, v{vW2}
v_mul_u32_u24 v6, 72, v1
v_lshrrev_b32 v5, 1, v3
v_mul_u32_u24 v5, 18, v5
v_and_b32 v7, 1, v3
v_add3_u32 v6, v6, v5, v7
v_add_u32 v6, 16, v6
v_lshl_add_u32 v{vWx2}, v6, 6, v4
v_add_u32 v{vWx1}, {L_WO1}, v{vWx2}
v_and_b32 v5, 31, v0
v_mul_u32_u24 v5, 1152, v5
v_lshl_add_u32 v{vXO}, v1, 5, v5
s_mul_i32 s{sDP}, s{sT}, 20
s_mul_i32 s54, s{sCB}, 5
s_add_u32 s{sDP}, s{sDP}, s54
s_lshl_b32 s{sDP}, s{sDP}, 13
s_add_u32 s{sDP}, s{sDP}, {WS_DP}
s_lshr_b32 s54, s{sCB}, 1
s_mul_i32 s54, s54, 576
s_add_u32 s{sCs}, s54, 256
s_and_b32 s55, s{sCB}, 1
s_mul_i32 s55, s55, 320
s_add_u32 s{sCo}, s54, s55
s_lshl_b32 s55, s{sKS}, 6
s_add_u32 s{sCo}, s{sCo}, s55
s_mul_i32 s{sXO}, s{sT}, {32*1152}
s_mul_i32 s{sOF}, s{sT}, {36*1024}
s_add_u32 s{sOF}, s{sOF}, {WS_OF}
s_waitcnt lgkmcnt(0)
s_mov_b32 s30, {576*576*2}
s_mov_b32 s31, 0x20000
s_mov_b32 s34, {2048*576*2}
s_mov_b32 s35, 0x20000
s_mov_b32 s58, {2048*576*2}
s_mov_b32 s59, 0x20000
""")
        assert L_WD == 0
        for t in range(4): p.e(f'v_add_u32 v{vT+4+t}, {3*SLOT}, v{vT+t}')
        p.e('s_setprio 0')
        rt = {}
        sh = lambda s: ORDER[s//4][0] == 0
        wo = [0]; shtok = [0]
        vTh, vTwo, sFl = 208, 209, 61
        def wo_ops(base, scol):
            ops = []
            for i in range(9):
                ops.append(('s', f's_add_u32 m0, s{sW1}, {base + i*4096}\ns_add_u32 s{sSo}, s{scol}, {i*64*1152}'))
                ops.append(('fn', lambda: wo.__setitem__(0, p.vm(f'buffer_load_dwordx4 v{vDS}, s[28:31], s{sSo} offen lds'))))
            return ops
        def pack(t, q):
            p.e('s_setprio 2')
            for k in range(8): p.e(f'v_cvt_pk_bf16_f32 v{q+k}, v{ACC+16*t+2*k}, v{ACC+16*t+2*k+1}')
            p.e('s_setprio 0')
            if t < 4: pre = f's_xor_b32 s54, s{sKS}, {t}\ns_lshl_b32 s54, s54, 13\ns_add_u32 s54, s54, s{sDP}\ns_add_u32 s54, s54, {t*2048}'
            else: pre = f's_lshl_b32 s54, s{sKS}, 11\ns_add_u32 s54, s54, s{sDP}\ns_add_u32 s54, s54, {4*8192}'
            return [('s', pre)] + [('fn', (lambda hf=hf: p.vm(f'buffer_store_dwordx4 v[{q+4*hf}:{q+4*hf+3}], v{vL16}, s[4:7], s54 offen offset:{hf*1024} sc1'))) for hf in range(2)]
        M = []; first = {}
        for ci in range(14):
            first[len(M)] = ci
            M += [(s, t) for s in range(4*ci, 4*ci+4) for t in range(5 if sh(s) else 4)]
        n14 = len(M)
        tail = [(s, 3) for s in range(56, 68)] + [(s, 2) for s in range(56, 60)] + [(s, 3) for s in range(68, 72)] + [(s, 2) for s in range(60, 72)]
        tail += [(s, 1) for s in range(56, 72)] + [(s, 0) for s in range(56, 72)]
        for k in range(4): first[n14 + 16*k] = 14 + k
        M += tail
        def rd(n):
            if n >= len(M): return
            s, t = M[n]
            if n in first:
                boundary(first[n])
                if first[n] == 15: mq.extend(wo_ops(L_WO1, sCo))
            base = WBASE(s // 4)
            reg, base = (1, base - 3*SLOT) if base >= 3*SLOT else (0, base)
            for u in range(2):
                if t < 4: ad, off = vT + 4*reg + t, base + (s % 4)*4096 + u*1024
                else: ad, off = vTS + reg, base + 16384 + (s % 4)*1024 + u*256
                d = WF + 4*(n % 5) + 2*u
                rt[n] = p.ds(f'ds_read_b64_tr_b16 v[{d}:{d+1}], v{ad} offset:{off}')
        ev = {n14 + 4: (4, 172), n14 + 24: (3, 180), n14 + 36: (2, 214), n14 + 52: (1, 222)}
        for n in range(5): rd(n)
        for n, (s, t) in enumerate(M):
            if n in first:
                hc = first[n] + NH//4 - 1
                if hc < 18: mq[0:0] = h_ops(hc) if hc == 17 else []
                if hc < 17: mq.extend(h_ops(hc))
                if first[n] == 10 and CT[0] & 4: mq.append(('fn', lambda: code_touch(p, 194, 195, sW, 4)))
                if WOT[0] and first[n] in (5, 6, 7, 8, 9, 11):
                    k = (5, 6, 7, 8, 9, 11).index(first[n])
                    def wt(k=k):
                        p.e(f's_lshr_b32 s60, s2, 3\ns_lshl_b32 s60, s60, 2\ns_add_u32 s60, s60, s{sW}\ns_mul_i32 s60, s60, {41*128}\ns_add_u32 s60, s60, {k*7*128}\n'
                            f'v_lshlrev_b32 v194, 3, v{vL16}\nv_add_u32 v194, s60, v194\ns_mov_b64 exec, 0x7f')
                        p.vm(f'buffer_load_dword v195, v194, s[28:31], 0 offen'); p.e('s_mov_b64 exec, -1')
                    mq.append(('fn', wt))
                if first[n] == 12:
                    mq.extend(lines_ops(f"""
v_bfe_u32 v{t0}, v{vL16}, 4, 2
v_bfe_u32 v{t1}, v{vL16}, 6, 1
v_xor_b32 v{t1}, s{sCB}, v{t1}
v_lshlrev_b32 v{t0}, 1, v{t0}
v_lshl_add_u32 v{t0}, v{t1}, 3, v{t0}
s_lshl_b32 s60, s22, 5
s_and_b32 s{sFl}, s{sQ}, 1
s_add_u32 s60, s60, s{sFl}
v_add_u32 v{t0}, s60, v{t0}
v_cmp_ne_u32 vcc, s2, v{t0}
s_lshl_b32 s{sFl}, s{sW}, 2
s_add_u32 s{sFl}, s{sFl}, {WS_FL + 20}
v_cndmask_b32 v{vTh}, 0, 1, vcc
v_lshlrev_b32 v{vP}, 7, v{t0}
v_add_u32 v{vP}, s{sFl}, v{vP}
s_lshl_b32 s60, s2, 7
s_add_u32 s{sFl}, s{sFl}, s60
v_mov_b32 v{vTwo}, 1
""", 6))
            if n in ev: mq.extend(pack(*ev[n]))
            while s not in ht: do(mq.pop(0))
            p.wait(lgkm=rt[n], vm=ht[s])
            ac = ACC + 16*t
            p.e(f'v_mfma_f32_32x32x16_bf16 {vr(ac,16)}, {vr(WF+4*(n % 5),4)}, {vr(HF+4*(s % NH),4)}, {"0" if s == 0 else vr(ac,16)}')
            if n + 10 in first: arrive(first[n + 10])
            if n + 7 in first: syt[0] = p.ds(f'ds_read2_b32 v[{vSy}:{vSy+1}], v{vSa} offset1:4')
            rd(n + 5)
            if mq:
                if mq[0][0] == 's': do(mq.pop(0))
                do(mq.pop(0))
        while mq: do(mq.pop(0))
        p.wait(vm=p.vm_issued, lgkm=p.lgkm_issued)
        p.e(f's_mov_b64 exec, 1')
        p.vm(f'buffer_store_dword v{vTwo}, off, s[4:7], s{sFl} sc1')
        p.e(f's_mov_b64 exec, -1')
        arrive(18)
        syt[0] = p.ds(f'ds_read2_b32 v[{vSy}:{vSy+1}], v{vSa} offset1:4')
        boundary(18)
        p.stamp('rg19', True)
        cnt = (p.lgkm_issued, p.lgkm_done, p.vm_issued, p.vm_done)
        p.e(f's_and_b32 s54, s{sCB}, 1\ns_lshl_b32 s54, s54, 2\ns_add_u32 s54, s54, s{sKS}\ns_cmp_eq_u32 s54, s{sW}\ns_cbranch_scc1 FIN2')
        G1, G2, X1, X2, A1, A2, OFR = 8, 172, 188+8, 204-0, 214, 230, 24
        X1, X2 = 196, 0
        names = list(getattr(p, 'stamps', []))
        for two in (0, 1):
            if two:
                p.label('FIN2')
                if Prog.STAMPS: p.stamps = list(names)
            p.lgkm_issued, p.lgkm_done, p.vm_issued, p.vm_done = cnt
            tiles = [(G1, 196, A1, vW1, vWx1, sCo, 168)] + ([(G2, 0, A2, vW2, vWx2, sCs, 204)] if two else [])
            FB2 = {168: (168, 188), 204: (204, 252)}
            vOX, vMX = 193, 194
            if two:
                p.e(f's_mul_i32 s54, s{sW}, {16*1152}\nv_subrev_u32 v{t1}, s54, v{vDS}')
                for i in range(36):
                    p.e(f's_mov_b32 m0, {L_WO2 + i*1024}\ns_add_u32 s55, s{sCs}, {i*16*1152}')
                    p.vm(f'buffer_load_dwordx4 v{t1}, s[28:31], s55 offen lds')
            for G, Xr, A, w, wx, sc, fb in tiles:
                p.e(f's_add_u32 s{sc}, s{sc}, s{sXO}')
                for hf in range(2): p.vm(f'buffer_load_dwordx4 {vr(Xr+4*hf,4)}, v{vXO}, s[32:35], s{sc} offen offset:{16*hf}')
            p.e(f's_mov_b32 s63, {SPIN_MAX}')
            p.label(f'POLL3_{two}')
            p.e(f"""
buffer_load_dword v{vPd}, v{vP}, s[4:7], 0 offen sc1
s_waitcnt vmcnt(0)
v_cmp_gt_u32 vcc, v{vTh}, v{vPd}
s_sub_u32 s63, s63, 1
s_cselect_b64 vcc, 0, vcc
s_cbranch_vccnz POLL3_{two}
""")
            p.reset_counts()
            p.stamp('rdpfl', True)
            p.e(f's_lshl_b32 s54, s{sKS}, 13\ns_add_u32 s54, s54, s{sDP}\ns_add_u32 s55, s54, 4096')
            for i in range(1, 4):
                for hf in range(2):
                    l1 = p.vm(f'buffer_load_dwordx4 {vr(OFR+8*(i-1)+4*hf,4)}, v{vL16}, s[4:7], s{54 + i//2} offen offset:{(i&1)*2048 + hf*1024} sc1')
            if two:
                for e in range(8):
                    if e % 2 == 0: p.e(f's_add_u32 s54, s{sDP}, {(4 + 5*(e//4))*8192 + (e % 4)*2048}')
                    for hf in range(2):
                        l2 = p.vm(f'buffer_load_dwordx4 {vr(OFR+24+8*e+4*hf,4)}, v{vL16}, s[4:7], s54 offen offset:{(e&1)*2048 + hf*1024} sc1')
            p.e(f"""
v_bfe_u32 v{t0}, v{vL16}, 9, 1
v_bfe_u32 v{t1}, v{vL16}, 4, 5
v_lshlrev_b32 v{vOX}, 2, v{t1}
v_lshl_add_u32 v{vOX}, v{t0}, 9, v{vOX}
s_mov_b32 s60, {hex(f2u(-LOG2E))}
""")
            if TAG[0]:
                p.e(f"""
v_lshlrev_b32 v{vP}, 10, v{t1}
v_add_u32 v{vP}, 1020, v{vP}
v_lshlrev_b32 v{t1}, 7, v{t1}
v_cmp_eq_u32 vcc, 0, v{t0}
v_add_u32 v{t1}, {32768 + 124}, v{t1}
s_nop 0
v_cndmask_b32 v{vP}, v{t1}, v{vP}, vcc
v_add_u32 v{vP}, s{sOF}, v{vP}
""")
            else:
                p.e(f"""
s_lshr_b32 s54, s{sT}, 3
s_lshl_b32 s54, s54, 12
s_bfe_u32 s55, s{sT}, 0x20001
s_lshl_b32 s55, s55, 2
s_add_u32 s54, s54, s55
s_add_u32 s54, s54, {WS_FL + 4}
v_and_b32 v{vP}, 0x1f0, v{vL16}
v_lshlrev_b32 v{vP}, 3, v{vP}
v_add_u32 v{vP}, s54, v{vP}
""")
            def addp(G, src, first):
                for k in range(8):
                    if first: p.e(f'v_lshlrev_b32 v{G+2*k}, 16, v{src+k}\nv_and_b32 v{G+2*k+1}, 0xffff0000, v{src+k}')
                    else: p.e(f'v_lshlrev_b32 v{A1+2*k}, 16, v{src+k}\nv_and_b32 v{A1+2*k+1}, 0xffff0000, v{src+k}')
                if not first:
                    for k in range(16): p.e(f'v_add_f32 v{G+k}, v{G+k}, v{A1+k}')
            def silu(G):
                for k in range(16): p.e(f'v_mul_f32 v{A1+k}, s60, v{G+k}')
                for k in range(16): p.e(f'v_exp_f32 v{A1+k}, v{A1+k}')
                for k in range(16): p.e(f'v_add_f32 v{A1+k}, 1.0, v{A1+k}')
                for k in range(16): p.e(f'v_rcp_f32 v{A1+k}, v{A1+k}')
                for k in range(16): p.e(f'v_mul_f32 v{G+k}, v{G+k}, v{A1+k}')
            p.wait(vm=l1)
            for i in range(3): addp(G1, OFR + 8*i, False)
            silu(G1)
            if two:
                p.wait(vm=l2)
                for e in range(8): addp(G2, OFR + 24 + 8*e, e == 0)
                silu(G2)
            wt = {}
            def rdw(s):
                if s > 35: return
                for G, Xr, A, w, wx, sc, fb in tiles:
                    for u in range(2):
                        ad, off = (w, (18*s + 8*u)*64) if s < 32 else (wx, ((s-32)*144 + 36*u)*64)
                        d = FB2[fb][s & 1] + 2*u
                        wt[s] = p.ds(f'ds_read_b64_tr_b16 v[{d}:{d+1}], v{ad} offset:{off}')
            p.stamp('rgdone', True)
            if EB[0]: p.e('s_barrier')
            if TAG[0]:
                p.e(f's_mov_b32 s63, {SPIN_MAX}')
                p.label(f'POLL4_{two}')
                p.e(f"""
buffer_load_dword v{vPd}, v{vP}, s[4:7], 0 offen sc1
s_waitcnt vmcnt(0)
v_cmp_eq_u32 vcc, -1, v{vPd}
s_sub_u32 s63, s63, 1
s_cselect_b64 vcc, 0, vcc
s_cbranch_vccnz POLL4_{two}
v_mov_b32 v{vMX}, 0
""")
                p.reset_counts()
            else:
                tk = p.vm(f'buffer_load_dword v{vPd}, v{vP}, s[4:7], 0 offen sc1')
                poll(p, vP, vPd, 1, f'POLL4_{two}', tk)
            p.stamp('rofl', True)
            ot = {}
            def ld(s):
                if s > 35: return
                if s % 4 == 0: p.e(f's_add_u32 s54, s{sOF}, {s*1024}')
                if s < 32: ot[s] = p.vm(f'buffer_load_dwordx4 {vr(OFR+4*s,4)}, v{vL16}, s[4:7], s54 offen offset:{(s%4)*1024} sc1')
                else:
                    for jj in range(4): ot[s] = p.vm(f'buffer_load_dword v{OFR+4*s+jj}, v{vOX}, s[4:7], s54 offen offset:{(s%4)*1024 + jj*128} sc1')
            OD = ODEPTH[0][two]
            for s in range(OD): ld(s)
            rdw(0); rdw(1)
            for s in range(36):
                p.wait(lgkm=wt[s], vm=ot[s])
                for G, Xr, A, w, wx, sc, fb in tiles:
                    p.e(f'v_mfma_f32_32x32x16_bf16 {vr(A,16)}, {vr(FB2[fb][s&1],4)}, {vr(OFR+4*s,4)}, {"0" if s == 0 else vr(A,16)}')
                rdw(s+2)
                ld(s + OD)
                if TAG[0]:
                    r = OFR + 4*s
                    p.e(f'v_max3_u32 v{vMX}, v{vMX}, v{r}, v{r+1}\nv_max3_u32 v{vMX}, v{vMX}, v{r+2}, v{r+3}')
            if TAG[0]:
                p.e(f"""
v_cmp_eq_u32 vcc, -1, v{vMX}
s_cmp_lt_i32 s63, 1
s_cselect_b64 vcc, 0, vcc
s_cbranch_vccnz POLL4_{two}
""")
            for G, Xr, A, w, wx, sc, fb in tiles:
                Tv = OFR
                for k in range(8): p.e(f'v_lshlrev_b32 v{Tv+2*k}, 16, v{Xr+k}\nv_and_b32 v{Tv+2*k+1}, 0xffff0000, v{Xr+k}')
                for k in range(16): p.e(f'v_fma_f32 v{G+k}, v{G+k}, v{A+k}, v{Tv+k}')
                for k in range(8): p.e(f'v_cvt_pk_bf16_f32 v{Xr+k}, v{G+2*k}, v{G+2*k+1}')
                for hf in range(2): p.e(f'buffer_store_dwordx4 {vr(Xr+4*hf,4)}, v{vXO}, s[56:59], s{sc} offen offset:{16*hf}')
            if not two: p.e('s_branch PK_end')
    return pre, body, common

def gen_k12(at=[4] + [3]*18 + [6], g0=1, force_fallback=False, SF=' sc1', k1={}, inv=False, rot=True, pace=1, tag=True, OD=(14, 14), ct=7, eb=True, wot=True, att=(('xk01', (4, 3, 3)), ('x0k1', (4, 8, 4)), 52), kvp=(2, 1.35), pubk=6):
    kv_plan(*kvp); PUBK[0] = pubk
    ATT[:] = att; WOT[0] = wot
    CT[0] = ct; EB[0] = eb
    TAG[0] = tag; ODEPTH[0] = OD
    INV[0] = inv; ROT[0] = rot; PACE[0] = pace
    a = plan(at, g0)
    p = Prog()
    p.label('CODE_BEGIN')
    p.e('s_cmp_ge_u32 s2, 256\ns_cbranch_scc1 PK_done')
    p.stamp('start'); p.stamp('rstart', True)
    out = []
    rd_ = role_down(p, a, g0, SF)
    gen_ph1(p, roles=[role_att(p, a, force_fallback, SF, out), rd_[:2]], common=rd_[2], poison=tag, ct=ct, **k1)
    p.label('PK_end')
    p.dump_stamps(0, 20, WS_ST)
    p.label('PK_done')
    p.e('s_endpgm')
    p.lines += out[0].lines
    return p

if __name__ == '__main__':
    p = gen_k12()
    pr = check_hazards(p.lines, 'k12')
    print(len(p.lines), 'lines;', len(pr), 'hazards', sum(1 for l in p.lines if l == 's_barrier'))
    for x in pr[:20]: print(x)
```
